```python
import torch

def _softmax(x, axis=-1):
    return torch.softmax(x, dim=axis)
def _gelu(x):
    return torch.nn.functional.gelu(x, approximate="tanh")
def _silu(x):
    return torch.nn.functional.silu(x)
def _sigmoid(x):
    return torch.sigmoid(x)
def _layernorm(x, axis=-1, eps=1e-5):
    m = x.mean(dim=axis, keepdim=True)
    v = x.var(dim=axis, keepdim=True, unbiased=False)
    return (x - m) / torch.sqrt(v + eps)
def _scatter_add(tgt, idx, src, axis=0):
    return tgt.clone().index_add_(axis, idx, src)
def _segment_sum(src, seg, n):
    out = torch.zeros((n,) + src.shape[1:], dtype=src.dtype)
    return out.index_add_(0, seg, src)
def _pad(x, pw):
    flat = tuple(v for pair in reversed(pw) for v in pair)
    return torch.nn.functional.pad(x, flat)

kernel_name = 'gated_mix__grouped_kv_mqa__linear_kernel_hedgehog__prompt'

def setup_inputs():

    _w = (lambda a: (lambda t: t.to(torch.bfloat16) if t.is_floating_point() else t)(torch.as_tensor(a)))
    def _A_setup():
        B, S, D, H = 1, 2048, 512, 32
        Dh = D // H
        return {
            "x": _w((lambda *s: torch.randn(*s, dtype=torch.bfloat16) * 0.05)(B, S, D)),
            "wq": _w((lambda *s: torch.randn(*s, dtype=torch.bfloat16) * 1.6)(D, H * Dh)),
            "wk": _w((lambda *s: torch.randn(*s, dtype=torch.bfloat16) * 1.6)(D, Dh)),
            "wv": _w((lambda *s: torch.randn(*s, dtype=torch.bfloat16) * 0.05)(D, Dh)),
            "wo": _w((lambda *s: torch.randn(*s, dtype=torch.bfloat16) * 0.05)(H * Dh, D)),
        }
    _A_in = _A_setup()

    def _B_setup():
        B, S, D, H = 1, 2048, 512, 32
        Dh = D // H
        return {
            "x": _w((lambda *s: torch.randn(*s, dtype=torch.bfloat16) * 0.05)(B, S, D)),
            "wqkv": _w((lambda *s: torch.randn(*s, dtype=torch.bfloat16) * 1.6)(D, 3 * D)),
            "w_phi": _w((lambda *s: torch.randn(*s, dtype=torch.bfloat16) * 1.6)(H, Dh, Dh) * (Dh ** -0.5)),
            "wo": _w((lambda *s: torch.randn(*s, dtype=torch.bfloat16) * 0.05)(D, D)),
        }
    _B_in = _B_setup()

    return {
        "A_x": _A_in["x"],
        "A_wq": _A_in["wq"],
        "A_wk": _A_in["wk"],
        "A_wv": _A_in["wv"],
        "A_wo": _A_in["wo"],
        "B_x": _B_in["x"],
        "B_wqkv": _B_in["wqkv"],
        "B_w_phi": _B_in["w_phi"],
        "B_wo": _B_in["wo"],
        "gate_w": _w((lambda *s: torch.randn(*s, dtype=torch.bfloat16) * 0.05)(512) * 16.0),
    }

def reference(A_x, A_wq, A_wk, A_wv, A_wo, B_x, B_wqkv, B_w_phi, B_wo, gate_w):
    def _A_ref(x, wq, wk, wv, wo):
        B, S, D = x.shape
        H = 32
        Dh = D // H
        q = (lambda x, *d: x.permute(*d))((x @ wq).reshape(B, S, H, Dh), 0, 2, 1, 3)
        k = x @ wk
        v = x @ wv
        scores = torch.einsum("bhqd,bkd->bhqk", q, k) * (Dh ** -0.5)
        p = _softmax(scores, axis=-1)
        o = torch.einsum("bhqk,bkd->bhqd", p, v)
        return (lambda x, *d: x.permute(*d))(o, 0, 2, 1, 3).reshape(B, S, H * Dh) @ wo

    def _B_ref(x, wqkv, w_phi, wo):
        B, S, D = x.shape
        H = 32; Dh = D // H
        qkv = (lambda x, *d: x.permute(*d))((x @ wqkv).reshape(B, S, 3, H, Dh), 2, 0, 3, 1, 4)
        q, k, v = qkv[0], qkv[1], qkv[2]
        pq = torch.einsum("bhsd,hdf->bhsf", q, w_phi)
        pk = torch.einsum("bhsd,hdf->bhsf", k, w_phi)
        phi_q = torch.concatenate([_softmax(pq, axis=-1), _softmax(-pq, axis=-1)], axis=-1)
        phi_k = torch.concatenate([_softmax(pk, axis=-1), _softmax(-pk, axis=-1)], axis=-1)
        kv = torch.einsum("bhsf,bhsd->bhfd", phi_k, v)
        z  = torch.einsum("bhsf->bhf", phi_k)
        num = torch.einsum("bhqf,bhfd->bhqd", phi_q, kv)
        den = torch.einsum("bhqf,bhf->bhq", phi_q, z)[..., None] + 1e-6
        o = num / den
        return (lambda x, *d: x.permute(*d))(o, 0, 2, 1, 3).reshape(B, S, D) @ wo

    x = A_x
    g = _sigmoid((x * gate_w).sum(-1, keepdims=True))
    a = _A_ref(x, A_wq, A_wk, A_wv, A_wo)
    b = _B_ref(x, B_wqkv, B_w_phi, B_wo)
    return g * a + (1 - g) * b
```

```python
import re, sys
TRANS = ("v_exp_", "v_log_", "v_rcp_", "v_rsq_", "v_sqrt_", "v_sin_", "v_cos_")
def regs(tok):
    tok = tok.strip()
    tok = tok.replace("-", "").replace("|", "")
    m = re.fullmatch(r"abs\((.*)\)", tok)
    if m: tok = m.group(1)
    m = re.fullmatch(r"([vas])(\d+)", tok)
    if m: return {(m.group(1), int(m.group(2)))}
    m = re.fullmatch(r"([vas])\[(\d+):(\d+)\]", tok)
    if m: return {(m.group(1), i) for i in range(int(m.group(2)), int(m.group(3)) + 1)}
    if tok in ("vcc", "vcc_lo", "vcc_hi"): return {("s", "vcc")}
    if tok in ("exec", "exec_lo", "exec_hi"): return {("s", "exec")}
    if tok == "m0": return {("s", "m0")}
    return set()
class I: pass
def parse(text):
    ins = []; labels = {}
    for ln, raw in enumerate(text.split("\n"), 1):
        s = raw.split(";")[0].split("//")[0].strip()
        if not s or s.startswith("."): continue
        m = re.match(r"^([\w.$]+):\s*(.*)$", s)
        if m:
            labels[m.group(1)] = len(ins); s = m.group(2).strip()
            if not s: continue
        p = s.split(None, 1)
        op = p[0]; rest = p[1] if len(p) > 1 else ""
        toks = [t.strip() for t in re.split(r",(?![^\[]*\])", rest)] if rest else []
        mods = ""
        if toks:
            last = toks[-1].split(None, 1)
            toks[-1] = last[0]
            mods = last[1] if len(last) > 1 else ""
        i = I(); i.op = op; i.ln = ln; i.txt = s; i.toks = toks; i.mods = mods
        R = [regs(t) for t in toks]
        U = lambda L: set().union(*L) if L else set()
        i.defs = set(); i.uses = set(); i.cls = "other"; i.slots = 1; i.phys = 1; i.target = None
        i.srcC = set(); i.srcAB = set(); i.passes = 0
        if op.startswith("v_mfma") or op.startswith("v_smfmac"):
            i.cls = "mfma"; i.defs = R[0]
            i.passes = 8 if "32x32" in op else 4
            if op.startswith("v_smfmac"):
                i.srcC = R[0]; i.srcAB = R[1] | R[2] | R[3]; i.phys = 3
            else:
                i.srcC = R[3]; i.srcAB = R[1] | R[2]; i.phys = 2 if len(R[1]) == 4 else 1
            i.uses = i.srcC | i.srcAB
        elif op.startswith("v_"):
            i.cls = "valu"
            if op.startswith(TRANS): i.cls = "trans"; i.phys = 2
            if op.startswith("v_permlane"):
                i.defs = R[0] | R[1]; i.uses = R[0] | R[1]; i.phys = 2
            elif op.startswith("v_nop"): pass
            else:
                i.defs = R[0]; i.uses = U(R[1:])
                if op.startswith(("v_fmac", "v_dot2c", "v_pk_fmac")) or "_dpp" in op: i.uses |= R[0]
                if op.startswith(("v_add_co", "v_addc_co", "v_sub_co")): i.defs |= R[1]
        elif op.startswith(("buffer_", "global_")):
            i.cls = "vmem"
            if "load" in op and not re.search(r"\blds\b", mods):
                i.defs = R[0]; i.uses = U(R[1:])
            else:
                i.uses = U(R)
            i.lds = bool(re.search(r"\blds\b", mods))
            i.wide = ("store" in op and ("x4" in op or "x3" in op))
            i.sdata = (R[0] if op.startswith("buffer_") else R[1]) if i.wide else set()
        elif op.startswith("ds_"):
            i.cls = "ds"
            if op.startswith("ds_read") or "_rtn" in op or "permute" in op:
                i.defs = R[0]; i.uses = U(R[1:])
            else: i.uses = U(R)
        elif op.startswith("s_"):
            i.cls = "salu"
            if op == "s_nop": i.slots = i.phys = int(toks[0], 0) + 1
            elif op.startswith(("s_branch", "s_cbranch")): i.target = toks[0]
            elif op == "s_call_b64": i.target = toks[1]; i.defs = R[0]
            elif op.startswith(("s_cmp", "s_waitcnt", "s_barrier", "s_sleep", "s_setprio", "s_endpgm", "s_setpc", "s_bitcmp")): i.uses = U(R)
            else:
                i.defs = R[0] if R else set(); i.uses = U(R[1:])
                if "saveexec" in op: i.defs |= {("s", "exec")}
        else:
            print("hazcheck: unknown op", s)
        ins.append(i)
    return ins, labels
def isvalu(i): return i.cls in ("valu", "trans")
def need(p, c):
    out = []
    vd = {r for r in p.defs if r[0] in "va"}
    sd = {r for r in p.defs if r[0] == "s"}
    if isvalu(p):
        if c.cls == "mfma" and vd & c.uses: out.append((2, False, "valu->mfma"))
        if p.cls == "trans" and c.cls == "valu" and vd & c.uses: out.append((1, False, "trans->valu"))
        if isvalu(c) and vd & c.uses:
            if c.op.startswith("v_permlane") or "_dpp" in c.op: out.append((2, False, "valu->permlane/dpp"))
            if c.op.startswith(("v_readfirstlane", "v_readlane")): out.append((1, False, "valu->readlane"))
        if sd:
            if isvalu(c) and sd & c.uses: out.append((2, False, "valu sgpr->valu"))
            if c.cls == "vmem" and sd & c.uses: out.append((5, False, "valu sgpr->vmem"))
    if p.cls == "mfma":
        n = 12 if p.passes == 8 else 8
        if isvalu(c) and vd & (c.uses | c.defs): out.append((n, True, "mfma->valu"))
        if c.cls in ("vmem", "ds") and vd & (c.uses | c.defs): out.append((n, True, "mfma->mem"))
        if c.cls == "mfma":
            if vd & c.srcAB: out.append((n, True, "mfma->mfma AB"))
            if vd & c.srcC and (vd != c.srcC or p.passes != c.passes): out.append((n - 2, True, "mfma->mfma C partial"))
        if isvalu(c) and (p.srcC & c.defs): out.append((7 if p.passes == 8 else 3, True, "mfma C WAR"))
    if p.cls == "salu" and ("s", "m0") in p.defs:
        if (c.cls == "vmem" and c.lds) or "addtid" in c.op: out.append((1, False, "m0->lds"))
    if p.cls == "vmem" and p.wide and (p.sdata & c.defs):
        out.append((2 if (isvalu(c) or c.cls == "mfma") else 1, False, "store WAR"))
    return out
def check(text, verbose=True):
    ins, labels = parse(text)
    rets = [k + 1 for k, i in enumerate(ins) if i.op == "s_call_b64"]
    def succ(k):
        i = ins[k]
        if i.op == "s_endpgm": return []
        if i.op == "s_setpc_b64": return rets
        if i.op in ("s_branch", "s_call_b64"): return [labels[i.target]]
        r = [k + 1] if k + 1 < len(ins) else []
        if i.target: r.append(labels[i.target])
        return r
    bad = 0
    for k, p in enumerate(ins):
        if not (p.defs or p.cls in ("mfma", "vmem")): continue
        if p.cls == "salu" and ("s", "m0") not in p.defs: continue
        lim = 13 if p.cls == "mfma" else 5
        seen = {}
        st = [(s, 0, (p.phys - 1) if p.cls == "mfma" else 0, p.passes) for s in succ(k)]
        while st:
            j, d, dp, busy = st.pop()
            if d >= lim: continue
            if j in seen and seen[j] <= d: continue
            seen[j] = d
            c = ins[j]
            for (n, ph, why) in need(p, c):
                have = max(d, dp - 2) if ph else d
                if have < n:
                    bad += 1
                    if verbose: print(f"HAZARD {why}: need {n} have {have}: line {p.ln}: {p.txt}  ->  line {c.ln}: {c.txt}")
            if p.cls == "mfma" and c.cls == "mfma":
                dp = max(dp, busy - 1); busy = dp + 1 + c.passes
            for s in succ(j): st.append((s, d + c.slots, dp + c.phys, busy))
    return bad
if __name__ == "__main__":
    n = check(open(sys.argv[1]).read())
    print("hazards:", n)
```

```python
import sys, os, math
NAME = "gated_mix__grouped_kv_mqa__linear_kernel_hedgehog__prompt"
STAMP = int(os.environ.get("STAMP", "0"))
FORCE_FB = int(os.environ.get("FORCE_FB", "0"))

KVREC = 2176
WS_KV = 0
WS_G = 0x24000
WS_FL = 0x40000
WS_KVF = 0x60000
WS_ST = 0x80000
WS_KVP = 0x100000
WS_OA = 0x400000
WS_OB = 0x600000
WS_SIZE = 0x800000
L_OACC = 0
L_Q = 18432
L_GATE = 26624
L_WPHI = 27648
L_CNT = 29696
L_ONES = 29712
L_R0 = 32768
L_R1 = 98304
LDS_BYTES = 163840
SX, SWB, SWQ, SJ, SWS, SG, SPH, SOA, SOB, SOUT, SDBG = (f"s[{i}:{i+3}]" for i in range(8, 52, 4))
sW, sTB, sHG, sR, sROLE, sTT, sP, sW1K = "s52", "s53", "s54", "s55", "s56", "s57", "s58", "s59"
KC = [f"s{60+i}" for i in range(8)]
sBUD = "s68"
sT0, sT1, sT2, sT3 = "s69", "s70", "s71", "s72"
sLOG = "s[74:75]"
LOG2E = 0x3fb8aa3b
KSCALE = 0.25 * math.log2(math.e)
import struct
def fbits(x): return struct.unpack("<I", struct.pack("<f", x))[0]

class S:
    def __init__(self):
        self.L = []; self.vm = []; self.lg = []; self.nst = 0
    def e(self, s):
        for l in s.strip("\n").split("\n"): self.L.append("    " + l.strip() if not l.strip().endswith(":") else l.strip())
    def vmem(self, s, tag=None): self.e(s); self.vm.append(tag)
    def lds(self, s, tag=None): self.e(s); self.lg.append(tag)
    def _cnt(self, q, tag, mx):
        idx = [i for i, t in enumerate(q) if t == tag]
        if not idx: return None
        n = len(q) - 1 - idx[-1]
        del q[: idx[-1] + 1]
        return min(n, mx)
    def wait(self, vm=None, lg=None):
        parts = []
        if vm == "all": parts.append("vmcnt(0)"); self.vm = []
        elif vm is not None:
            n = self._cnt(self.vm, vm, 63)
            if n is not None: parts.append(f"vmcnt({n})")
        if lg == "all": parts.append("lgkmcnt(0)"); self.lg = []
        elif lg is not None:
            n = self._cnt(self.lg, lg, 15)
            if n is not None: parts.append(f"lgkmcnt({n})")
        if parts: self.e("s_waitcnt " + " ".join(parts))
    def fork(self):
        o = S(); o.vm = list(self.vm); o.lg = list(self.lg); o.nst = self.nst; return o
    def stamp(self, k):
        if STAMP:
            self.e(f"s_memtime s[98:99]\ns_waitcnt lgkmcnt(0)\nv_writelane_b32 {self.stv}, s98, {k}")
            self.lg = []
    def text(self): return "\n".join(self.L)

_lbl = [0]
def lbl(p):
    _lbl[0] += 1
    return f"L_{p}{_lbl[0]}"

def vr(a, n=4): return f"v[{a}:{a+n-1}]"
def ar(a, n=4): return f"a[{a}:{a+n-1}]"
def mfma(d, a, b, c): return f"v_mfma_f32_32x32x16_bf16 {d}, {a}, {b}, {c}"

def spin_tail(s, top, done, sleep):
    s.e(f"s_sub_u32 {sBUD}, {sBUD}, 1\ns_cbranch_scc1 {done}_x")
    if sleep: s.e(f"s_sleep {sleep}")
    s.e(f"s_branch {top}\n{done}_x:\ns_mov_b32 {sBUD}, 0\n{done}:")

def prologue():
    s = S()
    s.e(f"""
s_load_dwordx2 s[8:9], s[0:1], 0
s_load_dwordx2 s[12:13], s[0:1], 48
s_load_dwordx2 s[16:17], s[0:1], 8
s_load_dwordx4 s[4:7], s[0:1], 16
s_load_dwordx2 s[24:25], s[0:1], 96
s_load_dwordx2 s[28:29], s[0:1], 72
s_load_dwordx2 s[32:33], s[0:1], 56
s_cmp_ge_u32 s2, 0x100
s_cbranch_scc1 L_exit
""")
    if STAMP: s.e("s_memrealtime s[94:95]\ns_memtime s[96:97]")
    s.e(f"""
v_lshrrev_b32 v1, 6, v0
s_mov_b32 s10, 0x200000
s_mov_b32 s11, 0x20000
v_readfirstlane_b32 {sW}, v1
v_lshrrev_b32 v1, 3, v0
v_and_b32 v2, 7, v0
v_bfe_u32 v3, v0, 4, 3
v_xor_b32 v3, v3, v2
v_lshlrev_b32 v4, 10, v1
v_lshl_add_u32 v3, v3, 4, v4
s_bfe_u32 {sT0}, s2, 0x20003
s_lshr_b32 {sT1}, s2, 5
s_lshl1_add_u32 {sR}, {sT0}, {sT1}
s_and_b32 {sR}, {sR}, 7
s_bfe_u32 {sT2}, s2, 0x20001
s_lshl3_add_u32 {sTB}, {sT2}, {sT1}
s_and_b32 {sT2}, s2, 1
s_lshl2_add_u32 {sHG}, {sT2}, {sT0}
s_add_u32 {sT2}, {sT2}, 1
s_cmp_eq_u32 {sT0}, 0
s_cselect_b32 {sROLE}, {sT2}, 0
s_lshl_b32 {sW1K}, {sW}, 10
s_lshl_b32 s76, {sTB}, 16
""")
    for c in range(8):
        if c == 0: s.e(f"s_mov_b32 {KC[0]}, {sR}")
        else: s.e(f"s_add_u32 {KC[c]}, {sR}, {c}\ns_and_b32 {KC[c]}, {KC[c]}, 7")
    s.e(f"""
v_lshrrev_b32 v5, 2, v0
v_and_b32 v5, 4, v5
v_xor_b32 v5, v5, v2
v_lshl_add_u32 v4, v5, 4, v4
v_mul_u32_u24 v6, 3072, v1
v_lshl_add_u32 v5, v5, 4, v6
v_and_b32 v2, 63, v0
v_lshlrev_b32 v1, 4, v2
s_mov_b32 s14, 0x180000
s_mov_b32 s15, 0x20000
s_mov_b32 s18, 0x80000
s_mov_b32 s19, 0x20000
s_mov_b32 s22, 0x4000
s_mov_b32 s23, 0x20000
s_mov_b32 s26, {WS_SIZE}
s_mov_b32 s27, 0x20000
s_mov_b32 s30, 0x400
s_mov_b32 s31, 0x20000
s_mov_b32 s34, 0x4000
s_mov_b32 s35, 0x20000
s_lshl_b32 s77, {sHG}, 7
s_waitcnt lgkmcnt(0)
""")
    def dma_x(c):
        s.e(f"s_lshl_b32 {sT0}, {KC[c]}, 7\ns_add_u32 m0, {sW1K}, {L_R0 + c*8192}\ns_add_u32 {sT0}, {sT0}, s76")
        s.vmem(f"buffer_load_dwordx4 v3, {SX}, {sT0} offen lds", f"X{c}")
    def dma_kb(c):
        s.e(f"s_mul_i32 {sT0}, {KC[c]}, 196608\ns_add_u32 m0, {sW1K}, {L_R1 + c*8192 - 1024}\ns_add_u32 {sT0}, {sT0}, s77")
        s.vmem(f"buffer_load_dwordx4 v5, {SWB}, {sT0} offen offset:1024 lds", f"KB{c}")
    dma_x(0); dma_x(1)
    s.e(f"""
s_load_dwordx2 s[36:37], s[0:1], 32
s_load_dwordx2 s[40:41], s[0:1], 64
s_load_dwordx2 s[44:45], s[0:1], 80
s_load_dwordx2 s[48:49], s[0:1], 88
s_cmp_eq_u32 {sROLE}, 2
s_cselect_b64 s[20:21], s[6:7], s[4:5]
s_cmp_eq_u32 {sROLE}, 0
s_cbranch_scc1 L_noprod
s_add_u32 {sT0}, {sW}, {sR}
s_and_b32 {sT0}, {sT0}, 7
s_lshl_b32 m0, {sW}, 11
s_lshl_b32 {sT0}, {sT0}, 11
buffer_load_dwordx4 v1, {SJ}, {sT0} offen lds
buffer_load_dwordx4 v1, {SJ}, {sT0} offen offset:1024 lds
s_cmp_ge_u32 {sW}, 2
s_cbranch_scc1 L_noprod
s_lshl_b32 {sT0}, {sR}, 7
v_add_u32 v6, {sT0}, v1
v_and_b32 v6, 0x3ff, v6
s_movk_i32 m0, {L_GATE}
v_mov_b32 v8, 0
buffer_load_dwordx4 v6, {SG}, 0 offen lds
v_mov_b32 v9, 0
v_mov_b32 v10, 0
v_mov_b32 v11, 0
s_lshl1_add_u32 {sT0}, {sTB}, {sROLE}
s_lshl1_add_u32 {sT0}, {sT0}, {sW}
s_lshl_b32 {sT0}, {sT0}, 10
s_add_u32 {sT0}, {sT0}, {WS_FL - 2048}
buffer_store_dwordx4 v[8:11], v1, {SWS}, {sT0} offen sc1
L_noprod:
s_and_b32 {sT0}, {sW}, 6
s_cmp_eq_u32 {sT0}, 2
s_cbranch_scc0 L_nophi
s_lshl_b32 {sT0}, {sHG}, 11
s_add_u32 m0, {sW1K}, {L_WPHI - 2048}
s_add_u32 {sT0}, {sT0}, {sW1K}
s_sub_u32 {sT0}, {sT0}, 2048
buffer_load_dwordx4 v1, {SPH}, {sT0} offen lds
L_nophi:
""")
    dma_kb(0)
    s.e(f"s_lshl_b32 {sT0}, {KC[0]}, 16\ns_add_u32 m0, {sW1K}, {L_Q}\ns_add_u32 {sT0}, {sT0}, s77")
    s.vmem(f"buffer_load_dwordx4 v4, {SWQ}, {sT0} offen lds", "WQ0")
    dma_x(2); dma_x(3)
    s.e(f"""
s_mov_b32 s38, 0x80000
s_mov_b32 s39, 0x20000
s_mov_b32 s42, 0x80000
s_mov_b32 s43, 0x20000
s_mov_b32 s46, 0x200000
s_mov_b32 s47, 0x20000
s_mov_b32 s50, 0x100
s_mov_b32 s51, 0x20000
s_mov_b32 {sBUD}, 0x80000
s_mov_b32 s74, {LOG2E}
s_mov_b32 s75, {LOG2E}
s_and_b32 {sTT}, {sW}, 1
s_bfe_u32 {sP}, {sW}, 0x10001
v_and_b32 v6, 31, v2
v_lshrrev_b32 v8, 5, v2
v_bfe_u32 v9, v2, 1, 3
v_xor_b32 v9, v9, v8
s_lshl_b32 {sT0}, {sTT}, 12
s_add_u32 {sT0}, {sT0}, {L_R0}
v_lshlrev_b32 v10, 7, v6
v_add_u32 v10, {sT0}, v10
v_lshl_add_u32 v12, v9, 4, v10
v_xor_b32 v13, 32, v12
v_xor_b32 v14, 64, v12
v_xor_b32 v15, 0x60, v12
v_bfe_u32 v9, v2, 2, 2
v_and_b32 v10, 3, v2
s_waitcnt lgkmcnt(0)
s_cmp_ge_u32 {sW}, 4
s_cbranch_scc1 L_H
""")
    return s

def softmax_max_exp(s, Ts, tmp):
    out = []
    n = len(Ts)
    M = [tmp + 2 * i for i in range(n)]
    for k in range(4):
        for i, T in enumerate(Ts):
            for sg in range(2):
                b = T + 8 * sg; m = M[i] + sg
                if k == 0: out.append(f"v_max3_f32 v{m}, v{b}, v{b+1}, v{b+2}")
                elif k < 3: out.append(f"v_max3_f32 v{m}, v{m}, v{b+1+2*k}, v{b+2+2*k}")
                else: out.append(f"v_max_f32 v{m}, v{m}, v{b+7}")
    out.append("s_nop 1")
    for m in M: out.append(f"v_permlane32_swap_b32 v{m}, v{m+1}")
    for m in M: out.append(f"v_max_f32 v{m}, v{m}, v{m+1}")
    for m in M: out.append(f"v_mul_f32 v{m}, {hex(LOG2E | 0x80000000)}, v{m}")
    for m in M: out.append(f"v_mov_b32 v{m+1}, v{m}")
    out.append("s_nop 1")
    for m in M: out.append(f"v_permlane32_swap_b32 v{m}, v{m+1}")
    for i, T in enumerate(Ts):
        for j in range(8):
            sel = "op_sel_hi:[1,0,0]" if j < 4 else "op_sel:[0,0,1] op_sel_hi:[1,0,1]"
            out.append(f"v_pk_fma_f32 {vr(T+2*j,2)}, {vr(T+2*j,2)}, {sLOG}, {vr(M[i],2)} {sel}")
    for T in Ts:
        for j in range(16): out.append(f"v_exp_f32 v{T+j}, v{T+j}")
    return out

def wphi_frags(s, dst, kver, vaddr, vsign):
    if kver: s.e("v_lshrrev_b32 v16, 1, v10\nv_and_b32 v17, 1, v10\nv_lshl_add_u32 v16, v17, 1, v16")
    else: s.e("v_mov_b32 v16, v10")
    s.e(f"""
v_lshl_add_u32 v17, v8, 2, v9
v_lshlrev_b32 v17, 5, v17
v_lshl_add_u32 v16, v16, 3, v17
s_lshl_b32 {sT0}, {sP}, 10
v_add_u32 v{vaddr}, {sT0}, v16
v_bfe_u32 v16, v2, 4, 1
v_mul_u32_u24 v16, 0x8000, v16
v_lshl_add_u32 v{vsign}, v16, 16, v16
""")
    for a in range(2):
        for rd in range(2):
            s.lds(f"ds_read_b64_tr_b16 {vr(dst+4*a+2*rd,2)}, v{vaddr} offset:{L_WPHI + a*512 + rd*256}", "wphi")
    s.wait(lg="wphi")
    for i in range(8): s.e(f"v_xor_b32 v{dst+i}, v{vsign}, v{dst+i}")

def c_path(s):
    s.stv = "v7"
    if STAMP: s.e("v_mov_b32 v7, 0")
    s.e("s_setprio 1")
    s.e(f"""
v_mov_b32 v16, 0
v_mov_b32 v17, 0x3f803f80
v_lshlrev_b32 v18, 2, v2
v_mov_b32 v19, {L_CNT}
""")
    s.lds(f"ds_write_b32 v18, v16 offset:{L_OACC + 9216 + 3*2304 + 2048}")
    s.lds(f"ds_write_b32 v19, v16")
    s.lds(f"ds_write2_b32 v19, v17, v17 offset0:4 offset1:5")
    s.lds(f"ds_write2_b32 v19, v17, v17 offset0:6 offset1:7")
    s.e(f"""
v_lshl_add_u32 v20, v8, 3, v9
v_lshlrev_b32 v20, 5, v20
v_lshl_add_u32 v20, v10, 3, v20
v_lshlrev_b32 v21, 4, v8
s_mov_b32 s78, 0xffff0000
s_mov_b32 s79, 0xffff0000
s_lshl1_add_u32 s80, {sTB}, {sTT}
s_mul_i32 s81, s80, {KVREC}
s_cmp_ge_u32 {sW}, 2
s_cbranch_scc1 L_loader
s_cmp_eq_u32 {sROLE}, 1
s_cbranch_scc1 L_jobK
s_cmp_eq_u32 {sROLE}, 2
s_cbranch_scc1 L_jobV
""")
    base = s.fork(); base.stv = s.stv; base.lg = []
    s.wait(vm="X1", lg="all"); s.e("s_barrier")
    s.wait(vm="all")
    for u in range(7): s.e("s_barrier")
    s.e("s_branch L_jobdone")
    ld = base.fork(); ld.stv = s.stv
    ld.e(f"""
L_loader:
s_mov_b32 {sROLE}, 0
s_lshl_b32 s82, {sTT}, 12
v_lshrrev_b32 v16, 3, v2
v_and_b32 v17, 7, v2
v_lshrrev_b32 v18, 4, v2
v_xor_b32 v18, v18, v17
v_lshrrev_b32 v19, 2, v2
v_and_b32 v19, 4, v19
v_xor_b32 v19, v19, v17
s_lshl_b32 {sT0}, {sTT}, 5
v_add_u32 v16, {sT0}, v16
v_lshlrev_b32 v17, 10, v16
v_lshl_add_u32 v24, v18, 4, v17
v_lshl_add_u32 v28, v19, 4, v17
v_mul_u32_u24 v17, 3072, v16
v_lshl_add_u32 v32, v19, 4, v17
v_add_u32 v32, 0x400, v32
""")
    for jx in range(1, 4):
        ld.e(f"v_add_u32 v{24+jx}, {jx*7168}, v24\nv_add_u32 v{28+jx}, {jx*7168}, v28\nv_add_u32 v{32+jx}, {jx*(24576-1024)}, v32")
    ld.e("v_xor_b32 v25, 64, v25\nv_xor_b32 v27, 64, v27")
    def lchunk(name):
        k, c = name[:-1], int(name[-1])
        if k == "X": ld.e(f"s_lshl_b32 {sT0}, {KC[c]}, 7\ns_add_u32 m0, s82, {L_R0 + c*8192}\ns_add_u32 {sT0}, {sT0}, s76"); vb, srd = 24, SX
        elif k == "KB": ld.e(f"s_mul_i32 {sT0}, {KC[c]}, 196608\ns_add_u32 m0, s82, {L_R1 + c*8192}\ns_add_u32 {sT0}, {sT0}, s77"); vb, srd = 32, SWB
        else: ld.e(f"s_lshl_b32 {sT0}, {KC[c]}, 16\ns_add_u32 m0, s82, {L_R0 + c*8192}\ns_add_u32 {sT0}, {sT0}, s77"); vb, srd = 28, SWQ
        for jx in range(4):
            ld.vmem(f"buffer_load_dwordx4 v{vb+jx}, {srd}, {sT0} offen offset:{jx*1024} lds", name)
    sched = [("X1", ["X4", "X5", "X6", "X7"]), ("X3", ["KB1", "KB2"]), ("X5", ["KB3", "KB4"]), ("X7", ["KB5"]),
             ("KB1", ["KB6", "KB7"]), ("KB3", ["WQ1", "WQ2"]), ("KB5", ["WQ3", "WQ4"]), ("KB7", ["WQ5", "WQ6", "WQ7"])]
    for n_, (w_, nxt) in enumerate(sched):
        ld.wait(vm=w_, lg="all" if n_ == 0 else None); ld.e("s_barrier")
        for c in nxt: lchunk(c)
    ld.e("s_branch L_jobdone")
    ACC = 24
    def job(kind):
        j = base.fork(); j.stv = s.stv
        j.e(f"L_job{kind}:")
        LAG = 3
        def ring(t): return 64 + 8 * (t % 8)
        def mm(t):
            j.wait(lg=f"f{t}")
            x, w = vr(ring(t)), vr(ring(t) + 4)
            c = "0" if t == 0 else vr(ACC, 16)
            j.e(mfma(vr(ACC, 16), w, x, c) if kind == "K" else mfma(vr(ACC, 16), x, w, c))
        for t in range(32):
            c, ks = t >> 2, t & 3
            if t % 8 == 0:
                if t == 0: j.wait(vm="X1")
                if t == 8: j.wait(vm="all")
                j.e("s_barrier")
            j.lds(f"ds_read_b128 {vr(ring(t))}, v{12+ks} offset:{c*8192}", f"f{t}")
            for rd in range(2):
                j.lds(f"ds_read_b64_tr_b16 {vr(ring(t)+4+2*rd,2)}, v20 offset:{L_OACC + c*2048 + ks*512 + rd*128}", f"f{t}")
            if kind == "K":
                j.e("s_mov_b64 exec, s[78:79]")
                j.lds(f"ds_read_b128 {vr(ring(t)+4)}, v21 offset:{L_GATE + c*128 + ks*32}", f"f{t}")
                j.e("s_mov_b64 exec, -1")
            if t >= LAG: mm(t - LAG)
        for t in range(32 - LAG, 32): mm(t)
        j.e("s_barrier")
        if kind == "K":
            j.e(f"""
v_and_b32 v16, 0x13, v6
v_bfe_u32 v17, v6, 2, 1
v_lshl_add_u32 v16, v17, 3, v16
v_bfe_u32 v17, v6, 3, 1
v_lshl_add_u32 v16, v17, 2, v16
v_lshl_add_u32 v16, v8, 5, v16
v_lshlrev_b32 v16, 4, v16
v_lshlrev_b32 v17, 2, v6
s_mov_b32 s82, {fbits(KSCALE)}
s_mov_b32 s83, {fbits(KSCALE)}
s_lshl_b32 {sT1}, s80, 7
s_add_u32 {sT1}, {sT1}, {WS_G}
""")
            for q in range(4): j.e(f"v_pk_mul_f32 {vr(ACC+2*q,2)}, {vr(ACC+2*q,2)}, s[82:83]")
            j.e(f"v_mul_f32 v{ACC+8}, {hex(LOG2E | 0x80000000)}, v{ACC+8}")
            for q in range(4): j.e(f"v_cvt_pk_bf16_f32 v{40+q}, v{ACC+2*q}, v{ACC+2*q+1}")
            j.e(f"v_exp_f32 v{ACC+8}, v{ACC+8}")
            j.vmem(f"buffer_store_dwordx4 v[40:43], v16, {SWS}, s81 offen sc1", "kvst")
            j.e(f"v_add_f32 v{ACC+8}, 1.0, v{ACC+8}\nv_rcp_f32 v{ACC+8}, v{ACC+8}\ns_nop 0")
            j.vmem(f"buffer_store_dword v{ACC+8}, v17, {SWS}, {sT1} offen sc1", "kvst")
        else:
            j.e(f"""
v_and_b32 v16, 15, v6
v_lshl_add_u32 v16, v8, 4, v16
v_lshrrev_b32 v17, 4, v6
v_lshl_add_u32 v16, v17, 5, v16
v_lshlrev_b32 v16, 4, v16
v_mov_b32 v44, 0x3f803f80
v_mov_b32 v45, 0x3f803f80
v_mov_b32 v46, 0x3f803f80
v_mov_b32 v47, 0x3f803f80
s_nop 2
""")
            for q in range(4): j.e(f"v_cvt_pk_bf16_f32 v{40+q}, v{ACC+2*q}, v{ACC+2*q+1}")
            j.e("s_mov_b64 exec, s[78:79]")
            for q in range(4): j.e(f"v_cvt_pk_bf16_f32 v{40+q}, v{ACC+8+2*q}, v{ACC+8+2*q+1}")
            j.e("s_mov_b64 exec, -1")
            j.vmem(f"buffer_store_dwordx4 v[40:43], v16, {SWS}, s81 offen offset:1024 sc1", "kvst")
            j.e("s_mov_b64 exec, 0xff")
            j.vmem(f"buffer_store_dwordx4 v[44:47], v1, {SWS}, s81 offen offset:2048 sc1", "kvst")
            j.e("s_mov_b64 exec, -1")
        j.stamp(2)
        for u in range(3): j.e("s_barrier")
        if kind == "K": j.e("s_branch L_jobdone")
        return j
    jk, jv = job("K"), job("V")
    s.L += ld.L + jk.L + jv.L
    s.e("L_jobdone:")
    s.stamp(3)
    wphi_frags(s, 56, True, 18, 19)
    s.e(f"""
s_lshl1_add_u32 {sT0}, {sTT}, {sP}
s_lshl_b32 {sT0}, {sT0}, 12
v_lshlrev_b32 v22, 6, v6
v_lshl_add_u32 v22, v8, 4, v22
v_add_u32 v22, {sT0}, v22
s_lshl_b32 {sT0}, {sW}, 11
s_add_u32 {sT0}, {sT0}, {L_R0}
v_add_u32 v23, {sT0}, v1
""")
    def ldwait(n):
        skip = lbl("lw")
        s.e(f"s_cmp_lt_u32 {sW}, 2\ns_cbranch_scc1 {skip}\ns_waitcnt vmcnt({n})\n{skip}:\ns_barrier")
    s.e(f"""
s_cmp_eq_u32 {sROLE}, 0
s_cbranch_scc1 L_nosig
s_lshl_b32 {sT0}, {sROLE}, 7
s_sub_u32 {sT0}, {sT0}, 128
v_mov_b32 v16, 1
v_mov_b32 v17, 0
s_mov_b64 exec, 1
s_waitcnt vmcnt(0)
buffer_atomic_add v16, v17, {SDBG}, {sT0} offen sc1
s_mov_b64 exec, -1
L_nosig:
""")
    ldwait(24); ldwait(16)
    s.vm = []
    s.stamp(4)
    T0, T1 = 24, 40
    s.lds(f"ds_read_b128 v[64:67], v23", "kb")
    s.lds(f"ds_read_b128 v[68:71], v23 offset:1024", "kb")
    s.e(f"""
v_and_b32 v16, 15, v6
v_lshl_add_u32 v16, v8, 4, v16
v_lshlrev_b32 v16, 4, v16
v_mov_b32 v17, 0x80000000
v_cmp_gt_u32 vcc, 16, v6
v_mov_b32 v18, 0x400
v_mov_b32 v19, 0x200
v_cndmask_b32 v16, v17, v16, vcc
v_cmp_eq_u32 vcc, 16, v6
s_lshr_b32 {sT0}, s2, 3
s_lshl_b32 {sT0}, {sT0}, 1
v_cndmask_b32 v4, v16, v18, vcc
v_cndmask_b32 v5, v16, v19, vcc
s_lshl4_add_u32 {sT0}, {sW}, {sT0}
""")
    s.wait(lg="kb")
    s.e(mfma(vr(T0, 16), "v[56:59]", "v[64:67]", 0))
    s.e(mfma(vr(T1, 16), "v[60:63]", "v[68:71]", 0))
    KOFF = [f"s{78+i}" for i in range(16)]
    for t in range(16):
        s.e(f"s_add_u32 {sT1}, {sT0}, {t}\ns_and_b32 {sT1}, {sT1}, 63\ns_mul_i32 {KOFF[t]}, {sT1}, {KVREC}")
    sm = softmax_max_exp(s, [T0, T1], 16)
    for k in range(3):
        for i, T in enumerate((T0, T1)):
            for sg in range(2):
                b = T + 8 * sg; d = 64 + 4 * i + 2 * sg
                if k == 0: sm.append(f"v_pk_add_f32 {vr(d,2)}, {vr(b,2)}, {vr(b+2,2)}")
                else: sm.append(f"v_pk_add_f32 {vr(d,2)}, {vr(d,2)}, {vr(b+2+2*k,2)}")
    for i in range(2):
        for sg in range(2):
            d = 64 + 4 * i + 2 * sg
            sm.append(f"v_add_f32 v{16+2*i+sg}, v{d}, v{d+1}")
    sm.append("s_nop 1")
    for m in (16, 18): sm.append(f"v_permlane32_swap_b32 v{m}, v{m+1}")
    for m in (16, 18): sm.append(f"v_add_f32 v{m}, v{m}, v{m+1}")
    for m in (16, 18): sm.append(f"v_rcp_f32 v{m}, v{m}")
    sm.append("s_nop 0")
    for m in (16, 18): sm.append(f"v_mov_b32 v{m+1}, v{m}")
    sm.append("s_nop 1")
    for m in (16, 18): sm.append(f"v_permlane32_swap_b32 v{m}, v{m+1}")
    for i, T in enumerate((T0, T1)):
        for j in range(8):
            sel = "op_sel_hi:[1,0]" if j < 4 else "op_sel:[0,1] op_sel_hi:[1,1]"
            sm.append(f"v_pk_mul_f32 {vr(T+2*j,2)}, {vr(T+2*j,2)}, {vr(16+2*i,2)} {sel}")
        for j in range(8):
            sm.append(f"v_cvt_pk_bf16_f32 v{64+8*i+j}, v{T+2*j}, v{T+2*j+1}")
    cut1, cut2 = 30, 66
    s.e("\n".join(sm[:cut1]))
    ldwait(8)
    s.e("\n".join(sm[cut1:cut2]))
    ldwait(0)
    s.vm = []
    s.e("\n".join(sm[cut2:]))
    for a in range(2):
        for sg in range(2):
            s.lds(f"ds_write_b128 v22, {vr(64+8*a+4*sg)} offset:{L_OACC + a*2048 + sg*32}")
    s.e(f"""
v_mov_b32 v6, 0xdddddddd
v_mov_b32 v60, 0
v_mov_b32 v61, 0
v_add_u32 v3, {L_Q}, v1
s_mul_i32 s73, {sW}, 2304
v_lshlrev_b32 v62, 2, v2
v_add_u32 v62, s73, v62
v_and_b32 v16, 32, v2
v_lshlrev_b32 v16, 2, v16
""")
    s.wait(lg="all"); s.stamp(5); s.e("s_barrier")
    s.stamp(6)
    S0, S1, O, Q = 8, 24, 40, 56
    top, done = lbl("kvp"), lbl("kvd")
    s.lds(f"ds_read_b128 {vr(Q)}, v3", "q")
    s.e(f"{top}:\nbuffer_load_dword v17, v16, {SDBG}, 0 offen sc1\ns_waitcnt vmcnt(0)\nv_cmp_ne_u32 vcc, 64, v17\ns_cbranch_vccz {done}")
    spin_tail(s, top, done, 1)
    s.stamp(7)
    def ld(t):
        s.vmem(f"buffer_load_dwordx4 {vr(64+4*t)}, v1, {SWS}, {KOFF[t]} offen sc1", f"K{t}")
        s.vmem(f"buffer_load_dwordx4 {ar(8*t)}, v4, {SWS}, {KOFF[t]} offen offset:1024 sc1", f"Vl{t}")
        s.vmem(f"buffer_load_dwordx4 {ar(8*t+4)}, v5, {SWS}, {KOFF[t]} offen offset:1536 sc1", f"Vh{t}")
    AHEAD = 5
    for t in range(AHEAD): ld(t)
    zero = f"v_mfma_f32_32x32x8_bf16 {vr(O,16)}, v[60:61], v[60:61], 0"
    def smf(a, b): return f"v_smfmac_f32_32x32x32_bf16 {vr(O,16)}, {ar(a)}, {vr(b,8)}, v6"
    s.e(zero)
    s.wait(vm="K0", lg="all")
    s.e(mfma(vr(S0, 16), vr(64), vr(Q), 0))
    s.e("s_nop 11")
    s.stamp(8)
    def dump(s):
        for r in range(9): s.e(f"ds_write_addtid_b32 v{O+r} offset:{r*256}")
    def step(s, first):
        for t in range(16):
            Sc, Sn = (S0, S1) if t % 2 == 0 else (S1, S0)
            tn = (t + 1) % 16; tp = (t - 1) % 16
            pos_lo = 13 if (t == 0 and not first) else 11
            for i in range(16):
                if i == 2 and not (first and t == 0):
                    s.e(smf(8 * tp + 4, Sn + 8))
                if i == 5:
                    if first and t < 15: s.wait(vm=f"K{tn}")
                    if t == 15: s.e("s_waitcnt lgkmcnt(0)")
                    s.e(mfma(vr(Sn, 16), vr(64 + 4 * tn), vr(Q), 0))
                    if first and t + AHEAD < 16: ld(t + AHEAD)
                    if t == 14:
                        s.e(f"ds_read_b128 {vr(Q)}, v3 offset:1024\nds_read_b32 v63, v62 offset:2048")
                    if t == 15:
                        s.e("v_cmp_neq_f32 vcc, -1.0, v63\nv_add_u32 v3, 0x400, v3")
                if i == 8 and t == 0 and not first:
                    dump(s); s.e(zero)
                if i == pos_lo:
                    if first and t == 15: s.wait(vm="all")
                    s.e(smf(8 * t, Sc))
                s.e(f"v_exp_f32 v{Sc+i}, v{Sc+i}")
    s.e(f"s_mov_b32 m0, s73\ns_movk_i32 s76, 9216\ns_mov_b32 s77, 7")
    step(s, True)
    s.stamp(9)
    s.e(".p2align 6\nL_att:\ns_cbranch_vccnz L_attwait\nL_attgo:\nv_add_u32 v62, s76, v62")
    step(s, False)
    s.e(f"s_add_u32 m0, m0, s76\ns_sub_u32 s76, 0, s76\ns_sub_u32 s77, s77, 1\ns_cmp_lg_u32 s77, 0\ns_cbranch_scc1 L_att")
    s.e("s_cbranch_vccnz L_attwait\nL_attfin:")
    s.e(smf(8 * 15 + 4, S1 + 8))
    s.e("s_nop 11")
    dump(s)
    s.stamp(10)
    if STAMP: write_stamps(s)
    s.e("s_endpgm")
    top, done = "L_attwait", lbl("awd")
    s.e(f"{top}:\nds_read_b32 v63, v62 offset:2048\ns_waitcnt lgkmcnt(0)\nv_cmp_neq_f32 vcc, -1.0, v63\ns_cbranch_vccz {done}")
    spin_tail(s, top, done, 1)
    s.e("s_cmp_lg_u32 s77, 0\ns_cbranch_scc1 L_attgo\ns_branch L_attfin")
    return s

def write_stamps(s):
    s.e(f"""
v_writelane_b32 {s.stv}, s96, 0
v_writelane_b32 {s.stv}, s94, 1
s_lshl3_add_u32 {sT0}, s2, {sW}
s_lshl_b32 {sT0}, {sT0}, 8
s_add_u32 {sT0}, {sT0}, {WS_ST}
v_lshlrev_b32 v0, 2, v2
buffer_store_dword {s.stv}, v0, {SWS}, {sT0} offen
""")

def h_path(s):
    s.stv = "v31"
    s.e("L_H:\ns_setprio 2")
    if STAMP: s.e("v_mov_b32 v31, 0")
    sHW = "s78"
    vW0, vW1, vWQ0, vCNT, vONE, vL4, vLrow, vIDX = 18, 19, 20, 21, 22, 23, 24, 25
    s.e(f"""
s_and_b32 {sHW}, {sW}, 3
v_lshl_add_u32 v16, v8, 3, v9
v_lshlrev_b32 v16, 7, v16
v_lshrrev_b32 v17, 1, v9
v_xor_b32 v17, {sP}, v17
v_lshl_add_u32 v16, v17, 6, v16
v_bfe_u32 v11, v2, 4, 1
v_lshl_add_u32 v16, v11, 5, v16
v_lshl_add_u32 v16, v10, 3, v16
v_add_u32 v{vW0}, {L_R0}, v16
v_add_u32 v{vW1}, {L_R1}, v16
v_add_u32 v{vWQ0}, {L_Q}, v16
v_mov_b32 v{vCNT}, {L_CNT}
v_mov_b32 v{vONE}, 1
v_lshlrev_b32 v{vL4}, 2, v2
v_lshlrev_b32 v{vLrow}, 2, v6
v_mov_b32 v{vIDX}, 0xdddddddd
v_mov_b32 v26, 0
v_mov_b32 v27, 0
s_lshl_b32 {sT0}, {sHW}, 11
s_add_u32 {sT0}, {sT0}, {L_R0}
v_add_u32 v28, {sT0}, v1
s_lshl2_add_u32 {sT0}, {sP}, {sTT}
s_lshl_b32 {sT0}, {sT0}, 10
s_add_u32 {sT0}, {sT0}, {L_Q}
v_add_u32 v29, {sT0}, v1
""")
    for u in range(4):
        if u == 0: s.wait(vm="X1")
        if u == 1: s.wait(vm="all")
        s.e("s_barrier")
        if u == 0: s.stamp(2)
        for t in range(8 * u, 8 * u + 8):
            s.lds(f"ds_read_b128 {ar(4*t)}, v{12 + (t & 3)} offset:{(t >> 2)*8192}", "x")
    A0, A1 = 64, 80
    LAG = 4
    def ring(t): return 32 + 4 * (t % 8)
    def gemm(steps, pre=None, post=None):
        n = len(steps)
        def mm(t):
            s.wait(lg=f"w{t}")
            s.e(steps[t][3].replace("WF", vr(ring(t))))
            if post: post(t)
        for t in range(n):
            if pre: pre(t)
            a, off, rs, _ = steps[t]
            for rd in range(2):
                s.lds(f"ds_read_b64_tr_b16 {vr(ring(t)+2*rd,2)}, v{a} offset:{off + rd*rs}", f"w{t}")
            if t >= LAG: mm(t - LAG)
        for t in range(n - LAG, n): mm(t)
    steps = []
    for t in range(32):
        steps.append((vW1, t * 2048, 512, mfma(vr(A0, 16), "WF", ar(4 * t), "0" if t == 0 else vr(A0, 16))))
    for t in range(32):
        steps.append((vWQ0 if t < 4 else vW0, t * 2048, 512, mfma(vr(A1, 16), "WF", ar(4 * t), "0" if t == 0 else vr(A1, 16))))
    def pre(t):
        if t % 8: return
        u = t // 8
        if u == 0: s.wait(lg="all")
        if u == 5: s.wait(lg="kbw")
        s.e("s_barrier")
        if u == 0: s.stamp(3)
    def post(t):
        if t in (33, 34):
            a = t - 33
            for q in range(4): s.e(f"v_cvt_pk_bf16_f32 v{96+4*a+q}, v{A0+8*a+2*q}, v{A0+8*a+2*q+1}")
            s.lds(f"ds_write_b128 v28, {vr(96+4*a)} offset:{a*1024}", "kbw")
    gemm(steps, pre, post)
    s.e(f"""
v_lshl_add_u32 v16, v8, 2, v9
v_lshlrev_b32 v30, 6, v16
v_lshl_add_u32 v30, v11, 5, v30
v_lshl_add_u32 v30, v10, 3, v30
s_lshl_b32 {sT0}, {sHW}, 11
v_add_u32 v30, {sT0}, v30
s_nop 5
""")
    for a in range(2):
        for q in range(4): s.e(f"v_cvt_pk_bf16_f32 v{104+4*a+q}, v{A1+8*a+2*q}, v{A1+8*a+2*q+1}")
        s.lds(f"ds_write_b128 v29, {vr(104+4*a)} offset:{a*2048}")
    s.wait(lg="all"); s.stamp(4); s.e("s_barrier")
    s.stamp(5)
    PHT = 96
    for tt in range(2):
        for th in range(2):
            for rd in range(2):
                s.lds(f"ds_read_b64_tr_b16 {vr(PHT+8*tt+4*th+2*rd,2)}, v30 offset:{L_OACC + tt*8192 + th*1024 + rd*512}")
    def dma_group(srd, voff, rowbytes, coloff_s, colimm, region, tag, natural):
        for c in range(8):
            s.e(f"s_mul_i32 {sT0}, {KC[c]}, {64*rowbytes}\ns_add_u32 {sT0}, {sT0}, {coloff_s}")
            if colimm: s.e(f"s_add_u32 {sT0}, {sT0}, {colimm}")
            if natural: s.e(f"s_lshl_b32 {sT1}, {KC[c]}, 13\ns_add_u32 {sT1}, {sT1}, {sW1K}\ns_add_u32 m0, {sT1}, {region}")
            else: s.e(f"s_add_u32 m0, {sW1K}, {region + c*8192}")
            s.e("s_nop 0")
            s.vmem(f"buffer_load_dwordx4 v{voff}, {srd}, {sT0} offen lds", tag)
            s.e(f"s_sub_u32 m0, m0, 4096\ns_nop 0")
            s.vmem(f"buffer_load_dwordx4 v{voff+8}, {srd}, {sT0} offen lds", tag)
    s.e(f"v_subrev_u32 v12, {32*1024}, v4\nv_subrev_u32 v13, {32*3072}, v5")
    dma_group(SWB, 5, 3072, "s77", 2048, L_R1, "VB", False)
    dma_group(SWB, 5, 3072, "s77", 0, L_R0, "QB", False)
    nsb = [0]
    def softbar(sleep=1):
        nsb[0] += 1
        top, done = lbl("sb"), lbl("sbd")
        s.e(f"s_mov_b64 exec, 1\nds_add_u32 v{vCNT}, v{vONE}\ns_mov_b64 exec, -1")
        s.e(f"{top}:\nds_read_b32 v16, v{vCNT}\ns_waitcnt lgkmcnt(0)\nv_readfirstlane_b32 {sT0}, v16\ns_cmp_ge_u32 {sT0}, {4*nsb[0]}\ns_cbranch_scc1 {done}")
        spin_tail(s, top, done, sleep)
        s.lg = []
    def poll(vaddr, srd, soff, val, sleep=2, imm=0):
        top, done = lbl("pl"), lbl("pld")
        o = f" offset:{imm}" if imm else ""
        s.e(f"{top}:\nbuffer_load_dword v16, v{vaddr}, {srd}, {soff} offen{o} sc1\ns_waitcnt vmcnt(0)\nv_cmp_ne_u32 vcc, {val}, v16\ns_cbranch_vccz {done}")
        spin_tail(s, top, done, sleep)
        s.vm = []
    sFL = "s79"
    def setflag(k):
        s.e(f"s_mov_b64 exec, 1")
        s.vmem(f"buffer_store_dword v{vONE}, v26, {SWS}, {sFL} offen offset:{4*k} sc1")
        s.e("s_mov_b64 exec, -1")
    sJ, sOT = "s80", "s81"
    def fin(hw, j):
        skip = lbl("nf")
        s.e(f"s_cmp_eq_u32 {sHW}, {hw}\ns_cbranch_scc0 {skip}\ns_mov_b32 {sJ}, {j}\ns_call_b64 s[92:93], L_fin\n{skip}:")
    s.e(f"""
s_lshl3_add_u32 {sFL}, {sTB}, {sHG}
s_lshl2_add_u32 {sFL}, {sFL}, {sHW}
s_lshl_b32 {sFL}, {sFL}, 7
s_add_u32 {sFL}, {sFL}, {WS_FL}
s_lshl_b32 {sOT}, {sHG}, 12
s_add_u32 {sOT}, {sOT}, s76
s_add_u32 {sOT}, {sOT}, {WS_OA}
""")
    s.wait(vm="VB", lg="all")
    s.stamp(6)
    softbar()
    s.e(f"""
s_cmp_ge_u32 {sHW}, 2
s_cbranch_scc1 L_clr
s_mul_i32 {sT0}, {sHW}, 9216
v_add_u32 v16, {sT0}, v{vL4}
v_mov_b32 v17, -1.0
ds_write2st64_b32 v16, v17, v17 offset0:8 offset1:17
ds_write2st64_b32 v16, v17, v17 offset0:26 offset1:35
s_branch L_clrd
L_clr:
v_mov_b32 v32, -1
v_mov_b32 v33, -1
v_mov_b32 v34, -1
v_mov_b32 v35, -1
s_lshl_b32 {sT0}, {sTT}, 15
s_add_u32 {sT0}, {sT0}, {sOT}
buffer_store_dwordx4 v[32:35], v1, {SWS}, {sT0} offen offset:3072 sc1
s_nop 0
L_clrd:
s_setprio 0
""")
    gemm([(vW1, t * 2048, 512, mfma(vr(A0, 16), ar(4 * t), "WF", "0" if t == 0 else vr(A0, 16))) for t in range(32)])
    s.e(f"""
s_setprio 2
s_lshl1_add_u32 {sT0}, {sTT}, {sP}
s_lshl_b32 {sT0}, {sT0}, 11
s_add_u32 {sT0}, {sT0}, {L_R1}
v_add_u32 v28, {sT0}, v1
v_lshl_add_u32 v29, v8, 5, v6
s_and_b32 {sT0}, {sHW}, 1
s_lshl_b32 {sT0}, {sT0}, 8
s_lshr_b32 {sT1}, {sHW}, 1
s_lshl_b32 {sT1}, {sT1}, 11
s_add_u32 {sT0}, {sT0}, {sT1}
s_add_u32 {sT0}, {sT0}, {L_R1}
v_lshlrev_b32 v29, 4, v29
v_add_u32 v29, {sT0}, v29
""")
    for q in range(8): s.e(f"v_cvt_pk_bf16_f32 v{112+q}, v{A0+2*q}, v{A0+2*q+1}")
    s.wait(vm="all", lg="all")
    s.stamp(7)
    softbar()
    s.lds(f"ds_write_b128 v28, v[112:115]"); s.lds(f"ds_write_b128 v28, v[116:119] offset:1024")
    for f in range(4): s.lds(f"ds_read_b128 {vr(32+4*f)}, v{vCNT} offset:16")
    s.wait(lg="all")
    softbar()
    s.e("s_mov_b32 s82, 0xffff\ns_mov_b32 s83, 0xffff\ns_mov_b64 exec, s[82:83]")
    for tt in range(2):
        for th in range(2):
            s.lds(f"ds_read_b128 {vr(32+8*tt+4*th)}, v29 offset:{tt*4096 + th*1024}")
    s.e(f"""
s_mov_b64 exec, -1
s_lshl_b32 {sT0}, {sHW}, 12
s_add_u32 {sT0}, {sT0}, {L_R1 + 8192}
v_lshlrev_b32 v28, 7, v6
v_lshl_add_u32 v28, v8, 6, v28
v_add_u32 v28, {sT0}, v28
v_add_u32 v29, {sT0}, v1
v_lshrrev_b32 v16, 3, v2
v_and_b32 v17, 7, v2
v_lshlrev_b32 v16, 12, v16
v_lshl_add_u32 v30, v17, 4, v16
s_lshl2_add_u32 s84, {sHG}, {sHW}
s_mul_i32 s85, s84, {17*4096}
s_add_u32 s85, s85, {WS_KVP}
s_lshl_b32 {sT1}, {sTB}, 7
s_add_u32 {sT1}, {sT1}, s85
""")
    s.wait(lg="all")
    for f in range(4): s.e(mfma(vr(A1, 16), vr(PHT + 4 * f), vr(32 + 4 * f), "0" if f == 0 else vr(A1, 16)))
    s.e("s_nop 11")
    for q in range(4): s.lds(f"ds_write_b128 v28, {vr(A1+4*q)} offset:{16*q}")
    for t in range(3): s.lds(f"ds_read_b128 {vr(32+4*t)}, v29 offset:{1024*t}")
    s.e("v_and_b32 v17, 32, v2\nv_lshlrev_b32 v17, 2, v17")
    poll(17, SDBG, "0", 64)
    s.wait(lg="all")
    s.vmem(f"buffer_store_dwordx4 v[32:35], v30, {SWS}, {sT1} offen sc1")
    s.e(f"s_add_u32 {sT1}, {sT1}, 32768")
    s.vmem(f"buffer_store_dwordx4 v[36:39], v30, {SWS}, {sT1} offen sc1")
    s.e(f"s_add_u32 {sT1}, {sT1}, 32768\ns_mov_b64 exec, 0xff")
    s.vmem(f"buffer_store_dwordx4 v[40:43], v30, {SWS}, {sT1} offen sc1")
    s.e("s_mov_b64 exec, -1\ns_nop 0")
    s.stamp(8)
    fin(0, 0)
    s.e("s_setprio 0")
    def post2(t):
        if t == 15:
            s.wait(vm="all"); setflag(0)
    gemm([(vW0, t * 2048, 512, mfma(vr(A0, 16), "WF", ar(4 * t), "0" if t == 0 else vr(A0, 16))) for t in range(32)], None, post2)
    s.e("s_setprio 2")
    wphi_frags(s, 48, False, 28, 29)
    for q in range(8): s.e(f"v_cvt_pk_bf16_f32 v{56+q}, v{A0+2*q}, v{A0+2*q+1}")
    T0, T1 = 96, 112
    s.e("s_nop 0")
    s.e(mfma(vr(T0, 16), "v[48:51]", "v[56:59]", 0))
    s.e(mfma(vr(T1, 16), "v[52:55]", "v[60:63]", 0))
    s.stamp(9)
    s.e(f"""
s_cmp_gt_u32 {sTB}, 16
s_cbranch_scc1 L_noA
v_lshlrev_b32 v17, 12, v6
s_lshl_b32 {sT1}, s84, 7
s_add_u32 {sT1}, {sT1}, {WS_FL}
""")
    poll(17, SWS, sT1, 1)
    s.e(f"s_lshl_b32 {sT1}, {sTB}, 12\ns_add_u32 {sT1}, {sT1}, s85")
    for t in range(4): s.vmem(f"buffer_load_dwordx4 {vr(32+4*t)}, v1, {SWS}, {sT1} offen offset:{1024*t} sc1")
    s.e(f"""
v_lshl_add_u32 v16, v11, 1, v8
v_lshl_add_u32 v16, v10, 3, v16
v_bfe_u32 v17, v2, 2, 1
v_lshl_add_u32 v16, v17, 2, v16
v_lshlrev_b32 v16, 1, v16
s_mul_i32 {sT1}, s84, 17
s_add_u32 {sT1}, {sT1}, {sTB}
s_lshl_b32 {sT1}, {sT1}, 7
s_add_u32 {sT1}, {sT1}, {WS_KVF}
s_waitcnt vmcnt(0)
v_pk_add_f32 v[32:33], v[32:33], v[36:37]
v_pk_add_f32 v[34:35], v[34:35], v[38:39]
v_pk_add_f32 v[40:41], v[40:41], v[44:45]
v_pk_add_f32 v[42:43], v[42:43], v[46:47]
v_pk_add_f32 v[32:33], v[32:33], v[40:41]
v_pk_add_f32 v[34:35], v[34:35], v[42:43]
s_nop 1
v_permlane32_swap_b32 v32, v33
v_permlane32_swap_b32 v34, v35
v_add_f32 v32, v32, v33
v_add_f32 v34, v34, v35
s_nop 1
v_permlane16_swap_b32 v32, v34
v_add_f32 v32, v32, v34
s_nop 1
v_add_f32_dpp v32, v32, v32 row_ror:8 row_mask:0xf bank_mask:0xf
v_cvt_pk_bf16_f32 v32, v32, v32
buffer_store_short v32, v16, {SWS}, {sT1} offen sc1
s_waitcnt vmcnt(0)
""")
    s.vm = []
    setflag(1)
    s.e("L_noA:")
    s.vm = []
    s.stamp(10)
    softbar()
    dma_group(SOB, 4, 1024, "s77", 0, L_R1, "WO", True)
    dma_group(SOA, 4, 1024, "s77", 0, L_R0, "WO", True)
    s.e("\n".join(softmax_max_exp(s, [T0, T1], 32)))
    s.stamp(11)
    fin(1, 1)
    fin(2, 2)
    s.e(f"""
v_min_u32 v16, 16, v6
v_lshlrev_b32 v17, 12, v16
v_lshl_add_u32 v17, v8, 7, v17
v_lshlrev_b32 v28, 7, v16
v_lshl_add_u32 v28, v8, 4, v28
s_lshl1_add_u32 s86, {sHG}, {sP}
s_lshl_b32 {sT1}, s86, 8
s_add_u32 {sT1}, {sT1}, {WS_FL}
""")
    for f in range(4): s.lds(f"ds_read_b128 {vr(32+4*f)}, v{vCNT} offset:16")
    poll(17, SWS, sT1, 1, imm=4)
    s.stamp(12)
    s.e(f"""
s_mul_i32 {sT1}, s86, {2*17*128}
s_add_u32 {sT1}, {sT1}, {WS_KVF}
s_mov_b32 s82, 0x5555ffff
s_mov_b32 s83, 0x5555ffff
""")
    s.wait(lg="all")
    s.e("s_mov_b64 exec, s[82:83]")
    for a in range(2):
        for sg in range(2):
            s.vmem(f"buffer_load_dwordx4 {vr(32+8*a+4*sg)}, v28, {SWS}, {sT1} offen offset:{a*17*128 + sg*32} sc1")
    s.e(f"""
s_mov_b64 exec, -1
s_lshl_b32 {sT1}, {sTT}, 15
s_add_u32 {sT1}, {sT1}, {sOT}
s_lshl_b32 {sT2}, {sP}, 11
s_add_u32 {sT1}, {sT1}, {sT2}
s_add_u32 {sT1}, {sT1}, {WS_OB - WS_OA}
s_mov_b32 {sT2}, {fbits(1e-6)}
""")
    for a in range(2):
        T = (T0, T1)[a]
        for D in (A0, A1): s.e(f"v_mfma_f32_32x32x8_bf16 {vr(D,16)}, v[26:27], v[26:27], 0")
        if a == 0: s.wait(vm="all")
        s.e("s_nop 9")
        s.e(f"v_smfmac_f32_32x32x32_bf16 {vr(A0,16)}, {vr(32+8*a)}, {vr(T,8)}, v{vIDX}")
        s.e(f"v_smfmac_f32_32x32x32_bf16 {vr(A1,16)}, {vr(36+8*a)}, {vr(T+8,8)}, v{vIDX}")
        s.e(f"""
s_nop 11
v_rcp_f32 v56, v{A0+9}
v_rcp_f32 v57, v{A1+9}
v_fma_f32 v58, v{A0+8}, v56, {sT2}
v_fmac_f32 v58, v{A1+8}, v57
v_rcp_f32 v58, v58
s_nop 0
v_pk_mul_f32 v[56:57], v[56:57], v[58:59] op_sel_hi:[1,0]
""")
        for q in range(4): s.e(f"v_pk_mul_f32 {vr(A0+2*q,2)}, {vr(A0+2*q,2)}, v[56:57] op_sel_hi:[1,0]")
        for q in range(4): s.e(f"v_pk_fma_f32 {vr(A0+2*q,2)}, {vr(A1+2*q,2)}, v[56:57], {vr(A0+2*q,2)} op_sel:[0,1,0] op_sel_hi:[1,1,1]")
        for q in range(4): s.e(f"v_cvt_pk_bf16_f32 v{48+4*a+q}, v{A0+2*q}, v{A0+2*q+1}")
        s.vmem(f"buffer_store_dwordx4 {vr(48+4*a)}, v1, {SWS}, {sT1} offen offset:{a*1024} sc1")
    s.wait(vm="all")
    setflag(2)
    s.stamp(13)
    softbar()
    fin(3, 3)
    fin(0, 4)
    skip = lbl("ae")
    s.e(f"s_cmp_eq_u32 {sHW}, 1\ns_cbranch_scc1 {skip}\ns_waitcnt vmcnt(0)")
    setflag(3)
    s.e(f"{skip}:")
    vP0, vP1, vGF = 18, 19, 28
    s.e(f"""
v_lshl_add_u32 v16, v8, 2, v9
v_lshlrev_b32 v16, 7, v16
v_lshrrev_b32 v17, 1, v9
v_xor_b32 v17, {sP}, v17
v_lshl_add_u32 v16, v17, 6, v16
v_and_b32 v17, 1, v10
v_lshl_add_u32 v16, v17, 5, v16
v_lshl_add_u32 v16, v11, 4, v16
v_lshrrev_b32 v17, 1, v10
v_lshl_add_u32 v16, v17, 3, v16
v_add_u32 v{vP0}, {L_R0}, v16
v_add_u32 v{vP1}, {L_R1}, v16
v_and_b32 v{vGF}, 15, v2
v_lshlrev_b32 v{vGF}, 8, v{vGF}
s_lshl_b32 s87, {sTB}, 12
s_lshl_b32 {sT0}, {sTT}, 7
s_add_u32 s87, s87, {sT0}
s_add_u32 s87, s87, {WS_FL}
s_lshl_b32 s88, {sTT}, 15
s_add_u32 s88, s88, s76
s_add_u32 s88, s88, {WS_OA}
""")
    poll(vGF, SWS, "s87", 1, imm=8)
    s.stamp(14)
    BA, AA = 96, 112
    s.e(f"s_add_u32 {sT1}, s88, {WS_OB - WS_OA}\ns_lshl1_add_u32 {sT2}, {sTB}, {sTT}\ns_lshl_b32 {sT2}, {sT2}, 7\ns_add_u32 {sT2}, {sT2}, {WS_G}")
    s.vmem(f"buffer_load_dword v30, v{vLrow}, {SWS}, {sT2} offen sc1", "g")
    for t in range(32):
        if t and t % 4 == 0: s.e(f"s_add_u32 {sT1}, {sT1}, 4096")
        s.vmem(f"buffer_load_dwordx4 {ar(4*t)}, v1, {SWS}, {sT1} offen offset:{(t & 3)*1024} sc1", f"ob{t}")
    s.wait(vm="all")
    s.e("s_setprio 0")
    gemm([(vP1, t * 2048, 1024, mfma(vr(BA, 16), "WF", ar(4 * t), "0" if t == 0 else vr(BA, 16))) for t in range(32)])
    s.e("s_setprio 2")
    s.stamp(15)
    skip = lbl("ae")
    s.e(f"s_cmp_eq_u32 {sHW}, 1\ns_cbranch_scc0 {skip}\ns_mov_b32 {sJ}, 5\ns_call_b64 s[92:93], L_fin\ns_waitcnt vmcnt(0)")
    setflag(3)
    s.e(f"{skip}:")
    poll(vGF, SWS, "s87", 1, imm=12)
    s.stamp(16)
    early = [t for t in range(32) if t & 3 != 3]
    s.e(f"s_mov_b32 {sT1}, s88")
    for i, t in enumerate(early):
        if t and t % 4 == 0: s.e(f"s_add_u32 {sT1}, {sT1}, 4096")
        s.vmem(f"buffer_load_dwordx4 {ar(4*i)}, v1, {SWS}, {sT1} offen offset:{(t & 3)*1024} sc1")
    for i in range(8):
        for rd in range(2):
            s.lds(f"ds_read_b64_tr_b16 {ar(96+4*i+2*rd,2)}, v{vP0} offset:{(4*i+3)*2048 + rd*1024}")
    s.e(f"v_sub_f32 v16, 1.0, v30")
    for q in range(8): s.e(f"v_pk_mul_f32 {vr(BA+2*q,2)}, {vr(BA+2*q,2)}, v[16:17] op_sel_hi:[1,0]")
    s.wait(vm="all", lg="all")
    fin(2, 6)
    fin(3, 7)
    softbar(3)
    s.stamp(17)
    gemm([(vP0, t * 2048, 1024, mfma(vr(AA, 16), "WF", ar(4 * i), "0" if i == 0 else vr(AA, 16))) for i, t in enumerate(early)])
    s.stamp(18)
    top, done = lbl("lt"), lbl("ltd")
    s.e(f"""
v_lshlrev_b32 v17, 10, v6
v_lshl_add_u32 v17, v8, 5, v17
s_lshl_b32 {sT2}, {sTT}, 15
s_add_u32 {sT2}, {sT2}, s76
s_add_u32 {sT2}, {sT2}, s77
s_lshl_b32 {sT3}, {sP}, 6
s_add_u32 {sT2}, {sT2}, {sT3}
{top}:
s_mov_b32 {sT1}, s88
""")
    for i in range(8):
        if i: s.e(f"s_add_u32 {sT1}, {sT1}, 4096")
        s.e(f"buffer_load_dwordx4 {vr(64+4*i)}, v1, {SWS}, {sT1} offen offset:3072 sc1")
    for i in range(8):
        s.e(f"s_waitcnt vmcnt({7-i})")
        if i == 0: s.e("v_max3_u32 v16, v64, v65, v66\nv_max_u32 v16, v16, v67")
        else: s.e(f"v_max3_u32 v16, v16, v{64+4*i}, v{65+4*i}\nv_max3_u32 v16, v16, v{66+4*i}, v{67+4*i}")
    s.e(f"v_cmp_eq_u32 vcc, -1, v16\ns_cbranch_vccz {done}")
    spin_tail(s, top, done, 0)
    s.stamp(19)
    for i in range(8): s.e(mfma(vr(AA, 16), ar(96 + 4 * i), vr(64 + 4 * i), vr(AA, 16)))
    s.e("s_nop 11")
    for q in range(8): s.e(f"v_pk_fma_f32 {vr(AA+2*q,2)}, {vr(AA+2*q,2)}, v[30:31], {vr(BA+2*q,2)} op_sel_hi:[1,0,1]")
    for q in range(8): s.e(f"v_cvt_pk_bf16_f32 v{32+q}, v{AA+2*q}, v{AA+2*q+1}")
    s.e(f"buffer_store_dwordx4 v[32:35], v17, {SOUT}, {sT2} offen\nbuffer_store_dwordx4 v[36:39], v17, {SOUT}, {sT2} offen offset:16")
    if STAMP:
        s.e("s_waitcnt vmcnt(0)"); s.stamp(20); write_stamps(s)
    s.e("L_exit:\ns_endpgm")
    top, done = lbl("fp"), lbl("fpd")
    s.e(f"""
L_fin:
s_and_b32 {sT0}, {sJ}, 1
s_mul_i32 {sT1}, {sT0}, 9216
v_add_u32 v14, {sT1}, v{vL4}
v_add_u32 v15, {sT1}, v{vLrow}
s_lshl_b32 {sT0}, {sT0}, 15
s_lshr_b32 {sT1}, {sJ}, 1
s_lshl_b32 {sT1}, {sT1}, 10
s_add_u32 {sT0}, {sT0}, {sT1}
s_add_u32 s89, {sT0}, {sOT}
{top}:
ds_read2st64_b32 v[64:65], v15 offset0:8 offset1:17
ds_read2st64_b32 v[66:67], v15 offset0:26 offset1:35
s_waitcnt lgkmcnt(0)
v_min3_f32 v16, v64, v65, v66
v_min_f32 v16, v16, v67
v_cmp_eq_f32 vcc, -1.0, v16
s_cbranch_vccz {done}
""")
    spin_tail(s, top, done, 2)
    for cw in range(4):
        for q in range(4):
            s.e(f"ds_read2st64_b32 {vr(32+8*cw+2*q,2)}, v14 offset0:{9*cw+2*q} offset1:{9*cw+2*q+1}")
    s.e(f"""
v_pk_add_f32 v[64:65], v[64:65], v[66:67]
v_mov_b32 v17, -1.0
v_add_f32 v64, v64, v65
s_mov_b32 {sT0}, {fbits(2.0**-60)}
s_mov_b32 {sT1}, {fbits(2.0**64)}
v_cmp_nge_f32 s[82:83], v64, {sT0}
v_cmp_nle_f32 s[90:91], v64, {sT1}
s_waitcnt lgkmcnt(0)
ds_write2st64_b32 v14, v17, v17 offset0:8 offset1:17
ds_write2st64_b32 v14, v17, v17 offset0:26 offset1:35
""")
    for q in range(4): s.e(f"v_pk_add_f32 {vr(32+2*q,2)}, {vr(32+2*q,2)}, {vr(40+2*q,2)}")
    for q in range(4): s.e(f"v_pk_add_f32 {vr(48+2*q,2)}, {vr(48+2*q,2)}, {vr(56+2*q,2)}")
    for q in range(4): s.e(f"v_pk_add_f32 {vr(32+2*q,2)}, {vr(32+2*q,2)}, {vr(48+2*q,2)}")
    s.e(f"""
v_pk_mul_f32 v[40:41], v[32:33], v[26:27]
v_pk_fma_f32 v[40:41], v[34:35], v[26:27], v[40:41]
v_pk_fma_f32 v[40:41], v[36:37], v[26:27], v[40:41]
v_pk_fma_f32 v[40:41], v[38:39], v[26:27], v[40:41]
s_or_b64 s[82:83], s[82:83], s[90:91]
v_cmp_u_f32 vcc, v40, v41
s_or_b64 vcc, vcc, s[82:83]
""")
    s.e("s_branch L_fb" if FORCE_FB else "s_cbranch_vccnz L_fb")
    s.e("L_fnorm:\nv_rcp_f32 v64, v64\ns_nop 0")
    for q in range(4): s.e(f"v_pk_mul_f32 {vr(32+2*q,2)}, {vr(32+2*q,2)}, v[64:65] op_sel_hi:[1,0]")
    for q in range(4): s.e(f"v_cvt_pk_bf16_f32 v{40+q}, v{32+2*q}, v{33+2*q}")
    for q in range(4): s.e(f"v_min_u32 v{40+q}, -2, v{40+q}")
    s.e(f"buffer_store_dwordx4 v[40:43], v1, {SWS}, s89 offen sc1\ns_waitcnt lgkmcnt(0)\ns_nop 0\ns_setpc_b64 s[92:93]")
    O, Sx = 32, 48
    s.e(f"""
L_fb:
s_lshl_b32 {sT0}, {sJ}, 10
s_add_u32 {sT0}, {sT0}, {L_Q}
v_add_u32 v16, {sT0}, v1
ds_read_b128 v[68:71], v16
v_and_b32 v16, 15, v6
v_lshl_add_u32 v16, v8, 4, v16
v_lshlrev_b32 v16, 4, v16
v_mov_b32 v17, 0x80000000
v_cmp_gt_u32 vcc, 16, v6
v_mov_b32 v66, 0x400
v_mov_b32 v67, 0x200
v_cndmask_b32 v16, v17, v16, vcc
v_cmp_eq_u32 vcc, 16, v6
v_mov_b32 v64, 0xff800000
s_mov_b32 {sT0}, 0
v_cndmask_b32 v66, v16, v66, vcc
v_cndmask_b32 v67, v16, v67, vcc
L_fb1:
buffer_load_dwordx4 v[72:75], v1, {SWS}, {sT0} offen sc1
s_waitcnt vmcnt(0) lgkmcnt(0)
{mfma(vr(Sx,16), "v[72:75]", "v[68:71]", 0)}
s_nop 11
""")
    for q in range(8): s.e(f"v_max3_f32 v64, v64, v{Sx+2*q}, v{Sx+2*q+1}")
    s.e(f"""
s_add_u32 {sT0}, {sT0}, {KVREC}
s_cmp_lt_u32 {sT0}, {64*KVREC}
s_cbranch_scc1 L_fb1
v_mov_b32 v65, v64
s_nop 1
v_permlane32_swap_b32 v64, v65
v_max_f32 v64, v64, v65
v_mfma_f32_32x32x8_bf16 {vr(O,16)}, v[26:27], v[26:27], 0
s_mov_b32 {sT0}, 0
L_fb2:
buffer_load_dwordx4 v[72:75], v1, {SWS}, {sT0} offen sc1
buffer_load_dwordx4 v[76:79], v66, {SWS}, {sT0} offen offset:1024 sc1
buffer_load_dwordx4 v[80:83], v67, {SWS}, {sT0} offen offset:1536 sc1
s_waitcnt vmcnt(0)
{mfma(vr(Sx,16), "v[72:75]", "v[68:71]", 0)}
s_nop 11
""")
    for q in range(16): s.e(f"v_sub_f32 v{Sx+q}, v{Sx+q}, v64")
    for q in range(16): s.e(f"v_exp_f32 v{Sx+q}, v{Sx+q}")
    s.e(f"""
s_nop 1
v_smfmac_f32_32x32x32_bf16 {vr(O,16)}, v[76:79], {vr(Sx,8)}, v{vIDX}
v_smfmac_f32_32x32x32_bf16 {vr(O,16)}, v[80:83], {vr(Sx+8,8)}, v{vIDX}
s_add_u32 {sT0}, {sT0}, {KVREC}
s_cmp_lt_u32 {sT0}, {64*KVREC}
s_cbranch_scc1 L_fb2
s_nop 11
v_mov_b32 v64, v{O+8}
v_mov_b32 v65, v{O+8}
s_nop 1
v_permlane32_swap_b32 v64, v65
s_branch L_fnorm
""")
    return s

def build():
    p = prologue()
    c = p.fork(); h = p.fork()
    c_path(c); h_path(h)
    hdr = open(os.path.join(os.path.dirname(__file__), "..", "cdna_kernels", NAME + ".s.ref")).read().split("\n")
    top = [l for l in hdr if l.startswith(";") and "@launch" not in l and "Override" not in l and "grid=ceil" not in l]
    out = top + [f"; @launch grid=(256,1,1) block=(512,1,1) lds={LDS_BYTES}",
        '.amdgcn_target "amdgcn-amd-amdhsa--gfx950"', ".text", f".globl {NAME}_kernel", ".p2align 8",
        f".type {NAME}_kernel,@function", f"{NAME}_kernel:", p.text(), c.text(), h.text(),
        '.section .rodata,"a"', ".p2align 6", f".amdhsa_kernel {NAME}_kernel",
        "  .amdhsa_next_free_vgpr 256", "  .amdhsa_next_free_sgpr 102", "  .amdhsa_accum_offset 128",
        "  .amdhsa_group_segment_fixed_size 0", "  .amdhsa_kernarg_size 104", "  .amdhsa_user_sgpr_count 2",
        "  .amdhsa_user_sgpr_kernarg_segment_ptr 1", "  .amdhsa_system_sgpr_workgroup_id_x 1",
        "  .amdhsa_float_denorm_mode_32 3",
        ".end_amdhsa_kernel", ""]
    return "\n".join(out)

if __name__ == "__main__":
    txt = build()
    dst = sys.argv[1] if len(sys.argv) > 1 else os.path.join(os.path.dirname(__file__), "..", "cdna_kernels", NAME + ".s")
    open(dst, "w").write(txt)
    sys.path.insert(0, os.path.dirname(__file__))
    import hazcheck
    print("hazards:", hazcheck.check(txt), " lines:", txt.count("\n"))
```

```python
import sys, os, math
NAME = "gated_mix__grouped_kv_mqa__linear_kernel_hedgehog__prompt"
STAMP = int(os.environ.get("STAMP", "0"))
FORCE_FB = int(os.environ.get("FORCE_FB", "0"))

KVREC = 2176
WS_KV = 0
WS_G = 0x24000
WS_FL = 0x40000
WS_KVF = 0x60000
WS_ST = 0x80000
WS_KVP = 0x100000
WS_OA = 0x400000
WS_OB = 0x600000
WS_SIZE = 0x800000
L_OACC = 0
L_Q = 18432
L_GATE = 26624
L_WPHI = 27648
L_CNT = 29696
L_ONES = 29712
L_R0 = 32768
L_R1 = 98304
LDS_BYTES = 163840
SX, SWB, SWQ, SJ, SWS, SG, SPH, SOA, SOB, SOUT, SDBG = (f"s[{i}:{i+3}]" for i in range(8, 52, 4))
sW, sTB, sHG, sR, sROLE, sTT, sP, sW1K = "s52", "s53", "s54", "s55", "s56", "s57", "s58", "s59"
KC = [f"s{60+i}" for i in range(8)]
sBUD = "s68"
sT0, sT1, sT2, sT3 = "s69", "s70", "s71", "s72"
sLOG = "s[74:75]"
LOG2E = 0x3fb8aa3b
KSCALE = 0.25 * math.log2(math.e)
import struct
def fbits(x): return struct.unpack("<I", struct.pack("<f", x))[0]

STAMPS = {}
class S:
    def __init__(self):
        self.L = []; self.vm = []; self.lg = []; self.nst = 0
    def e(self, s):
        for l in s.strip("\n").split("\n"): self.L.append("    " + l.strip() if not l.strip().endswith(":") else l.strip())
    def vmem(self, s, tag=None): self.e(s); self.vm.append(tag)
    def lds(self, s, tag=None): self.e(s); self.lg.append(tag)
    def _cnt(self, q, tag, mx):
        idx = [i for i, t in enumerate(q) if t == tag]
        if not idx: return None
        n = len(q) - 1 - idx[-1]
        del q[: idx[-1] + 1]
        return min(n, mx)
    def wait(self, vm=None, lg=None):
        parts = []
        if vm == "all": parts.append("vmcnt(0)"); self.vm = []
        elif vm is not None:
            n = self._cnt(self.vm, vm, 63)
            if n is not None: parts.append(f"vmcnt({n})")
        if lg == "all": parts.append("lgkmcnt(0)"); self.lg = []
        elif lg is not None:
            n = self._cnt(self.lg, lg, 15)
            if n is not None: parts.append(f"lgkmcnt({n})")
        if parts: self.e("s_waitcnt " + " ".join(parts))
    def fork(self):
        o = S(); o.vm = list(self.vm); o.lg = list(self.lg); o.nst = self.nst; return o
    def stamp(self, name):
        if STAMP:
            names = STAMPS.setdefault(self.stv, [])
            if name not in names: names.append(name)
            k = 2 + names.index(name)
            self.e(f"s_memtime s[98:99]\ns_waitcnt lgkmcnt(0)\nv_writelane_b32 {self.stv}, s98, {k}")
            self.lg = []
    def text(self): return "\n".join(self.L)

_lbl = [0]
def lbl(p):
    _lbl[0] += 1
    return f"L_{p}{_lbl[0]}"

def vr(a, n=4): return f"v[{a}:{a+n-1}]"
def ar(a, n=4): return f"a[{a}:{a+n-1}]"
def mfma(d, a, b, c): return f"v_mfma_f32_32x32x16_bf16 {d}, {a}, {b}, {c}"

def spin_tail(s, top, done, sleep):
    s.e(f"s_sub_u32 {sBUD}, {sBUD}, 1\ns_cbranch_scc1 {done}_x")
    if sleep: s.e(f"s_sleep {sleep}")
    s.e(f"s_branch {top}\n{done}_x:\ns_mov_b32 {sBUD}, 0\n{done}:")

def prologue():
    s = S()
    s.e(f"""
s_load_dwordx2 s[8:9], s[0:1], 0
s_load_dwordx2 s[12:13], s[0:1], 48
s_load_dwordx2 s[16:17], s[0:1], 8
s_load_dwordx4 s[4:7], s[0:1], 16
s_load_dwordx2 s[24:25], s[0:1], 96
s_load_dwordx2 s[28:29], s[0:1], 72
s_load_dwordx2 s[32:33], s[0:1], 56
s_cmp_ge_u32 s2, 0x100
s_cbranch_scc1 L_exit
""")
    if STAMP: s.e("s_memrealtime s[94:95]\ns_memtime s[96:97]")
    s.e(f"""
v_lshrrev_b32 v1, 6, v0
s_mov_b32 s10, 0x200000
s_mov_b32 s11, 0x20000
v_readfirstlane_b32 {sW}, v1
v_lshrrev_b32 v1, 3, v0
v_and_b32 v2, 7, v0
v_bfe_u32 v3, v0, 4, 3
v_xor_b32 v3, v3, v2
v_lshlrev_b32 v4, 10, v1
v_lshl_add_u32 v3, v3, 4, v4
s_bfe_u32 {sT0}, s2, 0x20003
s_lshr_b32 {sT1}, s2, 5
s_lshl1_add_u32 {sR}, {sT0}, {sT1}
s_and_b32 {sR}, {sR}, 7
s_bfe_u32 {sT2}, s2, 0x20001
s_lshl3_add_u32 {sTB}, {sT2}, {sT1}
s_and_b32 {sT2}, s2, 1
s_lshl2_add_u32 {sHG}, {sT2}, {sT0}
s_add_u32 {sT2}, {sT2}, 1
s_cmp_eq_u32 {sT0}, 0
s_cselect_b32 {sROLE}, {sT2}, 0
s_lshl_b32 {sW1K}, {sW}, 10
s_lshl_b32 s76, {sTB}, 16
""")
    for c in range(8):
        if c == 0: s.e(f"s_mov_b32 {KC[0]}, {sR}")
        else: s.e(f"s_add_u32 {KC[c]}, {sR}, {c}\ns_and_b32 {KC[c]}, {KC[c]}, 7")
    s.e(f"""
v_lshrrev_b32 v5, 2, v0
v_and_b32 v5, 4, v5
v_xor_b32 v5, v5, v2
v_lshl_add_u32 v4, v5, 4, v4
v_mul_u32_u24 v6, 3072, v1
v_lshl_add_u32 v5, v5, 4, v6
v_and_b32 v2, 63, v0
v_lshlrev_b32 v1, 4, v2
s_mov_b32 s14, 0x180000
s_mov_b32 s15, 0x20000
s_mov_b32 s18, 0x80000
s_mov_b32 s19, 0x20000
s_mov_b32 s22, 0x4000
s_mov_b32 s23, 0x20000
s_mov_b32 s26, {WS_SIZE}
s_mov_b32 s27, 0x20000
s_mov_b32 s30, 0x400
s_mov_b32 s31, 0x20000
s_mov_b32 s34, 0x4000
s_mov_b32 s35, 0x20000
s_lshl_b32 s77, {sHG}, 7
s_waitcnt lgkmcnt(0)
""")
    def dma_x(c):
        s.e(f"s_lshl_b32 {sT0}, {KC[c]}, 7\ns_add_u32 m0, {sW1K}, {L_R0 + c*8192}\ns_add_u32 {sT0}, {sT0}, s76")
        s.vmem(f"buffer_load_dwordx4 v3, {SX}, {sT0} offen lds", f"X{c}")
    def dma_kb(c):
        s.e(f"s_mul_i32 {sT0}, {KC[c]}, 196608\ns_add_u32 m0, {sW1K}, {L_R1 + c*8192 - 1024}\ns_add_u32 {sT0}, {sT0}, s77")
        s.vmem(f"buffer_load_dwordx4 v5, {SWB}, {sT0} offen offset:1024 lds", f"KB{c}")
    dma_x(0); dma_x(1)
    s.e(f"""
s_load_dwordx2 s[36:37], s[0:1], 32
s_load_dwordx2 s[40:41], s[0:1], 64
s_load_dwordx2 s[44:45], s[0:1], 80
s_load_dwordx2 s[48:49], s[0:1], 88
s_cmp_eq_u32 {sROLE}, 2
s_cselect_b64 s[20:21], s[6:7], s[4:5]
s_cmp_eq_u32 {sROLE}, 0
s_cbranch_scc1 L_noprod
s_add_u32 {sT0}, {sW}, {sR}
s_and_b32 {sT0}, {sT0}, 7
s_lshl_b32 m0, {sW}, 11
s_lshl_b32 {sT0}, {sT0}, 11
buffer_load_dwordx4 v1, {SJ}, {sT0} offen lds
buffer_load_dwordx4 v1, {SJ}, {sT0} offen offset:1024 lds
s_cmp_ge_u32 {sW}, 2
s_cbranch_scc1 L_noprod
s_lshl_b32 {sT0}, {sR}, 7
v_add_u32 v6, {sT0}, v1
v_and_b32 v6, 0x3ff, v6
s_movk_i32 m0, {L_GATE}
v_mov_b32 v8, 0
buffer_load_dwordx4 v6, {SG}, 0 offen lds
v_mov_b32 v9, 0
v_mov_b32 v10, 0
v_mov_b32 v11, 0
s_lshl1_add_u32 {sT0}, {sTB}, {sROLE}
s_lshl1_add_u32 {sT0}, {sT0}, {sW}
s_lshl_b32 {sT0}, {sT0}, 10
s_add_u32 {sT0}, {sT0}, {WS_FL - 2048}
buffer_store_dwordx4 v[8:11], v1, {SWS}, {sT0} offen sc1
L_noprod:
s_and_b32 {sT0}, {sW}, 6
s_cmp_eq_u32 {sT0}, 2
s_cbranch_scc0 L_nophi
s_lshl_b32 {sT0}, {sHG}, 11
s_add_u32 m0, {sW1K}, {L_WPHI - 2048}
s_add_u32 {sT0}, {sT0}, {sW1K}
s_sub_u32 {sT0}, {sT0}, 2048
buffer_load_dwordx4 v1, {SPH}, {sT0} offen lds
L_nophi:
""")
    dma_kb(0)
    s.e(f"s_lshl_b32 {sT0}, {KC[0]}, 16\ns_add_u32 m0, {sW1K}, {L_Q}\ns_add_u32 {sT0}, {sT0}, s77")
    s.vmem(f"buffer_load_dwordx4 v4, {SWQ}, {sT0} offen lds", "WQ0")
    dma_x(2); dma_x(3)
    s.e(f"""
s_mov_b32 s38, 0x80000
s_mov_b32 s39, 0x20000
s_mov_b32 s42, 0x80000
s_mov_b32 s43, 0x20000
s_mov_b32 s46, 0x200000
s_mov_b32 s47, 0x20000
s_mov_b32 s50, 0x100
s_mov_b32 s51, 0x20000
s_mov_b32 {sBUD}, 0x80000
s_mov_b32 s74, {LOG2E}
s_mov_b32 s75, {LOG2E}
s_and_b32 {sTT}, {sW}, 1
s_bfe_u32 {sP}, {sW}, 0x10001
v_and_b32 v6, 31, v2
v_lshrrev_b32 v8, 5, v2
v_bfe_u32 v9, v2, 1, 3
v_xor_b32 v9, v9, v8
s_lshl_b32 {sT0}, {sTT}, 12
s_add_u32 {sT0}, {sT0}, {L_R0}
v_lshlrev_b32 v10, 7, v6
v_add_u32 v10, {sT0}, v10
v_lshl_add_u32 v12, v9, 4, v10
v_xor_b32 v13, 32, v12
v_xor_b32 v14, 64, v12
v_xor_b32 v15, 0x60, v12
v_bfe_u32 v9, v2, 2, 2
v_and_b32 v10, 3, v2
s_waitcnt lgkmcnt(0)
s_cmp_ge_u32 {sW}, 4
s_cbranch_scc1 L_H
""")
    return s

def softmax_max_exp(s, Ts, tmp):
    out = []
    n = len(Ts)
    M = [tmp + 2 * i for i in range(n)]
    for k in range(4):
        for i, T in enumerate(Ts):
            for sg in range(2):
                b = T + 8 * sg; m = M[i] + sg
                if k == 0: out.append(f"v_max3_f32 v{m}, v{b}, v{b+1}, v{b+2}")
                elif k < 3: out.append(f"v_max3_f32 v{m}, v{m}, v{b+1+2*k}, v{b+2+2*k}")
                else: out.append(f"v_max_f32 v{m}, v{m}, v{b+7}")
    out.append("s_nop 1")
    for m in M: out.append(f"v_permlane32_swap_b32 v{m}, v{m+1}")
    for m in M: out.append(f"v_max_f32 v{m}, v{m}, v{m+1}")
    for m in M: out.append(f"v_mul_f32 v{m}, {hex(LOG2E | 0x80000000)}, v{m}")
    for m in M: out.append(f"v_mov_b32 v{m+1}, v{m}")
    out.append("s_nop 1")
    for m in M: out.append(f"v_permlane32_swap_b32 v{m}, v{m+1}")
    for i, T in enumerate(Ts):
        for j in range(8):
            sel = "op_sel_hi:[1,0,0]" if j < 4 else "op_sel:[0,0,1] op_sel_hi:[1,0,1]"
            out.append(f"v_pk_fma_f32 {vr(T+2*j,2)}, {vr(T+2*j,2)}, {sLOG}, {vr(M[i],2)} {sel}")
    for T in Ts:
        for j in range(16): out.append(f"v_exp_f32 v{T+j}, v{T+j}")
    return out

def wphi_frags(s, dst, kver, vaddr, vsign):
    if kver: s.e("v_lshrrev_b32 v16, 1, v10\nv_and_b32 v17, 1, v10\nv_lshl_add_u32 v16, v17, 1, v16")
    else: s.e("v_mov_b32 v16, v10")
    s.e(f"""
v_lshl_add_u32 v17, v8, 2, v9
v_lshlrev_b32 v17, 5, v17
v_lshl_add_u32 v16, v16, 3, v17
s_lshl_b32 {sT0}, {sP}, 10
v_add_u32 v{vaddr}, {sT0}, v16
v_bfe_u32 v16, v2, 4, 1
v_mul_u32_u24 v16, 0x8000, v16
v_lshl_add_u32 v{vsign}, v16, 16, v16
""")
    for a in range(2):
        for rd in range(2):
            s.lds(f"ds_read_b64_tr_b16 {vr(dst+4*a+2*rd,2)}, v{vaddr} offset:{L_WPHI + a*512 + rd*256}", "wphi")
    s.wait(lg="wphi")
    for i in range(8): s.e(f"v_xor_b32 v{dst+i}, v{vsign}, v{dst+i}")

def c_path(s):
    s.stv = "v7"
    if STAMP: s.e("v_mov_b32 v7, 0")
    s.stamp("entry")
    s.e("s_setprio 1")
    s.e(f"""
v_mov_b32 v16, 0
v_mov_b32 v17, 0x3f803f80
v_lshlrev_b32 v18, 2, v2
v_mov_b32 v19, {L_CNT}
""")
    s.lds(f"ds_write_b32 v18, v16 offset:{L_OACC + 9216 + 3*2304 + 2048}")
    s.lds(f"ds_write_b32 v19, v16")
    s.lds(f"ds_write2_b32 v19, v17, v17 offset0:4 offset1:5")
    s.lds(f"ds_write2_b32 v19, v17, v17 offset0:6 offset1:7")
    s.e(f"""
v_lshl_add_u32 v20, v8, 3, v9
v_lshlrev_b32 v20, 5, v20
v_lshl_add_u32 v20, v10, 3, v20
v_lshlrev_b32 v21, 4, v8
s_mov_b32 s78, 0xffff0000
s_mov_b32 s79, 0xffff0000
s_lshl1_add_u32 s80, {sTB}, {sTT}
s_mul_i32 s81, s80, {KVREC}
s_cmp_ge_u32 {sW}, 2
s_cbranch_scc1 L_loader
s_cmp_eq_u32 {sROLE}, 1
s_cbranch_scc1 L_jobK
s_cmp_eq_u32 {sROLE}, 2
s_cbranch_scc1 L_jobV
""")
    base = s.fork(); base.stv = s.stv; base.lg = []
    s.wait(vm="X1", lg="all"); s.e("s_barrier")
    s.wait(vm="all")
    for u in range(7): s.e("s_barrier")
    s.e("s_branch L_jobdone")
    ld = base.fork(); ld.stv = s.stv
    ld.e(f"""
L_loader:
s_mov_b32 {sROLE}, 0
s_lshl_b32 s82, {sTT}, 12
v_lshrrev_b32 v16, 3, v2
v_and_b32 v17, 7, v2
v_lshrrev_b32 v18, 4, v2
v_xor_b32 v18, v18, v17
v_lshrrev_b32 v19, 2, v2
v_and_b32 v19, 4, v19
v_xor_b32 v19, v19, v17
s_lshl_b32 {sT0}, {sTT}, 5
v_add_u32 v16, {sT0}, v16
v_lshlrev_b32 v17, 10, v16
v_lshl_add_u32 v24, v18, 4, v17
v_lshl_add_u32 v28, v19, 4, v17
v_mul_u32_u24 v17, 3072, v16
v_lshl_add_u32 v32, v19, 4, v17
v_add_u32 v32, 0x400, v32
""")
    for jx in range(1, 4):
        ld.e(f"v_add_u32 v{24+jx}, {jx*7168}, v24\nv_add_u32 v{28+jx}, {jx*7168}, v28\nv_add_u32 v{32+jx}, {jx*(24576-1024)}, v32")
    ld.e("v_xor_b32 v25, 64, v25\nv_xor_b32 v27, 64, v27")
    def lchunk(name):
        k, c = name[:-1], int(name[-1])
        if k == "X": ld.e(f"s_lshl_b32 {sT0}, {KC[c]}, 7\ns_add_u32 m0, s82, {L_R0 + c*8192}\ns_add_u32 {sT0}, {sT0}, s76"); vb, srd = 24, SX
        elif k == "KB": ld.e(f"s_mul_i32 {sT0}, {KC[c]}, 196608\ns_add_u32 m0, s82, {L_R1 + c*8192}\ns_add_u32 {sT0}, {sT0}, s77"); vb, srd = 32, SWB
        else: ld.e(f"s_lshl_b32 {sT0}, {KC[c]}, 16\ns_add_u32 m0, s82, {L_R0 + c*8192}\ns_add_u32 {sT0}, {sT0}, s77"); vb, srd = 28, SWQ
        for jx in range(4):
            ld.vmem(f"buffer_load_dwordx4 v{vb+jx}, {srd}, {sT0} offen offset:{jx*1024} lds", name)
    sched = [("X1", ["X4", "X5", "X6", "X7"]), ("X3", ["KB1", "KB2"]), ("X5", ["KB3", "KB4"]), ("X7", ["KB5"]),
             ("KB1", ["KB6", "KB7"]), ("KB3", ["WQ1", "WQ2"]), ("KB5", ["WQ3", "WQ4"]), ("KB7", ["WQ5", "WQ6", "WQ7"])]
    for n_, (w_, nxt) in enumerate(sched):
        ld.wait(vm=w_, lg="all" if n_ == 0 else None); ld.e("s_barrier")
        for c in nxt: lchunk(c)
    ld.e("s_branch L_jobdone")
    ACC = 24
    def job(kind):
        j = base.fork(); j.stv = s.stv
        j.e(f"L_job{kind}:")
        LAG = 3
        def ring(t): return 64 + 8 * (t % 8)
        def mm(t):
            j.wait(lg=f"f{t}")
            x, w = vr(ring(t)), vr(ring(t) + 4)
            c = "0" if t == 0 else vr(ACC, 16)
            j.e(mfma(vr(ACC, 16), w, x, c) if kind == "K" else mfma(vr(ACC, 16), x, w, c))
        for t in range(32):
            c, ks = t >> 2, t & 3
            if t % 8 == 0:
                if t == 0: j.wait(vm="X1")
                if t == 8: j.wait(vm="all")
                j.e("s_barrier")
            j.lds(f"ds_read_b128 {vr(ring(t))}, v{12+ks} offset:{c*8192}", f"f{t}")
            for rd in range(2):
                j.lds(f"ds_read_b64_tr_b16 {vr(ring(t)+4+2*rd,2)}, v20 offset:{L_OACC + c*2048 + ks*512 + rd*128}", f"f{t}")
            if kind == "K":
                j.e("s_mov_b64 exec, s[78:79]")
                j.lds(f"ds_read_b128 {vr(ring(t)+4)}, v21 offset:{L_GATE + c*128 + ks*32}", f"f{t}")
                j.e("s_mov_b64 exec, -1")
            if t >= LAG: mm(t - LAG)
        for t in range(32 - LAG, 32): mm(t)
        j.e("s_barrier")
        if kind == "K":
            j.e(f"""
v_and_b32 v16, 0x13, v6
v_bfe_u32 v17, v6, 2, 1
v_lshl_add_u32 v16, v17, 3, v16
v_bfe_u32 v17, v6, 3, 1
v_lshl_add_u32 v16, v17, 2, v16
v_lshl_add_u32 v16, v8, 5, v16
v_lshlrev_b32 v16, 4, v16
v_lshlrev_b32 v17, 2, v6
s_mov_b32 s82, {fbits(KSCALE)}
s_mov_b32 s83, {fbits(KSCALE)}
s_lshl_b32 {sT1}, s80, 7
s_add_u32 {sT1}, {sT1}, {WS_G}
""")
            for q in range(4): j.e(f"v_pk_mul_f32 {vr(ACC+2*q,2)}, {vr(ACC+2*q,2)}, s[82:83]")
            j.e(f"v_mul_f32 v{ACC+8}, {hex(LOG2E | 0x80000000)}, v{ACC+8}")
            for q in range(4): j.e(f"v_cvt_pk_bf16_f32 v{40+q}, v{ACC+2*q}, v{ACC+2*q+1}")
            j.e(f"v_exp_f32 v{ACC+8}, v{ACC+8}")
            j.vmem(f"buffer_store_dwordx4 v[40:43], v16, {SWS}, s81 offen sc1", "kvst")
            j.e(f"v_add_f32 v{ACC+8}, 1.0, v{ACC+8}\nv_rcp_f32 v{ACC+8}, v{ACC+8}\ns_nop 0")
            j.vmem(f"buffer_store_dword v{ACC+8}, v17, {SWS}, {sT1} offen sc1", "kvst")
        else:
            j.e(f"""
v_and_b32 v16, 15, v6
v_lshl_add_u32 v16, v8, 4, v16
v_lshrrev_b32 v17, 4, v6
v_lshl_add_u32 v16, v17, 5, v16
v_lshlrev_b32 v16, 4, v16
v_mov_b32 v44, 0x3f803f80
v_mov_b32 v45, 0x3f803f80
v_mov_b32 v46, 0x3f803f80
v_mov_b32 v47, 0x3f803f80
s_nop 2
""")
            for q in range(4): j.e(f"v_cvt_pk_bf16_f32 v{40+q}, v{ACC+2*q}, v{ACC+2*q+1}")
            j.e("s_mov_b64 exec, s[78:79]")
            for q in range(4): j.e(f"v_cvt_pk_bf16_f32 v{40+q}, v{ACC+8+2*q}, v{ACC+8+2*q+1}")
            j.e("s_mov_b64 exec, -1")
            j.vmem(f"buffer_store_dwordx4 v[40:43], v16, {SWS}, s81 offen offset:1024 sc1", "kvst")
            j.e("s_mov_b64 exec, 0xff")
            j.vmem(f"buffer_store_dwordx4 v[44:47], v1, {SWS}, s81 offen offset:2048 sc1", "kvst")
            j.e("s_mov_b64 exec, -1")
        j.stamp("kvstored")
        for u in range(3): j.e("s_barrier")
        if kind == "K": j.e("s_branch L_jobdone")
        return j
    jk, jv = job("K"), job("V")
    s.L += ld.L + jk.L + jv.L
    s.e("L_jobdone:")
    s.stamp("B8")
    wphi_frags(s, 56, True, 18, 19)
    s.e(f"""
s_lshl1_add_u32 {sT0}, {sTT}, {sP}
s_lshl_b32 {sT0}, {sT0}, 12
v_lshlrev_b32 v22, 6, v6
v_lshl_add_u32 v22, v8, 4, v22
v_add_u32 v22, {sT0}, v22
s_lshl_b32 {sT0}, {sW}, 11
s_add_u32 {sT0}, {sT0}, {L_R0}
v_add_u32 v23, {sT0}, v1
""")
    def ldwait(n):
        skip = lbl("lw")
        s.e(f"s_cmp_lt_u32 {sW}, 2\ns_cbranch_scc1 {skip}\ns_waitcnt vmcnt({n})\n{skip}:\ns_barrier")
    s.e(f"""
s_cmp_eq_u32 {sROLE}, 0
s_cbranch_scc1 L_nosig
s_lshl_b32 {sT0}, {sROLE}, 7
s_sub_u32 {sT0}, {sT0}, 128
v_mov_b32 v16, 1
v_mov_b32 v17, 0
s_mov_b64 exec, 1
s_waitcnt vmcnt(0)
buffer_atomic_add v16, v17, {SDBG}, {sT0} offen sc1
s_mov_b64 exec, -1
L_nosig:
""")
    s.stamp("sig")
    ldwait(24); s.stamp("B9"); ldwait(16)
    s.vm = []
    s.stamp("B10")
    T0, T1 = 24, 40
    s.lds(f"ds_read_b128 v[64:67], v23", "kb")
    s.lds(f"ds_read_b128 v[68:71], v23 offset:1024", "kb")
    s.e(f"""
v_and_b32 v16, 15, v6
v_lshl_add_u32 v16, v8, 4, v16
v_lshlrev_b32 v16, 4, v16
v_mov_b32 v17, 0x80000000
v_cmp_gt_u32 vcc, 16, v6
v_mov_b32 v18, 0x400
v_mov_b32 v19, 0x200
v_cndmask_b32 v16, v17, v16, vcc
v_cmp_eq_u32 vcc, 16, v6
s_lshr_b32 {sT0}, s2, 3
s_lshl_b32 {sT0}, {sT0}, 1
v_cndmask_b32 v4, v16, v18, vcc
v_cndmask_b32 v5, v16, v19, vcc
s_lshl4_add_u32 {sT0}, {sW}, {sT0}
""")
    s.wait(lg="kb")
    s.e(mfma(vr(T0, 16), "v[56:59]", "v[64:67]", 0))
    s.e(mfma(vr(T1, 16), "v[60:63]", "v[68:71]", 0))
    KOFF = [f"s{78+i}" for i in range(16)]
    for t in range(16):
        s.e(f"s_add_u32 {sT1}, {sT0}, {t}\ns_and_b32 {sT1}, {sT1}, 63\ns_mul_i32 {KOFF[t]}, {sT1}, {KVREC}")
    sm = softmax_max_exp(s, [T0, T1], 16)
    for k in range(3):
        for i, T in enumerate((T0, T1)):
            for sg in range(2):
                b = T + 8 * sg; d = 64 + 4 * i + 2 * sg
                if k == 0: sm.append(f"v_pk_add_f32 {vr(d,2)}, {vr(b,2)}, {vr(b+2,2)}")
                else: sm.append(f"v_pk_add_f32 {vr(d,2)}, {vr(d,2)}, {vr(b+2+2*k,2)}")
    for i in range(2):
        for sg in range(2):
            d = 64 + 4 * i + 2 * sg
            sm.append(f"v_add_f32 v{16+2*i+sg}, v{d}, v{d+1}")
    sm.append("s_nop 1")
    for m in (16, 18): sm.append(f"v_permlane32_swap_b32 v{m}, v{m+1}")
    for m in (16, 18): sm.append(f"v_add_f32 v{m}, v{m}, v{m+1}")
    for m in (16, 18): sm.append(f"v_rcp_f32 v{m}, v{m}")
    sm.append("s_nop 0")
    for m in (16, 18): sm.append(f"v_mov_b32 v{m+1}, v{m}")
    sm.append("s_nop 1")
    for m in (16, 18): sm.append(f"v_permlane32_swap_b32 v{m}, v{m+1}")
    for i, T in enumerate((T0, T1)):
        for j in range(8):
            sel = "op_sel_hi:[1,0]" if j < 4 else "op_sel:[0,1] op_sel_hi:[1,1]"
            sm.append(f"v_pk_mul_f32 {vr(T+2*j,2)}, {vr(T+2*j,2)}, {vr(16+2*i,2)} {sel}")
        for j in range(8):
            sm.append(f"v_cvt_pk_bf16_f32 v{64+8*i+j}, v{T+2*j}, v{T+2*j+1}")
    cut1, cut2 = 30, 66
    s.e("\n".join(sm[:cut1]))
    s.stamp("preB11"); ldwait(8); s.stamp("B11")
    s.e("\n".join(sm[cut1:cut2]))
    s.stamp("preB12"); ldwait(0); s.stamp("B12")
    s.vm = []
    s.e("\n".join(sm[cut2:]))
    for a in range(2):
        for sg in range(2):
            s.lds(f"ds_write_b128 v22, {vr(64+8*a+4*sg)} offset:{L_OACC + a*2048 + sg*32}")
    s.e(f"""
v_mov_b32 v6, 0xdddddddd
v_mov_b32 v60, 0
v_mov_b32 v61, 0
v_add_u32 v3, {L_Q}, v1
s_mul_i32 s73, {sW}, 2304
v_lshlrev_b32 v62, 2, v2
v_add_u32 v62, s73, v62
v_and_b32 v16, 32, v2
v_lshlrev_b32 v16, 2, v16
""")
    s.wait(lg="all"); s.stamp("smdone"); s.e("s_barrier")
    s.stamp("B13")
    S0, S1, O, Q = 8, 24, 40, 56
    top, done = lbl("kvp"), lbl("kvd")
    s.lds(f"ds_read_b128 {vr(Q)}, v3", "q")
    s.e(f"{top}:\nbuffer_load_dword v17, v16, {SDBG}, 0 offen sc1\ns_waitcnt vmcnt(0)\nv_cmp_gt_u32 vcc, 64, v17\ns_cbranch_vccz {done}")
    spin_tail(s, top, done, 1)
    s.stamp("kvready")
    def ld(t):
        s.vmem(f"buffer_load_dwordx4 {vr(64+4*t)}, v1, {SWS}, {KOFF[t]} offen sc1", f"K{t}")
        s.vmem(f"buffer_load_dwordx4 {ar(8*t)}, v4, {SWS}, {KOFF[t]} offen offset:1024 sc1", f"Vl{t}")
        s.vmem(f"buffer_load_dwordx4 {ar(8*t+4)}, v5, {SWS}, {KOFF[t]} offen offset:1536 sc1", f"Vh{t}")
    AHEAD = 5
    for t in range(AHEAD): ld(t)
    s.stamp("ldissued")
    zero = f"v_mfma_f32_32x32x8_bf16 {vr(O,16)}, v[60:61], v[60:61], 0"
    def smf(a, b): return f"v_smfmac_f32_32x32x32_bf16 {vr(O,16)}, {ar(a)}, {vr(b,8)}, v6"
    s.e(zero)
    s.wait(vm="K0", lg="all")
    s.e(mfma(vr(S0, 16), vr(64), vr(Q), 0))
    s.e("s_nop 11")
    s.stamp("S0")
    def dump(s):
        for r in range(9): s.e(f"ds_write_addtid_b32 v{O+r} offset:{r*256}")
    def step(s, first):
        for t in range(16):
            Sc, Sn = (S0, S1) if t % 2 == 0 else (S1, S0)
            tn = (t + 1) % 16; tp = (t - 1) % 16
            pos_lo = 13 if (t == 0 and not first) else 11
            for i in range(16):
                if i == 2 and not (first and t == 0):
                    s.e(smf(8 * tp + 4, Sn + 8))
                if i == 5:
                    if first and t < 15: s.wait(vm=f"K{tn}")
                    if t == 15: s.e("s_waitcnt lgkmcnt(0)")
                    s.e(mfma(vr(Sn, 16), vr(64 + 4 * tn), vr(Q), 0))
                    if first and t + AHEAD < 16: ld(t + AHEAD)
                    if t == 14:
                        s.e(f"ds_read_b128 {vr(Q)}, v3 offset:1024\nds_read_b32 v63, v62 offset:2048")
                    if t == 15:
                        s.e("v_cmp_neq_f32 vcc, -1.0, v63\nv_add_u32 v3, 0x400, v3")
                if i == 8 and t == 0 and not first:
                    dump(s); s.e(zero)
                if i == pos_lo:
                    if first and t == 15: s.wait(vm="all")
                    s.e(smf(8 * t, Sc))
                s.e(f"v_exp_f32 v{Sc+i}, v{Sc+i}")
    s.e(f"s_mov_b32 m0, s73\ns_movk_i32 s76, 9216\ns_mov_b32 s77, 7")
    step(s, True)
    s.stamp("step0")
    s.e(".p2align 6\nL_att:\ns_cbranch_vccnz L_attwait\nL_attgo:\nv_add_u32 v62, s76, v62")
    step(s, False)
    s.e(f"s_add_u32 m0, m0, s76\ns_sub_u32 s76, 0, s76\ns_sub_u32 s77, s77, 1\ns_cmp_lg_u32 s77, 0\ns_cbranch_scc1 L_att")
    s.e("s_cbranch_vccnz L_attwait\nL_attfin:")
    s.e(smf(8 * 15 + 4, S1 + 8))
    s.e("s_nop 11")
    dump(s)
    s.stamp("T")
    if STAMP: write_stamps(s)
    s.e("s_endpgm")
    top, done = "L_attwait", lbl("awd")
    s.e(f"{top}:\nds_read_b32 v63, v62 offset:2048\ns_waitcnt lgkmcnt(0)\nv_cmp_neq_f32 vcc, -1.0, v63\ns_cbranch_vccz {done}")
    spin_tail(s, top, done, 1)
    s.e("s_cmp_lg_u32 s77, 0\ns_cbranch_scc1 L_attgo\ns_branch L_attfin")
    return s

def write_stamps(s):
    s.e(f"""
v_writelane_b32 {s.stv}, s96, 0
v_writelane_b32 {s.stv}, s94, 1
s_lshl3_add_u32 {sT0}, s2, {sW}
s_lshl_b32 {sT0}, {sT0}, 8
s_add_u32 {sT0}, {sT0}, {WS_ST}
v_lshlrev_b32 v0, 2, v2
buffer_store_dword {s.stv}, v0, {SWS}, {sT0} offen
""")

def h_path(s):
    s.stv = "v31"
    s.e("L_H:\ns_setprio 2")
    if STAMP: s.e("v_mov_b32 v31, 0")
    s.stamp("entry")
    sHW = "s78"
    vW0, vW1, vWQ0, vCNT, vONE, vL4, vLrow, vIDX = 18, 19, 20, 21, 22, 23, 24, 25
    s.e(f"""
s_and_b32 {sHW}, {sW}, 3
v_lshl_add_u32 v16, v8, 3, v9
v_lshlrev_b32 v16, 7, v16
v_lshrrev_b32 v17, 1, v9
v_xor_b32 v17, {sP}, v17
v_lshl_add_u32 v16, v17, 6, v16
v_bfe_u32 v11, v2, 4, 1
v_lshl_add_u32 v16, v11, 5, v16
v_lshl_add_u32 v16, v10, 3, v16
v_add_u32 v{vW0}, {L_R0}, v16
v_add_u32 v{vW1}, {L_R1}, v16
v_add_u32 v{vWQ0}, {L_Q}, v16
v_mov_b32 v{vCNT}, {L_CNT}
v_mov_b32 v{vONE}, 1
v_lshlrev_b32 v{vL4}, 2, v2
v_lshlrev_b32 v{vLrow}, 2, v6
v_mov_b32 v{vIDX}, 0xdddddddd
v_mov_b32 v26, 0
v_mov_b32 v27, 0
s_lshl_b32 {sT0}, {sHW}, 11
s_add_u32 {sT0}, {sT0}, {L_R0}
v_add_u32 v28, {sT0}, v1
s_lshl2_add_u32 {sT0}, {sP}, {sTT}
s_lshl_b32 {sT0}, {sT0}, 10
s_add_u32 {sT0}, {sT0}, {L_Q}
v_add_u32 v29, {sT0}, v1
""")
    for u in range(4):
        if u == 0: s.wait(vm="X1")
        if u == 1: s.wait(vm="all")
        s.e("s_barrier")
        s.stamp(f"B{u+1}")
        for t in range(8 * u, 8 * u + 8):
            s.lds(f"ds_read_b128 {ar(4*t)}, v{12 + (t & 3)} offset:{(t >> 2)*8192}", "x")
    A0, A1 = 64, 80
    LAG = 4
    def ring(t): return 32 + 4 * (t % 8)
    def gemm(steps, pre=None, post=None):
        n = len(steps)
        def mm(t):
            s.wait(lg=f"w{t}")
            s.e(steps[t][3].replace("WF", vr(ring(t))))
            if post: post(t)
        for t in range(n):
            if pre: pre(t)
            a, off, rs, _ = steps[t]
            for rd in range(2):
                s.lds(f"ds_read_b64_tr_b16 {vr(ring(t)+2*rd,2)}, v{a} offset:{off + rd*rs}", f"w{t}")
            if t >= LAG: mm(t - LAG)
        for t in range(n - LAG, n): mm(t)
    steps = []
    for t in range(32):
        steps.append((vW1, t * 2048, 512, mfma(vr(A0, 16), "WF", ar(4 * t), "0" if t == 0 else vr(A0, 16))))
    for t in range(32):
        steps.append((vWQ0 if t < 4 else vW0, t * 2048, 512, mfma(vr(A1, 16), "WF", ar(4 * t), "0" if t == 0 else vr(A1, 16))))
    def pre(t):
        if t % 8: return
        u = t // 8
        if u == 0: s.wait(lg="all")
        if u == 5: s.wait(lg="kbw")
        s.e("s_barrier")
        if u == 0: s.stamp("B5")
    def post(t):
        if t in (33, 34):
            a = t - 33
            for q in range(4): s.e(f"v_cvt_pk_bf16_f32 v{96+4*a+q}, v{A0+8*a+2*q}, v{A0+8*a+2*q+1}")
            s.lds(f"ds_write_b128 v28, {vr(96+4*a)} offset:{a*1024}", "kbw")
    gemm(steps, pre, post)
    s.e(f"""
v_lshl_add_u32 v16, v8, 2, v9
v_lshlrev_b32 v30, 6, v16
v_lshl_add_u32 v30, v11, 5, v30
v_lshl_add_u32 v30, v10, 3, v30
s_lshl_b32 {sT0}, {sHW}, 11
v_add_u32 v30, {sT0}, v30
s_nop 5
""")
    for a in range(2):
        for q in range(4): s.e(f"v_cvt_pk_bf16_f32 v{104+4*a+q}, v{A1+8*a+2*q}, v{A1+8*a+2*q+1}")
        s.lds(f"ds_write_b128 v29, {vr(104+4*a)} offset:{a*2048}")
    s.wait(lg="all"); s.stamp("qdone"); s.e("s_barrier")
    s.stamp("B13")
    PHT = 96
    for tt in range(2):
        for th in range(2):
            for rd in range(2):
                s.lds(f"ds_read_b64_tr_b16 {vr(PHT+8*tt+4*th+2*rd,2)}, v30 offset:{L_OACC + tt*8192 + th*1024 + rd*512}")
    def dma_group(srd, voff, rowbytes, coloff_s, colimm, region, tag, natural):
        for c in range(8):
            s.e(f"s_mul_i32 {sT0}, {KC[c]}, {64*rowbytes}\ns_add_u32 {sT0}, {sT0}, {coloff_s}")
            if colimm: s.e(f"s_add_u32 {sT0}, {sT0}, {colimm}")
            if natural: s.e(f"s_lshl_b32 {sT1}, {KC[c]}, 13\ns_add_u32 {sT1}, {sT1}, {sW1K}\ns_add_u32 m0, {sT1}, {region}")
            else: s.e(f"s_add_u32 m0, {sW1K}, {region + c*8192}")
            s.e("s_nop 0")
            s.vmem(f"buffer_load_dwordx4 v{voff}, {srd}, {sT0} offen lds", tag)
            s.e(f"s_sub_u32 m0, m0, 4096\ns_nop 0")
            s.vmem(f"buffer_load_dwordx4 v{voff+8}, {srd}, {sT0} offen lds", tag)
    s.e(f"v_subrev_u32 v12, {32*1024}, v4\nv_subrev_u32 v13, {32*3072}, v5")
    dma_group(SWB, 5, 3072, "s77", 2048, L_R1, "VB", False)
    dma_group(SWB, 5, 3072, "s77", 0, L_R0, "QB", False)
    s.stamp("dmaiss")
    nsb = [0]
    def softbar(sleep=1):
        nsb[0] += 1
        top, done = lbl("sb"), lbl("sbd")
        s.e(f"s_mov_b64 exec, 1\nds_add_u32 v{vCNT}, v{vONE}\ns_mov_b64 exec, -1")
        s.e(f"{top}:\nds_read_b32 v16, v{vCNT}\ns_waitcnt lgkmcnt(0)\nv_readfirstlane_b32 {sT0}, v16\ns_cmp_ge_u32 {sT0}, {4*nsb[0]}\ns_cbranch_scc1 {done}")
        spin_tail(s, top, done, sleep)
        s.lg = []
        s.stamp(f"S{nsb[0]}")
    def poll(vaddr, srd, soff, val, sleep=2, imm=0):
        top, done = lbl("pl"), lbl("pld")
        o = f" offset:{imm}" if imm else ""
        s.e(f"{top}:\nbuffer_load_dword v16, v{vaddr}, {srd}, {soff} offen{o} sc1\ns_waitcnt vmcnt(0)\nv_cmp_gt_u32 vcc, {val}, v16\ns_cbranch_vccz {done}")
        spin_tail(s, top, done, sleep)
        s.vm = []
    sFL = "s79"
    def setflag(k):
        s.e(f"s_mov_b64 exec, 1")
        s.vmem(f"buffer_store_dword v{vONE}, v26, {SWS}, {sFL} offen offset:{4*k} sc1")
        s.e("s_mov_b64 exec, -1")
    sJ, sOT = "s80", "s81"
    def fin(hw, j):
        skip = lbl("nf")
        s.e(f"s_cmp_eq_u32 {sHW}, {hw}\ns_cbranch_scc0 {skip}\ns_mov_b32 {sJ}, {j}\ns_call_b64 s[92:93], L_fin\n{skip}:")
    s.e(f"""
s_lshl3_add_u32 {sFL}, {sTB}, {sHG}
s_lshl2_add_u32 {sFL}, {sFL}, {sHW}
s_lshl_b32 {sFL}, {sFL}, 7
s_add_u32 {sFL}, {sFL}, {WS_FL}
s_lshl_b32 {sOT}, {sHG}, 12
s_add_u32 {sOT}, {sOT}, s76
s_add_u32 {sOT}, {sOT}, {WS_OA}
""")
    s.wait(vm="VB", lg="all")
    s.stamp("vbland")
    softbar()
    s.e(f"""
s_cmp_ge_u32 {sHW}, 2
s_cbranch_scc1 L_clr
s_mul_i32 {sT0}, {sHW}, 9216
v_add_u32 v16, {sT0}, v{vL4}
v_mov_b32 v17, -1.0
ds_write2st64_b32 v16, v17, v17 offset0:8 offset1:17
ds_write2st64_b32 v16, v17, v17 offset0:26 offset1:35
s_branch L_clrd
L_clr:
v_mov_b32 v32, -1
v_mov_b32 v33, -1
v_mov_b32 v34, -1
v_mov_b32 v35, -1
s_lshl_b32 {sT0}, {sTT}, 15
s_add_u32 {sT0}, {sT0}, {sOT}
buffer_store_dwordx4 v[32:35], v1, {SWS}, {sT0} offen offset:3072 sc1
s_nop 0
L_clrd:
s_setprio 0
""")
    gemm([(vW1, t * 2048, 512, mfma(vr(A0, 16), ar(4 * t), "WF", "0" if t == 0 else vr(A0, 16))) for t in range(32)])
    s.e(f"""
s_setprio 2
s_lshl1_add_u32 {sT0}, {sTT}, {sP}
s_lshl_b32 {sT0}, {sT0}, 11
s_add_u32 {sT0}, {sT0}, {L_R1}
v_add_u32 v28, {sT0}, v1
v_lshl_add_u32 v29, v8, 5, v6
s_and_b32 {sT0}, {sHW}, 1
s_lshl_b32 {sT0}, {sT0}, 8
s_lshr_b32 {sT1}, {sHW}, 1
s_lshl_b32 {sT1}, {sT1}, 11
s_add_u32 {sT0}, {sT0}, {sT1}
s_add_u32 {sT0}, {sT0}, {L_R1}
v_lshlrev_b32 v29, 4, v29
v_add_u32 v29, {sT0}, v29
""")
    for q in range(8): s.e(f"v_cvt_pk_bf16_f32 v{112+q}, v{A0+2*q}, v{A0+2*q+1}")
    s.wait(vm="all", lg="all")
    s.stamp("vbgemm")
    softbar()
    s.lds(f"ds_write_b128 v28, v[112:115]"); s.lds(f"ds_write_b128 v28, v[116:119] offset:1024")
    for f in range(4): s.lds(f"ds_read_b128 {vr(32+4*f)}, v{vCNT} offset:16")
    s.wait(lg="all")
    softbar()
    s.e("s_mov_b32 s82, 0xffff\ns_mov_b32 s83, 0xffff\ns_mov_b64 exec, s[82:83]")
    for tt in range(2):
        for th in range(2):
            s.lds(f"ds_read_b128 {vr(32+8*tt+4*th)}, v29 offset:{tt*4096 + th*1024}")
    s.e(f"""
s_mov_b64 exec, -1
s_lshl_b32 {sT0}, {sHW}, 12
s_add_u32 {sT0}, {sT0}, {L_R1 + 8192}
v_lshlrev_b32 v28, 7, v6
v_lshl_add_u32 v28, v8, 6, v28
v_add_u32 v28, {sT0}, v28
v_add_u32 v29, {sT0}, v1
v_lshrrev_b32 v16, 3, v2
v_and_b32 v17, 7, v2
v_lshlrev_b32 v16, 12, v16
v_lshl_add_u32 v30, v17, 4, v16
s_lshl2_add_u32 s84, {sHG}, {sHW}
s_mul_i32 s85, s84, {17*4096}
s_add_u32 s85, s85, {WS_KVP}
s_lshl_b32 {sT1}, {sTB}, 7
s_add_u32 {sT1}, {sT1}, s85
""")
    s.wait(lg="all")
    for f in range(4): s.e(mfma(vr(A1, 16), vr(PHT + 4 * f), vr(32 + 4 * f), "0" if f == 0 else vr(A1, 16)))
    s.e("s_nop 11")
    for q in range(4): s.lds(f"ds_write_b128 v28, {vr(A1+4*q)} offset:{16*q}")
    for t in range(3): s.lds(f"ds_read_b128 {vr(32+4*t)}, v29 offset:{1024*t}")
    s.e("v_and_b32 v17, 32, v2\nv_lshlrev_b32 v17, 2, v17")
    s.stamp("kvmma")
    poll(17, SDBG, "0", 64)
    s.wait(lg="all")
    s.vmem(f"buffer_store_dwordx4 v[32:35], v30, {SWS}, {sT1} offen sc1")
    s.e(f"s_add_u32 {sT1}, {sT1}, 32768")
    s.vmem(f"buffer_store_dwordx4 v[36:39], v30, {SWS}, {sT1} offen sc1")
    s.e(f"s_add_u32 {sT1}, {sT1}, 32768\ns_mov_b64 exec, 0xff")
    s.vmem(f"buffer_store_dwordx4 v[40:43], v30, {SWS}, {sT1} offen sc1")
    s.e("s_mov_b64 exec, -1\ns_nop 0")
    s.stamp("kvp")
    fin(0, 0)
    s.stamp("fin0")
    s.e("s_setprio 0")
    def post2(t):
        if t == 15:
            s.wait(vm="all"); setflag(0)
    gemm([(vW0, t * 2048, 512, mfma(vr(A0, 16), "WF", ar(4 * t), "0" if t == 0 else vr(A0, 16))) for t in range(32)], None, post2)
    s.e("s_setprio 2")
    wphi_frags(s, 48, False, 28, 29)
    for q in range(8): s.e(f"v_cvt_pk_bf16_f32 v{56+q}, v{A0+2*q}, v{A0+2*q+1}")
    T0, T1 = 96, 112
    s.e("s_nop 0")
    s.e(mfma(vr(T0, 16), "v[48:51]", "v[56:59]", 0))
    s.e(mfma(vr(T1, 16), "v[52:55]", "v[60:63]", 0))
    s.stamp("qbgemm")
    s.e(f"""
s_cmp_gt_u32 {sTB}, 16
s_cbranch_scc1 L_noA
v_lshlrev_b32 v17, 12, v6
s_lshl_b32 {sT1}, s84, 7
s_add_u32 {sT1}, {sT1}, {WS_FL}
""")
    poll(17, SWS, sT1, 1)
    s.stamp("kvpok")
    s.e(f"s_lshl_b32 {sT1}, {sTB}, 12\ns_add_u32 {sT1}, {sT1}, s85")
    for t in range(4): s.vmem(f"buffer_load_dwordx4 {vr(32+4*t)}, v1, {SWS}, {sT1} offen offset:{1024*t} sc1")
    s.e(f"""
v_lshl_add_u32 v16, v11, 1, v8
v_lshl_add_u32 v16, v10, 3, v16
v_bfe_u32 v17, v2, 2, 1
v_lshl_add_u32 v16, v17, 2, v16
v_lshlrev_b32 v16, 1, v16
s_mul_i32 {sT1}, s84, 17
s_add_u32 {sT1}, {sT1}, {sTB}
s_lshl_b32 {sT1}, {sT1}, 7
s_add_u32 {sT1}, {sT1}, {WS_KVF}
s_waitcnt vmcnt(0)
v_pk_add_f32 v[32:33], v[32:33], v[36:37]
v_pk_add_f32 v[34:35], v[34:35], v[38:39]
v_pk_add_f32 v[40:41], v[40:41], v[44:45]
v_pk_add_f32 v[42:43], v[42:43], v[46:47]
v_pk_add_f32 v[32:33], v[32:33], v[40:41]
v_pk_add_f32 v[34:35], v[34:35], v[42:43]
s_nop 1
v_permlane32_swap_b32 v32, v33
v_permlane32_swap_b32 v34, v35
v_add_f32 v32, v32, v33
v_add_f32 v34, v34, v35
s_nop 1
v_permlane16_swap_b32 v32, v34
v_add_f32 v32, v32, v34
s_nop 1
v_add_f32_dpp v32, v32, v32 row_ror:8 row_mask:0xf bank_mask:0xf
v_cvt_pk_bf16_f32 v32, v32, v32
buffer_store_short v32, v16, {SWS}, {sT1} offen sc1
s_waitcnt vmcnt(0)
""")
    s.vm = []
    setflag(1)
    s.e("L_noA:")
    s.vm = []
    s.stamp("stageA")
    softbar()
    dma_group(SOB, 4, 1024, "s77", 0, L_R1, "WO", True)
    dma_group(SOA, 4, 1024, "s77", 0, L_R0, "WO", True)
    s.stamp("wodma")
    s.e("\n".join(softmax_max_exp(s, [T0, T1], 32)))
    s.stamp("qsm")
    fin(1, 1)
    fin(2, 2)
    s.stamp("fin12")
    s.e(f"""
v_min_u32 v16, 16, v6
v_lshlrev_b32 v17, 12, v16
v_lshl_add_u32 v17, v8, 7, v17
v_lshlrev_b32 v28, 7, v16
v_lshl_add_u32 v28, v8, 4, v28
s_lshl1_add_u32 s86, {sHG}, {sP}
s_lshl_b32 {sT1}, s86, 8
s_add_u32 {sT1}, {sT1}, {WS_FL}
""")
    for f in range(4): s.lds(f"ds_read_b128 {vr(32+4*f)}, v{vCNT} offset:16")
    poll(17, SWS, sT1, 1, imm=4)
    s.stamp("kvfok")
    s.e(f"""
s_mul_i32 {sT1}, s86, {2*17*128}
s_add_u32 {sT1}, {sT1}, {WS_KVF}
s_mov_b32 s82, 0x5555ffff
s_mov_b32 s83, 0x5555ffff
""")
    s.wait(lg="all")
    s.e("s_mov_b64 exec, s[82:83]")
    for a in range(2):
        for sg in range(2):
            s.vmem(f"buffer_load_dwordx4 {vr(32+8*a+4*sg)}, v28, {SWS}, {sT1} offen offset:{a*17*128 + sg*32} sc1")
    s.e(f"""
s_mov_b64 exec, -1
s_lshl_b32 {sT1}, {sTT}, 15
s_add_u32 {sT1}, {sT1}, {sOT}
s_lshl_b32 {sT2}, {sP}, 11
s_add_u32 {sT1}, {sT1}, {sT2}
s_add_u32 {sT1}, {sT1}, {WS_OB - WS_OA}
s_mov_b32 {sT2}, {fbits(1e-6)}
""")
    for a in range(2):
        T = (T0, T1)[a]
        for D in (A0, A1): s.e(f"v_mfma_f32_32x32x8_bf16 {vr(D,16)}, v[26:27], v[26:27], 0")
        if a == 0: s.wait(vm="all")
        s.e("s_nop 9")
        s.e(f"v_smfmac_f32_32x32x32_bf16 {vr(A0,16)}, {vr(32+8*a)}, {vr(T,8)}, v{vIDX}")
        s.e(f"v_smfmac_f32_32x32x32_bf16 {vr(A1,16)}, {vr(36+8*a)}, {vr(T+8,8)}, v{vIDX}")
        s.e(f"""
s_nop 11
v_rcp_f32 v56, v{A0+9}
v_rcp_f32 v57, v{A1+9}
v_fma_f32 v58, v{A0+8}, v56, {sT2}
v_fmac_f32 v58, v{A1+8}, v57
v_rcp_f32 v58, v58
s_nop 0
v_pk_mul_f32 v[56:57], v[56:57], v[58:59] op_sel_hi:[1,0]
""")
        for q in range(4): s.e(f"v_pk_mul_f32 {vr(A0+2*q,2)}, {vr(A0+2*q,2)}, v[56:57] op_sel_hi:[1,0]")
        for q in range(4): s.e(f"v_pk_fma_f32 {vr(A0+2*q,2)}, {vr(A1+2*q,2)}, v[56:57], {vr(A0+2*q,2)} op_sel:[0,1,0] op_sel_hi:[1,1,1]")
        for q in range(4): s.e(f"v_cvt_pk_bf16_f32 v{48+4*a+q}, v{A0+2*q}, v{A0+2*q+1}")
        s.vmem(f"buffer_store_dwordx4 {vr(48+4*a)}, v1, {SWS}, {sT1} offen offset:{a*1024} sc1")
    s.wait(vm="all")
    setflag(2)
    s.stamp("ob")
    softbar()
    fin(3, 3)
    fin(0, 4)
    s.stamp("fin34")
    skip = lbl("ae")
    s.e(f"s_cmp_eq_u32 {sHW}, 1\ns_cbranch_scc1 {skip}\ns_waitcnt vmcnt(0)")
    setflag(3)
    s.e(f"{skip}:")
    vP0, vP1, vGF = 18, 19, 28
    s.e(f"""
v_lshl_add_u32 v16, v8, 2, v9
v_lshlrev_b32 v16, 7, v16
v_lshrrev_b32 v17, 1, v9
v_xor_b32 v17, {sP}, v17
v_lshl_add_u32 v16, v17, 6, v16
v_and_b32 v17, 1, v10
v_lshl_add_u32 v16, v17, 5, v16
v_lshl_add_u32 v16, v11, 4, v16
v_lshrrev_b32 v17, 1, v10
v_lshl_add_u32 v16, v17, 3, v16
v_add_u32 v{vP0}, {L_R0}, v16
v_add_u32 v{vP1}, {L_R1}, v16
v_and_b32 v{vGF}, 15, v2
v_lshlrev_b32 v{vGF}, 8, v{vGF}
s_lshl_b32 s87, {sTB}, 12
s_lshl_b32 {sT0}, {sTT}, 7
s_add_u32 s87, s87, {sT0}
s_add_u32 s87, s87, {WS_FL}
s_lshl_b32 s88, {sTT}, 15
s_add_u32 s88, s88, s76
s_add_u32 s88, s88, {WS_OA}
""")
    poll(vGF, SWS, "s87", 1, imm=8)
    s.stamp("obok")
    BA, AA = 96, 112
    s.e(f"s_add_u32 {sT1}, s88, {WS_OB - WS_OA}\ns_lshl1_add_u32 {sT2}, {sTB}, {sTT}\ns_lshl_b32 {sT2}, {sT2}, 7\ns_add_u32 {sT2}, {sT2}, {WS_G}")
    s.vmem(f"buffer_load_dword v30, v{vLrow}, {SWS}, {sT2} offen sc1", "g")
    for t in range(32):
        if t and t % 4 == 0: s.e(f"s_add_u32 {sT1}, {sT1}, 4096")
        s.vmem(f"buffer_load_dwordx4 {ar(4*t)}, v1, {SWS}, {sT1} offen offset:{(t & 3)*1024} sc1", f"ob{t}")
    s.wait(vm="all")
    s.stamp("obld")
    s.e("s_setprio 0")
    gemm([(vP1, t * 2048, 1024, mfma(vr(BA, 16), "WF", ar(4 * t), "0" if t == 0 else vr(BA, 16))) for t in range(32)])
    s.e("s_setprio 2")
    s.stamp("p3b")
    skip = lbl("ae")
    s.e(f"s_cmp_eq_u32 {sHW}, 1\ns_cbranch_scc0 {skip}\ns_mov_b32 {sJ}, 5\ns_call_b64 s[92:93], L_fin\ns_waitcnt vmcnt(0)")
    setflag(3)
    s.e(f"{skip}:")
    poll(vGF, SWS, "s87", 1, imm=12)
    s.stamp("aeok")
    early = [t for t in range(32) if t & 3 != 3]
    s.e(f"s_mov_b32 {sT1}, s88")
    for i, t in enumerate(early):
        if t and t % 4 == 0: s.e(f"s_add_u32 {sT1}, {sT1}, 4096")
        s.vmem(f"buffer_load_dwordx4 {ar(4*i)}, v1, {SWS}, {sT1} offen offset:{(t & 3)*1024} sc1")
    for i in range(8):
        for rd in range(2):
            s.lds(f"ds_read_b64_tr_b16 {ar(96+4*i+2*rd,2)}, v{vP0} offset:{(4*i+3)*2048 + rd*1024}")
    s.e(f"v_sub_f32 v16, 1.0, v30")
    for q in range(8): s.e(f"v_pk_mul_f32 {vr(BA+2*q,2)}, {vr(BA+2*q,2)}, v[16:17] op_sel_hi:[1,0]")
    s.wait(vm="all", lg="all")
    s.stamp("aeld")
    fin(2, 6)
    fin(3, 7)
    s.stamp("fin67")
    softbar(3)
    gemm([(vP0, t * 2048, 1024, mfma(vr(AA, 16), "WF", ar(4 * i), "0" if i == 0 else vr(AA, 16))) for i, t in enumerate(early)])
    s.stamp("p3a")
    top, done = lbl("lt"), lbl("ltd")
    s.e(f"""
v_lshlrev_b32 v17, 10, v6
v_lshl_add_u32 v17, v8, 5, v17
s_lshl_b32 {sT2}, {sTT}, 15
s_add_u32 {sT2}, {sT2}, s76
s_add_u32 {sT2}, {sT2}, s77
s_lshl_b32 {sT3}, {sP}, 6
s_add_u32 {sT2}, {sT2}, {sT3}
{top}:
s_mov_b32 {sT1}, s88
""")
    for i in range(8):
        if i: s.e(f"s_add_u32 {sT1}, {sT1}, 4096")
        s.e(f"buffer_load_dwordx4 {vr(64+4*i)}, v1, {SWS}, {sT1} offen offset:3072 sc1")
    for i in range(8):
        s.e(f"s_waitcnt vmcnt({7-i})")
        if i == 0: s.e("v_max3_u32 v16, v64, v65, v66\nv_max_u32 v16, v16, v67")
        else: s.e(f"v_max3_u32 v16, v16, v{64+4*i}, v{65+4*i}\nv_max3_u32 v16, v16, v{66+4*i}, v{67+4*i}")
    s.e(f"v_cmp_eq_u32 vcc, -1, v16\ns_cbranch_vccz {done}")
    spin_tail(s, top, done, 0)
    s.stamp("late")
    for i in range(8): s.e(mfma(vr(AA, 16), ar(96 + 4 * i), vr(64 + 4 * i), vr(AA, 16)))
    s.e("s_nop 11")
    for q in range(8): s.e(f"v_pk_fma_f32 {vr(AA+2*q,2)}, {vr(AA+2*q,2)}, v[30:31], {vr(BA+2*q,2)} op_sel_hi:[1,0,1]")
    for q in range(8): s.e(f"v_cvt_pk_bf16_f32 v{32+q}, v{AA+2*q}, v{AA+2*q+1}")
    s.e(f"buffer_store_dwordx4 v[32:35], v17, {SOUT}, {sT2} offen\nbuffer_store_dwordx4 v[36:39], v17, {SOUT}, {sT2} offen offset:16")
    if STAMP:
        s.e("s_waitcnt vmcnt(0)"); s.stamp("end"); write_stamps(s)
    s.e("L_exit:\ns_endpgm")
    top, done = lbl("fp"), lbl("fpd")
    s.e(f"""
L_fin:
s_and_b32 {sT0}, {sJ}, 1
s_mul_i32 {sT1}, {sT0}, 9216
v_add_u32 v14, {sT1}, v{vL4}
v_add_u32 v15, {sT1}, v{vLrow}
s_lshl_b32 {sT0}, {sT0}, 15
s_lshr_b32 {sT1}, {sJ}, 1
s_lshl_b32 {sT1}, {sT1}, 10
s_add_u32 {sT0}, {sT0}, {sT1}
s_add_u32 s89, {sT0}, {sOT}
{top}:
ds_read2st64_b32 v[64:65], v15 offset0:8 offset1:17
ds_read2st64_b32 v[66:67], v15 offset0:26 offset1:35
s_waitcnt lgkmcnt(0)
v_min3_f32 v16, v64, v65, v66
v_min_f32 v16, v16, v67
v_cmp_eq_f32 vcc, -1.0, v16
s_cbranch_vccz {done}
""")
    spin_tail(s, top, done, 2)
    for cw in range(4):
        for q in range(4):
            s.e(f"ds_read2st64_b32 {vr(32+8*cw+2*q,2)}, v14 offset0:{9*cw+2*q} offset1:{9*cw+2*q+1}")
    s.e(f"""
v_pk_add_f32 v[64:65], v[64:65], v[66:67]
v_mov_b32 v17, -1.0
v_add_f32 v64, v64, v65
s_mov_b32 {sT0}, {fbits(2.0**-60)}
s_mov_b32 {sT1}, {fbits(2.0**64)}
v_cmp_nge_f32 s[82:83], v64, {sT0}
v_cmp_nle_f32 s[90:91], v64, {sT1}
s_waitcnt lgkmcnt(0)
ds_write2st64_b32 v14, v17, v17 offset0:8 offset1:17
ds_write2st64_b32 v14, v17, v17 offset0:26 offset1:35
""")
    for q in range(4): s.e(f"v_pk_add_f32 {vr(32+2*q,2)}, {vr(32+2*q,2)}, {vr(40+2*q,2)}")
    for q in range(4): s.e(f"v_pk_add_f32 {vr(48+2*q,2)}, {vr(48+2*q,2)}, {vr(56+2*q,2)}")
    for q in range(4): s.e(f"v_pk_add_f32 {vr(32+2*q,2)}, {vr(32+2*q,2)}, {vr(48+2*q,2)}")
    s.e(f"""
v_pk_mul_f32 v[40:41], v[32:33], v[26:27]
v_pk_fma_f32 v[40:41], v[34:35], v[26:27], v[40:41]
v_pk_fma_f32 v[40:41], v[36:37], v[26:27], v[40:41]
v_pk_fma_f32 v[40:41], v[38:39], v[26:27], v[40:41]
s_or_b64 s[82:83], s[82:83], s[90:91]
v_cmp_u_f32 vcc, v40, v41
s_or_b64 vcc, vcc, s[82:83]
""")
    s.e("s_branch L_fb" if FORCE_FB else "s_cbranch_vccnz L_fb")
    s.e("L_fnorm:\nv_rcp_f32 v64, v64\ns_nop 0")
    for q in range(4): s.e(f"v_pk_mul_f32 {vr(32+2*q,2)}, {vr(32+2*q,2)}, v[64:65] op_sel_hi:[1,0]")
    for q in range(4): s.e(f"v_cvt_pk_bf16_f32 v{40+q}, v{32+2*q}, v{33+2*q}")
    for q in range(4): s.e(f"v_min_u32 v{40+q}, -2, v{40+q}")
    s.e(f"buffer_store_dwordx4 v[40:43], v1, {SWS}, s89 offen sc1\ns_waitcnt lgkmcnt(0)\ns_nop 0\ns_setpc_b64 s[92:93]")
    O, Sx = 32, 48
    s.e(f"""
L_fb:
s_lshl_b32 {sT0}, {sJ}, 10
s_add_u32 {sT0}, {sT0}, {L_Q}
v_add_u32 v16, {sT0}, v1
ds_read_b128 v[68:71], v16
v_and_b32 v16, 15, v6
v_lshl_add_u32 v16, v8, 4, v16
v_lshlrev_b32 v16, 4, v16
v_mov_b32 v17, 0x80000000
v_cmp_gt_u32 vcc, 16, v6
v_mov_b32 v66, 0x400
v_mov_b32 v67, 0x200
v_cndmask_b32 v16, v17, v16, vcc
v_cmp_eq_u32 vcc, 16, v6
v_mov_b32 v64, 0xff800000
s_mov_b32 {sT0}, 0
v_cndmask_b32 v66, v16, v66, vcc
v_cndmask_b32 v67, v16, v67, vcc
L_fb1:
buffer_load_dwordx4 v[72:75], v1, {SWS}, {sT0} offen sc1
s_waitcnt vmcnt(0) lgkmcnt(0)
{mfma(vr(Sx,16), "v[72:75]", "v[68:71]", 0)}
s_nop 11
""")
    for q in range(8): s.e(f"v_max3_f32 v64, v64, v{Sx+2*q}, v{Sx+2*q+1}")
    s.e(f"""
s_add_u32 {sT0}, {sT0}, {KVREC}
s_cmp_lt_u32 {sT0}, {64*KVREC}
s_cbranch_scc1 L_fb1
v_mov_b32 v65, v64
s_nop 1
v_permlane32_swap_b32 v64, v65
v_max_f32 v64, v64, v65
v_mfma_f32_32x32x8_bf16 {vr(O,16)}, v[26:27], v[26:27], 0
s_mov_b32 {sT0}, 0
L_fb2:
buffer_load_dwordx4 v[72:75], v1, {SWS}, {sT0} offen sc1
buffer_load_dwordx4 v[76:79], v66, {SWS}, {sT0} offen offset:1024 sc1
buffer_load_dwordx4 v[80:83], v67, {SWS}, {sT0} offen offset:1536 sc1
s_waitcnt vmcnt(0)
{mfma(vr(Sx,16), "v[72:75]", "v[68:71]", 0)}
s_nop 11
""")
    for q in range(16): s.e(f"v_sub_f32 v{Sx+q}, v{Sx+q}, v64")
    for q in range(16): s.e(f"v_exp_f32 v{Sx+q}, v{Sx+q}")
    s.e(f"""
s_nop 1
v_smfmac_f32_32x32x32_bf16 {vr(O,16)}, v[76:79], {vr(Sx,8)}, v{vIDX}
v_smfmac_f32_32x32x32_bf16 {vr(O,16)}, v[80:83], {vr(Sx+8,8)}, v{vIDX}
s_add_u32 {sT0}, {sT0}, {KVREC}
s_cmp_lt_u32 {sT0}, {64*KVREC}
s_cbranch_scc1 L_fb2
s_nop 11
v_mov_b32 v64, v{O+8}
v_mov_b32 v65, v{O+8}
s_nop 1
v_permlane32_swap_b32 v64, v65
s_branch L_fnorm
""")
    return s

def build():
    p = prologue()
    c = p.fork(); h = p.fork()
    c_path(c); h_path(h)
    hdr = open(os.path.join(os.path.dirname(__file__), "..", "cdna_kernels", NAME + ".s.ref")).read().split("\n")
    top = [l for l in hdr if l.startswith(";") and "@launch" not in l and "Override" not in l and "grid=ceil" not in l]
    out = top + [f"; @launch grid=(256,1,1) block=(512,1,1) lds={LDS_BYTES}",
        '.amdgcn_target "amdgcn-amd-amdhsa--gfx950"', ".text", f".globl {NAME}_kernel", ".p2align 8",
        f".type {NAME}_kernel,@function", f"{NAME}_kernel:", p.text(), c.text(), h.text(),
        '.section .rodata,"a"', ".p2align 6", f".amdhsa_kernel {NAME}_kernel",
        "  .amdhsa_next_free_vgpr 256", "  .amdhsa_next_free_sgpr 102", "  .amdhsa_accum_offset 128",
        "  .amdhsa_group_segment_fixed_size 0", "  .amdhsa_kernarg_size 104", "  .amdhsa_user_sgpr_count 2",
        "  .amdhsa_user_sgpr_kernarg_segment_ptr 1", "  .amdhsa_system_sgpr_workgroup_id_x 1",
        "  .amdhsa_float_denorm_mode_32 3",
        ".end_amdhsa_kernel", ""]
    return "\n".join(out)

if __name__ == "__main__":
    txt = build()
    dst = sys.argv[1] if len(sys.argv) > 1 else os.path.join(os.path.dirname(__file__), "..", "cdna_kernels", NAME + ".s")
    open(dst, "w").write(txt)
    if STAMP:
        import json; json.dump(STAMPS, open(dst + ".json", "w"))
    sys.path.insert(0, os.path.dirname(__file__))
    import hazcheck
    print("hazards:", hazcheck.check(txt), " lines:", txt.count("\n"))
```

```python
import sys, os, math
NAME = "gated_mix__grouped_kv_mqa__linear_kernel_hedgehog__prompt"
STAMP = int(os.environ.get("STAMP", "0"))
CAL = os.environ.get("CAL", "")
FORCE_FB = int(os.environ.get("FORCE_FB", "0"))

KVREC = 2176
WS_KV = 0
WS_G = 0x24000
WS_FL = 0x40000
WS_KVF = 0x60000
WS_ST = 0x80000
WS_KVP = 0x100000
WS_OA = 0x400000
WS_OB = 0x600000
WS_SIZE = 0x800000
L_OACC = 0
L_Q = 18432
L_GATE = 26624
L_WPHI = 27648
L_CNT = 29696
L_ONES = 29712
L_R0 = 32768
L_R1 = 98304
LDS_BYTES = 163840
SX, SWB, SWQ, SJ, SWS, SG, SPH, SOA, SOB, SOUT, SDBG = (f"s[{i}:{i+3}]" for i in range(8, 52, 4))
sW, sTB, sHG, sR, sROLE, sTT, sP, sW1K = "s52", "s53", "s54", "s55", "s56", "s57", "s58", "s59"
KC = [f"s{60+i}" for i in range(8)]
sBUD = "s68"
sT0, sT1, sT2, sT3 = "s69", "s70", "s71", "s72"
sLOG = "s[74:75]"
LOG2E = 0x3fb8aa3b
KSCALE = 0.25 * math.log2(math.e)
import struct
def fbits(x): return struct.unpack("<I", struct.pack("<f", x))[0]

STAMPS = {}
class S:
    def __init__(self):
        self.L = []; self.vm = []; self.lg = []; self.nst = 0
    def e(self, s):
        for l in s.strip("\n").split("\n"): self.L.append("    " + l.strip() if not l.strip().endswith(":") else l.strip())
    def vmem(self, s, tag=None): self.e(s); self.vm.append(tag)
    def lds(self, s, tag=None): self.e(s); self.lg.append(tag)
    def _cnt(self, q, tag, mx):
        idx = [i for i, t in enumerate(q) if t == tag]
        if not idx: return None
        n = len(q) - 1 - idx[-1]
        del q[: idx[-1] + 1]
        return min(n, mx)
    def wait(self, vm=None, lg=None):
        parts = []
        if vm == "all": parts.append("vmcnt(0)"); self.vm = []
        elif vm is not None:
            n = self._cnt(self.vm, vm, 63)
            if n is not None: parts.append(f"vmcnt({n})")
        if lg == "all": parts.append("lgkmcnt(0)"); self.lg = []
        elif lg is not None:
            n = self._cnt(self.lg, lg, 15)
            if n is not None: parts.append(f"lgkmcnt({n})")
        if parts: self.e("s_waitcnt " + " ".join(parts))
    def fork(self):
        o = S(); o.vm = list(self.vm); o.lg = list(self.lg); o.nst = self.nst; return o
    def stamp(self, name):
        if CAL and CAL.split(":")[:2] == [self.stv, name]:
            self.e("s_memtime s[94:95]")
        if STAMP:
            names = STAMPS.setdefault(self.stv, [])
            if name not in names: names.append(name)
            k = 2 + names.index(name)
            self.e(f"s_memtime s[98:99]\ns_waitcnt lgkmcnt(0)\nv_writelane_b32 {self.stv}, s98, {k}")
            self.lg = []
    def text(self): return "\n".join(self.L)

_lbl = [0]
def lbl(p):
    _lbl[0] += 1
    return f"L_{p}{_lbl[0]}"

def vr(a, n=4): return f"v[{a}:{a+n-1}]"
def ar(a, n=4): return f"a[{a}:{a+n-1}]"
def mfma(d, a, b, c): return f"v_mfma_f32_32x32x16_bf16 {d}, {a}, {b}, {c}"

def spin_tail(s, top, done, sleep):
    s.e(f"s_sub_u32 {sBUD}, {sBUD}, 1\ns_cbranch_scc1 {done}_x")
    if sleep: s.e(f"s_sleep {sleep}")
    s.e(f"s_branch {top}\n{done}_x:\ns_mov_b32 {sBUD}, 0\n{done}:")

def prologue():
    s = S()
    s.e(f"""
s_load_dwordx2 s[8:9], s[0:1], 0
s_load_dwordx2 s[12:13], s[0:1], 48
s_load_dwordx2 s[16:17], s[0:1], 8
s_load_dwordx4 s[4:7], s[0:1], 16
s_load_dwordx2 s[24:25], s[0:1], 96
s_load_dwordx2 s[28:29], s[0:1], 72
s_load_dwordx2 s[32:33], s[0:1], 56
s_cmp_ge_u32 s2, 0x100
s_cbranch_scc1 L_exit
""")
    if STAMP: s.e("s_memrealtime s[94:95]\ns_memtime s[96:97]")
    if CAL: s.e("s_memtime s[96:97]")
    s.e(f"""
v_lshrrev_b32 v1, 6, v0
s_mov_b32 s10, 0x200000
s_mov_b32 s11, 0x20000
v_readfirstlane_b32 {sW}, v1
v_lshrrev_b32 v1, 3, v0
v_and_b32 v2, 7, v0
v_bfe_u32 v3, v0, 4, 3
v_xor_b32 v3, v3, v2
v_lshlrev_b32 v4, 10, v1
v_lshl_add_u32 v3, v3, 4, v4
s_bfe_u32 {sT0}, s2, 0x20003
s_lshr_b32 {sT1}, s2, 5
s_lshl1_add_u32 {sR}, {sT0}, {sT1}
s_and_b32 {sR}, {sR}, 7
s_bfe_u32 {sT2}, s2, 0x20001
s_lshl3_add_u32 {sTB}, {sT2}, {sT1}
s_and_b32 {sT2}, s2, 1
s_lshl2_add_u32 {sHG}, {sT2}, {sT0}
s_add_u32 {sT2}, {sT2}, 1
s_cmp_eq_u32 {sT0}, 0
s_cselect_b32 {sROLE}, {sT2}, 0
s_lshl_b32 {sW1K}, {sW}, 10
s_lshl_b32 s76, {sTB}, 16
""")
    for c in range(8):
        if c == 0: s.e(f"s_mov_b32 {KC[0]}, {sR}")
        else: s.e(f"s_add_u32 {KC[c]}, {sR}, {c}\ns_and_b32 {KC[c]}, {KC[c]}, 7")
    s.e(f"""
v_lshrrev_b32 v5, 2, v0
v_and_b32 v5, 4, v5
v_xor_b32 v5, v5, v2
v_lshl_add_u32 v4, v5, 4, v4
v_mul_u32_u24 v6, 3072, v1
v_lshl_add_u32 v5, v5, 4, v6
v_and_b32 v2, 63, v0
v_lshlrev_b32 v1, 4, v2
s_mov_b32 s14, 0x180000
s_mov_b32 s15, 0x20000
s_mov_b32 s18, 0x80000
s_mov_b32 s19, 0x20000
s_mov_b32 s22, 0x4000
s_mov_b32 s23, 0x20000
s_mov_b32 s26, {WS_SIZE}
s_mov_b32 s27, 0x20000
s_mov_b32 s30, 0x400
s_mov_b32 s31, 0x20000
s_mov_b32 s34, 0x4000
s_mov_b32 s35, 0x20000
s_lshl_b32 s77, {sHG}, 7
s_waitcnt lgkmcnt(0)
""")
    def dma_x(c):
        s.e(f"s_lshl_b32 {sT0}, {KC[c]}, 7\ns_add_u32 m0, {sW1K}, {L_R0 + c*8192}\ns_add_u32 {sT0}, {sT0}, s76")
        s.vmem(f"buffer_load_dwordx4 v3, {SX}, {sT0} offen lds", f"X{c}")
    def dma_kb(c):
        s.e(f"s_mul_i32 {sT0}, {KC[c]}, 196608\ns_add_u32 m0, {sW1K}, {L_R1 + c*8192 - 1024}\ns_add_u32 {sT0}, {sT0}, s77")
        s.vmem(f"buffer_load_dwordx4 v5, {SWB}, {sT0} offen offset:1024 lds", f"KB{c}")
    dma_x(0); dma_x(1)
    s.e(f"""
s_load_dwordx2 s[36:37], s[0:1], 32
s_load_dwordx2 s[40:41], s[0:1], 64
s_load_dwordx2 s[44:45], s[0:1], 80
s_load_dwordx2 s[48:49], s[0:1], 88
s_cmp_eq_u32 {sROLE}, 2
s_cselect_b64 s[20:21], s[6:7], s[4:5]
s_cmp_eq_u32 {sROLE}, 0
s_cbranch_scc1 L_noprod
s_add_u32 {sT0}, {sW}, {sR}
s_and_b32 {sT0}, {sT0}, 7
s_lshl_b32 m0, {sW}, 11
s_lshl_b32 {sT0}, {sT0}, 11
buffer_load_dwordx4 v1, {SJ}, {sT0} offen lds
buffer_load_dwordx4 v1, {SJ}, {sT0} offen offset:1024 lds
s_cmp_ge_u32 {sW}, 2
s_cbranch_scc1 L_noprod
s_lshl_b32 {sT0}, {sR}, 7
v_add_u32 v6, {sT0}, v1
v_and_b32 v6, 0x3ff, v6
s_movk_i32 m0, {L_GATE}
v_mov_b32 v8, 0
buffer_load_dwordx4 v6, {SG}, 0 offen lds
v_mov_b32 v9, 0
v_mov_b32 v10, 0
v_mov_b32 v11, 0
s_lshl1_add_u32 {sT0}, {sTB}, {sROLE}
s_lshl1_add_u32 {sT0}, {sT0}, {sW}
s_lshl_b32 {sT0}, {sT0}, 10
s_add_u32 {sT0}, {sT0}, {WS_FL - 2048}
buffer_store_dwordx4 v[8:11], v1, {SWS}, {sT0} offen sc1
L_noprod:
s_and_b32 {sT0}, {sW}, 6
s_cmp_eq_u32 {sT0}, 2
s_cbranch_scc0 L_nophi
s_lshl_b32 {sT0}, {sHG}, 11
s_add_u32 m0, {sW1K}, {L_WPHI - 2048}
s_add_u32 {sT0}, {sT0}, {sW1K}
s_sub_u32 {sT0}, {sT0}, 2048
buffer_load_dwordx4 v1, {SPH}, {sT0} offen lds
L_nophi:
""")
    dma_kb(0)
    s.e(f"s_lshl_b32 {sT0}, {KC[0]}, 16\ns_add_u32 m0, {sW1K}, {L_Q}\ns_add_u32 {sT0}, {sT0}, s77")
    s.vmem(f"buffer_load_dwordx4 v4, {SWQ}, {sT0} offen lds", "WQ0")
    dma_x(2); dma_x(3)
    s.e(f"""
s_mov_b32 s38, 0x80000
s_mov_b32 s39, 0x20000
s_mov_b32 s42, 0x80000
s_mov_b32 s43, 0x20000
s_mov_b32 s46, 0x200000
s_mov_b32 s47, 0x20000
s_mov_b32 s50, 0x100
s_mov_b32 s51, 0x20000
s_mov_b32 {sBUD}, 0x80000
s_mov_b32 s74, {LOG2E}
s_mov_b32 s75, {LOG2E}
s_and_b32 {sTT}, {sW}, 1
s_bfe_u32 {sP}, {sW}, 0x10001
v_and_b32 v6, 31, v2
v_lshrrev_b32 v8, 5, v2
v_bfe_u32 v9, v2, 1, 3
v_xor_b32 v9, v9, v8
s_lshl_b32 {sT0}, {sTT}, 12
s_add_u32 {sT0}, {sT0}, {L_R0}
v_lshlrev_b32 v10, 7, v6
v_add_u32 v10, {sT0}, v10
v_lshl_add_u32 v12, v9, 4, v10
v_xor_b32 v13, 32, v12
v_xor_b32 v14, 64, v12
v_xor_b32 v15, 0x60, v12
v_bfe_u32 v9, v2, 2, 2
v_and_b32 v10, 3, v2
s_waitcnt lgkmcnt(0)
s_cmp_ge_u32 {sW}, 4
s_cbranch_scc1 L_H
""")
    return s

def softmax_max_exp(s, Ts, tmp):
    out = []
    n = len(Ts)
    M = [tmp + 2 * i for i in range(n)]
    for k in range(4):
        for i, T in enumerate(Ts):
            for sg in range(2):
                b = T + 8 * sg; m = M[i] + sg
                if k == 0: out.append(f"v_max3_f32 v{m}, v{b}, v{b+1}, v{b+2}")
                elif k < 3: out.append(f"v_max3_f32 v{m}, v{m}, v{b+1+2*k}, v{b+2+2*k}")
                else: out.append(f"v_max_f32 v{m}, v{m}, v{b+7}")
    out.append("s_nop 1")
    for m in M: out.append(f"v_permlane32_swap_b32 v{m}, v{m+1}")
    for m in M: out.append(f"v_max_f32 v{m}, v{m}, v{m+1}")
    for m in M: out.append(f"v_mul_f32 v{m}, {hex(LOG2E | 0x80000000)}, v{m}")
    for m in M: out.append(f"v_mov_b32 v{m+1}, v{m}")
    out.append("s_nop 1")
    for m in M: out.append(f"v_permlane32_swap_b32 v{m}, v{m+1}")
    for i, T in enumerate(Ts):
        for j in range(8):
            sel = "op_sel_hi:[1,0,0]" if j < 4 else "op_sel:[0,0,1] op_sel_hi:[1,0,1]"
            out.append(f"v_pk_fma_f32 {vr(T+2*j,2)}, {vr(T+2*j,2)}, {sLOG}, {vr(M[i],2)} {sel}")
    for T in Ts:
        for j in range(16): out.append(f"v_exp_f32 v{T+j}, v{T+j}")
    return out

def wphi_frags(s, dst, kver, vaddr, vsign):
    if kver: s.e("v_lshrrev_b32 v16, 1, v10\nv_and_b32 v17, 1, v10\nv_lshl_add_u32 v16, v17, 1, v16")
    else: s.e("v_mov_b32 v16, v10")
    s.e(f"""
v_lshl_add_u32 v17, v8, 2, v9
v_lshlrev_b32 v17, 5, v17
v_lshl_add_u32 v16, v16, 3, v17
s_lshl_b32 {sT0}, {sP}, 10
v_add_u32 v{vaddr}, {sT0}, v16
v_bfe_u32 v16, v2, 4, 1
v_mul_u32_u24 v16, 0x8000, v16
v_lshl_add_u32 v{vsign}, v16, 16, v16
""")
    for a in range(2):
        for rd in range(2):
            s.lds(f"ds_read_b64_tr_b16 {vr(dst+4*a+2*rd,2)}, v{vaddr} offset:{L_WPHI + a*512 + rd*256}", "wphi")
    s.wait(lg="wphi")
    for i in range(8): s.e(f"v_xor_b32 v{dst+i}, v{vsign}, v{dst+i}")

def c_path(s):
    s.stv = "v7"
    if STAMP: s.e("v_mov_b32 v7, 0")
    s.stamp("entry")
    s.e("s_setprio 1")
    s.e(f"""
v_mov_b32 v16, 0
v_mov_b32 v17, 0x3f803f80
v_lshlrev_b32 v18, 2, v2
v_mov_b32 v19, {L_CNT}
""")
    s.lds(f"ds_write_b32 v18, v16 offset:{L_OACC + 9216 + 3*2304 + 2048}")
    s.lds(f"ds_write_b32 v19, v16")
    s.lds(f"ds_write2_b32 v19, v17, v17 offset0:4 offset1:5")
    s.lds(f"ds_write2_b32 v19, v17, v17 offset0:6 offset1:7")
    s.e(f"""
v_lshl_add_u32 v20, v8, 3, v9
v_lshlrev_b32 v20, 5, v20
v_lshl_add_u32 v20, v10, 3, v20
v_lshlrev_b32 v21, 4, v8
s_mov_b32 s78, 0xffff0000
s_mov_b32 s79, 0xffff0000
s_lshl1_add_u32 s80, {sTB}, {sTT}
s_mul_i32 s81, s80, {KVREC}
s_cmp_ge_u32 {sW}, 2
s_cbranch_scc1 L_loader
s_cmp_eq_u32 {sROLE}, 1
s_cbranch_scc1 L_jobK
s_cmp_eq_u32 {sROLE}, 2
s_cbranch_scc1 L_jobV
""")
    base = s.fork(); base.stv = s.stv; base.lg = []
    s.wait(vm="X1", lg="all"); s.e("s_barrier")
    s.wait(vm="all")
    for u in range(7): s.e("s_barrier")
    s.e("s_branch L_jobdone")
    ld = base.fork(); ld.stv = s.stv
    ld.e(f"""
L_loader:
s_mov_b32 {sROLE}, 0
s_lshl_b32 s82, {sTT}, 12
v_lshrrev_b32 v16, 3, v2
v_and_b32 v17, 7, v2
v_lshrrev_b32 v18, 4, v2
v_xor_b32 v18, v18, v17
v_lshrrev_b32 v19, 2, v2
v_and_b32 v19, 4, v19
v_xor_b32 v19, v19, v17
s_lshl_b32 {sT0}, {sTT}, 5
v_add_u32 v16, {sT0}, v16
v_lshlrev_b32 v17, 10, v16
v_lshl_add_u32 v24, v18, 4, v17
v_lshl_add_u32 v28, v19, 4, v17
v_mul_u32_u24 v17, 3072, v16
v_lshl_add_u32 v32, v19, 4, v17
v_add_u32 v32, 0x400, v32
""")
    for jx in range(1, 4):
        ld.e(f"v_add_u32 v{24+jx}, {jx*7168}, v24\nv_add_u32 v{28+jx}, {jx*7168}, v28\nv_add_u32 v{32+jx}, {jx*(24576-1024)}, v32")
    ld.e("v_xor_b32 v25, 64, v25\nv_xor_b32 v27, 64, v27")
    def lchunk(name):
        k, c = name[:-1], int(name[-1])
        if k == "X": ld.e(f"s_lshl_b32 {sT0}, {KC[c]}, 7\ns_add_u32 m0, s82, {L_R0 + c*8192}\ns_add_u32 {sT0}, {sT0}, s76"); vb, srd = 24, SX
        elif k == "KB": ld.e(f"s_mul_i32 {sT0}, {KC[c]}, 196608\ns_add_u32 m0, s82, {L_R1 + c*8192}\ns_add_u32 {sT0}, {sT0}, s77"); vb, srd = 32, SWB
        else: ld.e(f"s_lshl_b32 {sT0}, {KC[c]}, 16\ns_add_u32 m0, s82, {L_R0 + c*8192}\ns_add_u32 {sT0}, {sT0}, s77"); vb, srd = 28, SWQ
        for jx in range(4):
            ld.vmem(f"buffer_load_dwordx4 v{vb+jx}, {srd}, {sT0} offen offset:{jx*1024} lds", name)
    sched = [("X1", ["X4", "X5", "X6", "X7"]), ("X3", ["KB1", "KB2"]), ("X5", ["KB3", "KB4"]), ("X7", ["KB5"]),
             ("KB1", ["KB6", "KB7"]), ("KB3", ["WQ1", "WQ2"]), ("KB5", ["WQ3", "WQ4"]), ("KB7", ["WQ5", "WQ6", "WQ7"])]
    for n_, (w_, nxt) in enumerate(sched):
        ld.wait(vm=w_, lg="all" if n_ == 0 else None); ld.e("s_barrier")
        for c in nxt: lchunk(c)
    ld.e("s_branch L_jobdone")
    ACC = 24
    def job(kind):
        j = base.fork(); j.stv = s.stv
        j.e(f"L_job{kind}:")
        LAG = 3
        def ring(t): return 64 + 8 * (t % 8)
        def mm(t):
            j.wait(lg=f"f{t}")
            x, w = vr(ring(t)), vr(ring(t) + 4)
            c = "0" if t == 0 else vr(ACC, 16)
            j.e(mfma(vr(ACC, 16), w, x, c) if kind == "K" else mfma(vr(ACC, 16), x, w, c))
        for t in range(32):
            c, ks = t >> 2, t & 3
            if t % 8 == 0:
                if t == 0: j.wait(vm="X1")
                if t == 8: j.wait(vm="all")
                j.e("s_barrier")
            j.lds(f"ds_read_b128 {vr(ring(t))}, v{12+ks} offset:{c*8192}", f"f{t}")
            for rd in range(2):
                j.lds(f"ds_read_b64_tr_b16 {vr(ring(t)+4+2*rd,2)}, v20 offset:{L_OACC + c*2048 + ks*512 + rd*128}", f"f{t}")
            if kind == "K":
                j.e("s_mov_b64 exec, s[78:79]")
                j.lds(f"ds_read_b128 {vr(ring(t)+4)}, v21 offset:{L_GATE + c*128 + ks*32}", f"f{t}")
                j.e("s_mov_b64 exec, -1")
            if t >= LAG: mm(t - LAG)
        for t in range(32 - LAG, 32): mm(t)
        j.e("s_barrier")
        if kind == "K":
            j.e(f"""
v_and_b32 v16, 0x13, v6
v_bfe_u32 v17, v6, 2, 1
v_lshl_add_u32 v16, v17, 3, v16
v_bfe_u32 v17, v6, 3, 1
v_lshl_add_u32 v16, v17, 2, v16
v_lshl_add_u32 v16, v8, 5, v16
v_lshlrev_b32 v16, 4, v16
v_lshlrev_b32 v17, 2, v6
s_mov_b32 s82, {fbits(KSCALE)}
s_mov_b32 s83, {fbits(KSCALE)}
s_lshl_b32 {sT1}, s80, 7
s_add_u32 {sT1}, {sT1}, {WS_G}
""")
            for q in range(4): j.e(f"v_pk_mul_f32 {vr(ACC+2*q,2)}, {vr(ACC+2*q,2)}, s[82:83]")
            j.e(f"v_mul_f32 v{ACC+8}, {hex(LOG2E | 0x80000000)}, v{ACC+8}")
            for q in range(4): j.e(f"v_cvt_pk_bf16_f32 v{40+q}, v{ACC+2*q}, v{ACC+2*q+1}")
            j.e(f"v_exp_f32 v{ACC+8}, v{ACC+8}")
            j.vmem(f"buffer_store_dwordx4 v[40:43], v16, {SWS}, s81 offen sc1", "kvst")
            j.e(f"v_add_f32 v{ACC+8}, 1.0, v{ACC+8}\nv_rcp_f32 v{ACC+8}, v{ACC+8}\ns_nop 0")
            j.vmem(f"buffer_store_dword v{ACC+8}, v17, {SWS}, {sT1} offen sc1", "kvst")
        else:
            j.e(f"""
v_and_b32 v16, 15, v6
v_lshl_add_u32 v16, v8, 4, v16
v_lshrrev_b32 v17, 4, v6
v_lshl_add_u32 v16, v17, 5, v16
v_lshlrev_b32 v16, 4, v16
v_mov_b32 v44, 0x3f803f80
v_mov_b32 v45, 0x3f803f80
v_mov_b32 v46, 0x3f803f80
v_mov_b32 v47, 0x3f803f80
s_nop 2
""")
            for q in range(4): j.e(f"v_cvt_pk_bf16_f32 v{40+q}, v{ACC+2*q}, v{ACC+2*q+1}")
            j.e("s_mov_b64 exec, s[78:79]")
            for q in range(4): j.e(f"v_cvt_pk_bf16_f32 v{40+q}, v{ACC+8+2*q}, v{ACC+8+2*q+1}")
            j.e("s_mov_b64 exec, -1")
            j.vmem(f"buffer_store_dwordx4 v[40:43], v16, {SWS}, s81 offen offset:1024 sc1", "kvst")
            j.e("s_mov_b64 exec, 0xff")
            j.vmem(f"buffer_store_dwordx4 v[44:47], v1, {SWS}, s81 offen offset:2048 sc1", "kvst")
            j.e("s_mov_b64 exec, -1")
        j.stamp("kvstored")
        for u in range(3): j.e("s_barrier")
        if kind == "K": j.e("s_branch L_jobdone")
        return j
    jk, jv = job("K"), job("V")
    s.L += ld.L + jk.L + jv.L
    s.e("L_jobdone:")
    s.stamp("B8")
    wphi_frags(s, 56, True, 18, 19)
    s.e(f"""
s_lshl1_add_u32 {sT0}, {sTT}, {sP}
s_lshl_b32 {sT0}, {sT0}, 12
v_lshlrev_b32 v22, 6, v6
v_lshl_add_u32 v22, v8, 4, v22
v_add_u32 v22, {sT0}, v22
s_lshl_b32 {sT0}, {sW}, 11
s_add_u32 {sT0}, {sT0}, {L_R0}
v_add_u32 v23, {sT0}, v1
""")
    def ldwait(n):
        skip = lbl("lw")
        s.e(f"s_cmp_lt_u32 {sW}, 2\ns_cbranch_scc1 {skip}\ns_waitcnt vmcnt({n})\n{skip}:\ns_barrier")
    s.e(f"""
s_cmp_eq_u32 {sROLE}, 0
s_cbranch_scc1 L_nosig
s_lshl_b32 {sT0}, {sROLE}, 7
s_sub_u32 {sT0}, {sT0}, 128
v_mov_b32 v16, 1
v_mov_b32 v17, 0
s_mov_b64 exec, 1
s_waitcnt vmcnt(0)
buffer_atomic_add v16, v17, {SDBG}, {sT0} offen sc1
s_mov_b64 exec, -1
L_nosig:
""")
    s.stamp("sig")
    ldwait(24); s.stamp("B9"); ldwait(16)
    s.vm = []
    s.stamp("B10")
    T0, T1 = 24, 40
    s.lds(f"ds_read_b128 v[64:67], v23", "kb")
    s.lds(f"ds_read_b128 v[68:71], v23 offset:1024", "kb")
    s.e(f"""
v_and_b32 v16, 15, v6
v_lshl_add_u32 v16, v8, 4, v16
v_lshlrev_b32 v16, 4, v16
v_mov_b32 v17, 0x80000000
v_cmp_gt_u32 vcc, 16, v6
v_mov_b32 v18, 0x400
v_mov_b32 v19, 0x200
v_cndmask_b32 v16, v17, v16, vcc
v_cmp_eq_u32 vcc, 16, v6
s_lshr_b32 {sT0}, s2, 3
s_lshl_b32 {sT0}, {sT0}, 1
v_cndmask_b32 v4, v16, v18, vcc
v_cndmask_b32 v5, v16, v19, vcc
s_lshl4_add_u32 {sT0}, {sW}, {sT0}
""")
    s.wait(lg="kb")
    s.e(mfma(vr(T0, 16), "v[56:59]", "v[64:67]", 0))
    s.e(mfma(vr(T1, 16), "v[60:63]", "v[68:71]", 0))
    KOFF = [f"s{78+i}" for i in range(16)]
    for t in range(16):
        s.e(f"s_add_u32 {sT1}, {sT0}, {t}\ns_and_b32 {sT1}, {sT1}, 63\ns_mul_i32 {KOFF[t]}, {sT1}, {KVREC}")
    sm = softmax_max_exp(s, [T0, T1], 16)
    for k in range(3):
        for i, T in enumerate((T0, T1)):
            for sg in range(2):
                b = T + 8 * sg; d = 64 + 4 * i + 2 * sg
                if k == 0: sm.append(f"v_pk_add_f32 {vr(d,2)}, {vr(b,2)}, {vr(b+2,2)}")
                else: sm.append(f"v_pk_add_f32 {vr(d,2)}, {vr(d,2)}, {vr(b+2+2*k,2)}")
    for i in range(2):
        for sg in range(2):
            d = 64 + 4 * i + 2 * sg
            sm.append(f"v_add_f32 v{16+2*i+sg}, v{d}, v{d+1}")
    sm.append("s_nop 1")
    for m in (16, 18): sm.append(f"v_permlane32_swap_b32 v{m}, v{m+1}")
    for m in (16, 18): sm.append(f"v_add_f32 v{m}, v{m}, v{m+1}")
    for m in (16, 18): sm.append(f"v_rcp_f32 v{m}, v{m}")
    sm.append("s_nop 0")
    for m in (16, 18): sm.append(f"v_mov_b32 v{m+1}, v{m}")
    sm.append("s_nop 1")
    for m in (16, 18): sm.append(f"v_permlane32_swap_b32 v{m}, v{m+1}")
    for i, T in enumerate((T0, T1)):
        for j in range(8):
            sel = "op_sel_hi:[1,0]" if j < 4 else "op_sel:[0,1] op_sel_hi:[1,1]"
            sm.append(f"v_pk_mul_f32 {vr(T+2*j,2)}, {vr(T+2*j,2)}, {vr(16+2*i,2)} {sel}")
        for j in range(8):
            sm.append(f"v_cvt_pk_bf16_f32 v{64+8*i+j}, v{T+2*j}, v{T+2*j+1}")
    cut1, cut2 = 30, 66
    s.e("\n".join(sm[:cut1]))
    s.stamp("preB11"); ldwait(8); s.stamp("B11")
    s.e("\n".join(sm[cut1:cut2]))
    s.stamp("preB12"); ldwait(0); s.stamp("B12")
    s.vm = []
    s.e("\n".join(sm[cut2:]))
    for a in range(2):
        for sg in range(2):
            s.lds(f"ds_write_b128 v22, {vr(64+8*a+4*sg)} offset:{L_OACC + a*2048 + sg*32}")
    s.e(f"""
v_mov_b32 v6, 0xdddddddd
v_mov_b32 v60, 0
v_mov_b32 v61, 0
v_add_u32 v3, {L_Q}, v1
s_mul_i32 s73, {sW}, 2304
v_lshlrev_b32 v62, 2, v2
v_add_u32 v62, s73, v62
v_and_b32 v16, 32, v2
v_lshlrev_b32 v16, 2, v16
""")
    s.wait(lg="all"); s.stamp("smdone"); s.e("s_barrier")
    s.stamp("B13")
    S0, S1, O, Q = 8, 24, 40, 56
    top, done = lbl("kvp"), lbl("kvd")
    s.lds(f"ds_read_b128 {vr(Q)}, v3", "q")
    s.e(f"{top}:\nbuffer_load_dword v17, v16, {SDBG}, 0 offen sc1\ns_waitcnt vmcnt(0)\nv_cmp_gt_u32 vcc, 64, v17\ns_cbranch_vccz {done}")
    spin_tail(s, top, done, 1)
    s.stamp("kvready")
    def ld(t):
        s.vmem(f"buffer_load_dwordx4 {vr(64+4*t)}, v1, {SWS}, {KOFF[t]} offen sc1", f"K{t}")
        s.vmem(f"buffer_load_dwordx4 {ar(8*t)}, v4, {SWS}, {KOFF[t]} offen offset:1024 sc1", f"Vl{t}")
        s.vmem(f"buffer_load_dwordx4 {ar(8*t+4)}, v5, {SWS}, {KOFF[t]} offen offset:1536 sc1", f"Vh{t}")
    AHEAD = 5
    for t in range(AHEAD): ld(t)
    s.stamp("ldissued")
    zero = f"v_mfma_f32_32x32x8_bf16 {vr(O,16)}, v[60:61], v[60:61], 0"
    def smf(a, b): return f"v_smfmac_f32_32x32x32_bf16 {vr(O,16)}, {ar(a)}, {vr(b,8)}, v6"
    s.e(zero)
    s.wait(vm="K0", lg="all")
    s.e(mfma(vr(S0, 16), vr(64), vr(Q), 0))
    s.e("s_nop 11")
    s.stamp("S0")
    def dump(s):
        for r in range(9): s.e(f"ds_write_addtid_b32 v{O+r} offset:{r*256}")
    def step(s, first):
        for t in range(16):
            Sc, Sn = (S0, S1) if t % 2 == 0 else (S1, S0)
            tn = (t + 1) % 16; tp = (t - 1) % 16
            pos_lo = 13 if (t == 0 and not first) else 11
            for i in range(16):
                if i == 2 and not (first and t == 0):
                    s.e(smf(8 * tp + 4, Sn + 8))
                if i == 5:
                    if first and t < 15: s.wait(vm=f"K{tn}")
                    if t == 15: s.e("s_waitcnt lgkmcnt(0)")
                    s.e(mfma(vr(Sn, 16), vr(64 + 4 * tn), vr(Q), 0))
                    if first and t + AHEAD < 16: ld(t + AHEAD)
                    if t == 14:
                        s.e(f"ds_read_b128 {vr(Q)}, v3 offset:1024\nds_read_b32 v63, v62 offset:2048")
                    if t == 15:
                        s.e("v_cmp_neq_f32 vcc, -1.0, v63\nv_add_u32 v3, 0x400, v3")
                if i == 8 and t == 0 and not first:
                    dump(s); s.e(zero)
                if i == pos_lo:
                    if first and t == 15: s.wait(vm="all")
                    s.e(smf(8 * t, Sc))
                s.e(f"v_exp_f32 v{Sc+i}, v{Sc+i}")
    s.e(f"s_mov_b32 m0, s73\ns_movk_i32 s76, 9216\ns_mov_b32 s77, 7")
    step(s, True)
    s.stamp("step0")
    s.e(".p2align 6\nL_att:\ns_cbranch_vccnz L_attwait\nL_attgo:\nv_add_u32 v62, s76, v62")
    step(s, False)
    s.e(f"s_add_u32 m0, m0, s76\ns_sub_u32 s76, 0, s76\ns_sub_u32 s77, s77, 1\ns_cmp_lg_u32 s77, 0\ns_cbranch_scc1 L_att")
    s.e("s_cbranch_vccnz L_attwait\nL_attfin:")
    s.e(smf(8 * 15 + 4, S1 + 8))
    s.e("s_nop 11")
    dump(s)
    s.stamp("T")
    if STAMP: write_stamps(s)
    if CAL: cal_end(s)
    s.e("s_endpgm")
    top, done = "L_attwait", lbl("awd")
    s.e(f"{top}:\nds_read_b32 v63, v62 offset:2048\ns_waitcnt lgkmcnt(0)\nv_cmp_neq_f32 vcc, -1.0, v63\ns_cbranch_vccz {done}")
    spin_tail(s, top, done, 1)
    s.e("s_cmp_lg_u32 s77, 0\ns_cbranch_scc1 L_attgo\ns_branch L_attfin")
    return s

def cal_end(s):
    role, name, wg = CAL.split(":")
    if role != s.stv: return
    s.e(f"""
s_waitcnt vmcnt(0) lgkmcnt(0)
s_cmp_eq_u32 s2, {wg}
s_cbranch_scc0 L_calx
s_and_b32 s69, {sW}, 3
s_cmp_eq_u32 s69, 3
s_cbranch_scc0 L_calx
s_sub_u32 s94, s94, s96
s_lshl_b32 s94, s94, 3
s_memtime s[96:97]
s_waitcnt lgkmcnt(0)
L_calw:
s_sleep 4
s_memtime s[98:99]
s_waitcnt lgkmcnt(0)
s_sub_u32 s98, s98, s96
s_cmp_lt_u32 s98, s94
s_cbranch_scc1 L_calw
L_calx:
""")

def write_stamps(s):
    s.e(f"""
v_writelane_b32 {s.stv}, s96, 0
v_writelane_b32 {s.stv}, s94, 1
s_lshl3_add_u32 {sT0}, s2, {sW}
s_lshl_b32 {sT0}, {sT0}, 8
s_add_u32 {sT0}, {sT0}, {WS_ST}
v_lshlrev_b32 v0, 2, v2
buffer_store_dword {s.stv}, v0, {SWS}, {sT0} offen
""")

def h_path(s):
    s.stv = "v31"
    s.e("L_H:\ns_setprio 2")
    if STAMP: s.e("v_mov_b32 v31, 0")
    s.stamp("entry")
    sHW = "s78"
    vW0, vW1, vWQ0, vCNT, vONE, vL4, vLrow, vIDX = 18, 19, 20, 21, 22, 23, 24, 25
    s.e(f"""
s_and_b32 {sHW}, {sW}, 3
v_lshl_add_u32 v16, v8, 3, v9
v_lshlrev_b32 v16, 7, v16
v_lshrrev_b32 v17, 1, v9
v_xor_b32 v17, {sP}, v17
v_lshl_add_u32 v16, v17, 6, v16
v_bfe_u32 v11, v2, 4, 1
v_lshl_add_u32 v16, v11, 5, v16
v_lshl_add_u32 v16, v10, 3, v16
v_add_u32 v{vW0}, {L_R0}, v16
v_add_u32 v{vW1}, {L_R1}, v16
v_add_u32 v{vWQ0}, {L_Q}, v16
v_mov_b32 v{vCNT}, {L_CNT}
v_mov_b32 v{vONE}, 1
v_lshlrev_b32 v{vL4}, 2, v2
v_lshlrev_b32 v{vLrow}, 2, v6
v_mov_b32 v{vIDX}, 0xdddddddd
v_mov_b32 v26, 0
v_mov_b32 v27, 0
s_lshl_b32 {sT0}, {sHW}, 11
s_add_u32 {sT0}, {sT0}, {L_R0}
v_add_u32 v28, {sT0}, v1
s_lshl2_add_u32 {sT0}, {sP}, {sTT}
s_lshl_b32 {sT0}, {sT0}, 10
s_add_u32 {sT0}, {sT0}, {L_Q}
v_add_u32 v29, {sT0}, v1
""")
    for u in range(4):
        if u == 0: s.wait(vm="X1")
        if u == 1: s.wait(vm="all")
        s.e("s_barrier")
        s.stamp(f"B{u+1}")
        for t in range(8 * u, 8 * u + 8):
            s.lds(f"ds_read_b128 {ar(4*t)}, v{12 + (t & 3)} offset:{(t >> 2)*8192}", "x")
    A0, A1 = 64, 80
    LAG = 4
    def ring(t): return 32 + 4 * (t % 8)
    def gemm(steps, pre=None, post=None):
        n = len(steps)
        def mm(t):
            s.wait(lg=f"w{t}")
            s.e(steps[t][3].replace("WF", vr(ring(t))))
            if post: post(t)
        for t in range(n):
            if pre: pre(t)
            a, off, rs, _ = steps[t]
            for rd in range(2):
                s.lds(f"ds_read_b64_tr_b16 {vr(ring(t)+2*rd,2)}, v{a} offset:{off + rd*rs}", f"w{t}")
            if t >= LAG: mm(t - LAG)
        for t in range(n - LAG, n): mm(t)
    steps = []
    for t in range(32):
        steps.append((vW1, t * 2048, 512, mfma(vr(A0, 16), "WF", ar(4 * t), "0" if t == 0 else vr(A0, 16))))
    for t in range(32):
        steps.append((vWQ0 if t < 4 else vW0, t * 2048, 512, mfma(vr(A1, 16), "WF", ar(4 * t), "0" if t == 0 else vr(A1, 16))))
    def pre(t):
        if t % 8: return
        u = t // 8
        if u == 0: s.wait(lg="all")
        if u == 5: s.wait(lg="kbw")
        s.e("s_barrier")
        if u == 0: s.stamp("B5")
    def post(t):
        if t in (33, 34):
            a = t - 33
            for q in range(4): s.e(f"v_cvt_pk_bf16_f32 v{96+4*a+q}, v{A0+8*a+2*q}, v{A0+8*a+2*q+1}")
            s.lds(f"ds_write_b128 v28, {vr(96+4*a)} offset:{a*1024}", "kbw")
    gemm(steps, pre, post)
    s.e(f"""
v_lshl_add_u32 v16, v8, 2, v9
v_lshlrev_b32 v30, 6, v16
v_lshl_add_u32 v30, v11, 5, v30
v_lshl_add_u32 v30, v10, 3, v30
s_lshl_b32 {sT0}, {sHW}, 11
v_add_u32 v30, {sT0}, v30
s_nop 5
""")
    for a in range(2):
        for q in range(4): s.e(f"v_cvt_pk_bf16_f32 v{104+4*a+q}, v{A1+8*a+2*q}, v{A1+8*a+2*q+1}")
        s.lds(f"ds_write_b128 v29, {vr(104+4*a)} offset:{a*2048}")
    s.wait(lg="all"); s.stamp("qdone"); s.e("s_barrier")
    s.stamp("B13")
    PHT = 96
    for tt in range(2):
        for th in range(2):
            for rd in range(2):
                s.lds(f"ds_read_b64_tr_b16 {vr(PHT+8*tt+4*th+2*rd,2)}, v30 offset:{L_OACC + tt*8192 + th*1024 + rd*512}")
    def dma_group(srd, voff, rowbytes, coloff_s, colimm, region, tag, natural):
        for c in range(8):
            s.e(f"s_mul_i32 {sT0}, {KC[c]}, {64*rowbytes}\ns_add_u32 {sT0}, {sT0}, {coloff_s}")
            if colimm: s.e(f"s_add_u32 {sT0}, {sT0}, {colimm}")
            if natural: s.e(f"s_lshl_b32 {sT1}, {KC[c]}, 13\ns_add_u32 {sT1}, {sT1}, {sW1K}\ns_add_u32 m0, {sT1}, {region}")
            else: s.e(f"s_add_u32 m0, {sW1K}, {region + c*8192}")
            s.e("s_nop 0")
            s.vmem(f"buffer_load_dwordx4 v{voff}, {srd}, {sT0} offen lds", tag)
            s.e(f"s_sub_u32 m0, m0, 4096\ns_nop 0")
            s.vmem(f"buffer_load_dwordx4 v{voff+8}, {srd}, {sT0} offen lds", tag)
    s.e(f"v_subrev_u32 v12, {32*1024}, v4\nv_subrev_u32 v13, {32*3072}, v5")
    dma_group(SWB, 5, 3072, "s77", 2048, L_R1, "VB", False)
    dma_group(SWB, 5, 3072, "s77", 0, L_R0, "QB", False)
    s.stamp("dmaiss")
    nsb = [0]
    def softbar(sleep=1):
        nsb[0] += 1
        top, done = lbl("sb"), lbl("sbd")
        s.e(f"s_mov_b64 exec, 1\nds_add_u32 v{vCNT}, v{vONE}\ns_mov_b64 exec, -1")
        s.e(f"{top}:\nds_read_b32 v16, v{vCNT}\ns_waitcnt lgkmcnt(0)\nv_readfirstlane_b32 {sT0}, v16\ns_cmp_ge_u32 {sT0}, {4*nsb[0]}\ns_cbranch_scc1 {done}")
        spin_tail(s, top, done, sleep)
        s.lg = []
        s.stamp(f"S{nsb[0]}")
    def poll(vaddr, srd, soff, val, sleep=2, imm=0):
        top, done = lbl("pl"), lbl("pld")
        o = f" offset:{imm}" if imm else ""
        s.e(f"{top}:\nbuffer_load_dword v16, v{vaddr}, {srd}, {soff} offen{o} sc1\ns_waitcnt vmcnt(0)\nv_cmp_gt_u32 vcc, {val}, v16\ns_cbranch_vccz {done}")
        spin_tail(s, top, done, sleep)
        s.vm = []
    sFL = "s79"
    def setflag(k):
        s.e(f"s_mov_b64 exec, 1")
        s.vmem(f"buffer_store_dword v{vONE}, v26, {SWS}, {sFL} offen offset:{4*k} sc1")
        s.e("s_mov_b64 exec, -1")
    sJ, sOT = "s80", "s81"
    def fin(hw, j):
        skip = lbl("nf")
        s.e(f"s_cmp_eq_u32 {sHW}, {hw}\ns_cbranch_scc0 {skip}\ns_mov_b32 {sJ}, {j}\ns_call_b64 s[92:93], L_fin\n{skip}:")
    s.e(f"""
s_lshl3_add_u32 {sFL}, {sTB}, {sHG}
s_lshl2_add_u32 {sFL}, {sFL}, {sHW}
s_lshl_b32 {sFL}, {sFL}, 7
s_add_u32 {sFL}, {sFL}, {WS_FL}
s_lshl_b32 {sOT}, {sHG}, 12
s_add_u32 {sOT}, {sOT}, s76
s_add_u32 {sOT}, {sOT}, {WS_OA}
""")
    s.wait(vm="VB", lg="all")
    s.stamp("vbland")
    softbar()
    s.e(f"""
s_cmp_ge_u32 {sHW}, 2
s_cbranch_scc1 L_clr
s_mul_i32 {sT0}, {sHW}, 9216
v_add_u32 v16, {sT0}, v{vL4}
v_mov_b32 v17, -1.0
ds_write2st64_b32 v16, v17, v17 offset0:8 offset1:17
ds_write2st64_b32 v16, v17, v17 offset0:26 offset1:35
s_branch L_clrd
L_clr:
v_mov_b32 v32, -1
v_mov_b32 v33, -1
v_mov_b32 v34, -1
v_mov_b32 v35, -1
s_lshl_b32 {sT0}, {sTT}, 15
s_add_u32 {sT0}, {sT0}, {sOT}
buffer_store_dwordx4 v[32:35], v1, {SWS}, {sT0} offen offset:3072 sc1
s_nop 0
L_clrd:
s_setprio 0
""")
    gemm([(vW1, t * 2048, 512, mfma(vr(A0, 16), ar(4 * t), "WF", "0" if t == 0 else vr(A0, 16))) for t in range(32)])
    s.e(f"""
s_setprio 2
s_lshl1_add_u32 {sT0}, {sTT}, {sP}
s_lshl_b32 {sT0}, {sT0}, 11
s_add_u32 {sT0}, {sT0}, {L_R1}
v_add_u32 v28, {sT0}, v1
v_lshl_add_u32 v29, v8, 5, v6
s_and_b32 {sT0}, {sHW}, 1
s_lshl_b32 {sT0}, {sT0}, 8
s_lshr_b32 {sT1}, {sHW}, 1
s_lshl_b32 {sT1}, {sT1}, 11
s_add_u32 {sT0}, {sT0}, {sT1}
s_add_u32 {sT0}, {sT0}, {L_R1}
v_lshlrev_b32 v29, 4, v29
v_add_u32 v29, {sT0}, v29
""")
    for q in range(8): s.e(f"v_cvt_pk_bf16_f32 v{112+q}, v{A0+2*q}, v{A0+2*q+1}")
    s.wait(vm="all", lg="all")
    s.stamp("vbgemm")
    softbar()
    s.lds(f"ds_write_b128 v28, v[112:115]"); s.lds(f"ds_write_b128 v28, v[116:119] offset:1024")
    for f in range(4): s.lds(f"ds_read_b128 {vr(32+4*f)}, v{vCNT} offset:16")
    s.wait(lg="all")
    softbar()
    s.e("s_mov_b32 s82, 0xffff\ns_mov_b32 s83, 0xffff\ns_mov_b64 exec, s[82:83]")
    for tt in range(2):
        for th in range(2):
            s.lds(f"ds_read_b128 {vr(32+8*tt+4*th)}, v29 offset:{tt*4096 + th*1024}")
    s.e(f"""
s_mov_b64 exec, -1
s_lshl_b32 {sT0}, {sHW}, 12
s_add_u32 {sT0}, {sT0}, {L_R1 + 8192}
v_lshlrev_b32 v28, 7, v6
v_lshl_add_u32 v28, v8, 6, v28
v_add_u32 v28, {sT0}, v28
v_add_u32 v29, {sT0}, v1
v_lshrrev_b32 v16, 3, v2
v_and_b32 v17, 7, v2
v_lshlrev_b32 v16, 12, v16
v_lshl_add_u32 v30, v17, 4, v16
s_lshl2_add_u32 s84, {sHG}, {sHW}
s_mul_i32 s85, s84, {17*4096}
s_add_u32 s85, s85, {WS_KVP}
s_lshl_b32 {sT1}, {sTB}, 7
s_add_u32 {sT1}, {sT1}, s85
""")
    s.wait(lg="all")
    for f in range(4): s.e(mfma(vr(A1, 16), vr(PHT + 4 * f), vr(32 + 4 * f), "0" if f == 0 else vr(A1, 16)))
    s.e("s_nop 11")
    for q in range(4): s.lds(f"ds_write_b128 v28, {vr(A1+4*q)} offset:{16*q}")
    for t in range(3): s.lds(f"ds_read_b128 {vr(32+4*t)}, v29 offset:{1024*t}")
    s.e("v_and_b32 v17, 32, v2\nv_lshlrev_b32 v17, 2, v17")
    s.stamp("kvmma")
    poll(17, SDBG, "0", 64)
    s.wait(lg="all")
    s.vmem(f"buffer_store_dwordx4 v[32:35], v30, {SWS}, {sT1} offen sc1")
    s.e(f"s_add_u32 {sT1}, {sT1}, 32768")
    s.vmem(f"buffer_store_dwordx4 v[36:39], v30, {SWS}, {sT1} offen sc1")
    s.e(f"s_add_u32 {sT1}, {sT1}, 32768\ns_mov_b64 exec, 0xff")
    s.vmem(f"buffer_store_dwordx4 v[40:43], v30, {SWS}, {sT1} offen sc1")
    s.e("s_mov_b64 exec, -1\ns_nop 0")
    s.stamp("kvp")
    fin(0, 0)
    s.stamp("fin0")
    s.e("s_setprio 0")
    def post2(t):
        if t == 15:
            s.wait(vm="all"); setflag(0)
    gemm([(vW0, t * 2048, 512, mfma(vr(A0, 16), "WF", ar(4 * t), "0" if t == 0 else vr(A0, 16))) for t in range(32)], None, post2)
    s.e("s_setprio 2")
    wphi_frags(s, 48, False, 28, 29)
    for q in range(8): s.e(f"v_cvt_pk_bf16_f32 v{56+q}, v{A0+2*q}, v{A0+2*q+1}")
    T0, T1 = 96, 112
    s.e("s_nop 0")
    s.e(mfma(vr(T0, 16), "v[48:51]", "v[56:59]", 0))
    s.e(mfma(vr(T1, 16), "v[52:55]", "v[60:63]", 0))
    s.stamp("qbgemm")
    s.e(f"""
s_cmp_gt_u32 {sTB}, 16
s_cbranch_scc1 L_noA
v_lshlrev_b32 v17, 12, v6
s_lshl_b32 {sT1}, s84, 7
s_add_u32 {sT1}, {sT1}, {WS_FL}
""")
    poll(17, SWS, sT1, 1)
    s.stamp("kvpok")
    s.e(f"s_lshl_b32 {sT1}, {sTB}, 12\ns_add_u32 {sT1}, {sT1}, s85")
    for t in range(4): s.vmem(f"buffer_load_dwordx4 {vr(32+4*t)}, v1, {SWS}, {sT1} offen offset:{1024*t} sc1")
    s.e(f"""
v_lshl_add_u32 v16, v11, 1, v8
v_lshl_add_u32 v16, v10, 3, v16
v_bfe_u32 v17, v2, 2, 1
v_lshl_add_u32 v16, v17, 2, v16
v_lshlrev_b32 v16, 1, v16
s_mul_i32 {sT1}, s84, 17
s_add_u32 {sT1}, {sT1}, {sTB}
s_lshl_b32 {sT1}, {sT1}, 7
s_add_u32 {sT1}, {sT1}, {WS_KVF}
s_waitcnt vmcnt(0)
v_pk_add_f32 v[32:33], v[32:33], v[36:37]
v_pk_add_f32 v[34:35], v[34:35], v[38:39]
v_pk_add_f32 v[40:41], v[40:41], v[44:45]
v_pk_add_f32 v[42:43], v[42:43], v[46:47]
v_pk_add_f32 v[32:33], v[32:33], v[40:41]
v_pk_add_f32 v[34:35], v[34:35], v[42:43]
s_nop 1
v_permlane32_swap_b32 v32, v33
v_permlane32_swap_b32 v34, v35
v_add_f32 v32, v32, v33
v_add_f32 v34, v34, v35
s_nop 1
v_permlane16_swap_b32 v32, v34
v_add_f32 v32, v32, v34
s_nop 1
v_add_f32_dpp v32, v32, v32 row_ror:8 row_mask:0xf bank_mask:0xf
v_cvt_pk_bf16_f32 v32, v32, v32
buffer_store_short v32, v16, {SWS}, {sT1} offen sc1
s_waitcnt vmcnt(0)
""")
    s.vm = []
    setflag(1)
    s.e("L_noA:")
    s.vm = []
    s.stamp("stageA")
    softbar()
    dma_group(SOB, 4, 1024, "s77", 0, L_R1, "WO", True)
    dma_group(SOA, 4, 1024, "s77", 0, L_R0, "WO", True)
    s.stamp("wodma")
    s.e("\n".join(softmax_max_exp(s, [T0, T1], 32)))
    s.stamp("qsm")
    fin(1, 1)
    fin(2, 2)
    s.stamp("fin12")
    s.e(f"""
v_min_u32 v16, 16, v6
v_lshlrev_b32 v17, 12, v16
v_lshl_add_u32 v17, v8, 7, v17
v_lshlrev_b32 v28, 7, v16
v_lshl_add_u32 v28, v8, 4, v28
s_lshl1_add_u32 s86, {sHG}, {sP}
s_lshl_b32 {sT1}, s86, 8
s_add_u32 {sT1}, {sT1}, {WS_FL}
""")
    for f in range(4): s.lds(f"ds_read_b128 {vr(32+4*f)}, v{vCNT} offset:16")
    poll(17, SWS, sT1, 1, imm=4)
    s.stamp("kvfok")
    s.e(f"""
s_mul_i32 {sT1}, s86, {2*17*128}
s_add_u32 {sT1}, {sT1}, {WS_KVF}
s_mov_b32 s82, 0x5555ffff
s_mov_b32 s83, 0x5555ffff
""")
    s.wait(lg="all")
    s.e("s_mov_b64 exec, s[82:83]")
    for a in range(2):
        for sg in range(2):
            s.vmem(f"buffer_load_dwordx4 {vr(32+8*a+4*sg)}, v28, {SWS}, {sT1} offen offset:{a*17*128 + sg*32} sc1")
    s.e(f"""
s_mov_b64 exec, -1
s_lshl_b32 {sT1}, {sTT}, 15
s_add_u32 {sT1}, {sT1}, {sOT}
s_lshl_b32 {sT2}, {sP}, 11
s_add_u32 {sT1}, {sT1}, {sT2}
s_add_u32 {sT1}, {sT1}, {WS_OB - WS_OA}
s_mov_b32 {sT2}, {fbits(1e-6)}
""")
    for a in range(2):
        T = (T0, T1)[a]
        for D in (A0, A1): s.e(f"v_mfma_f32_32x32x8_bf16 {vr(D,16)}, v[26:27], v[26:27], 0")
        if a == 0: s.wait(vm="all")
        s.e("s_nop 9")
        s.e(f"v_smfmac_f32_32x32x32_bf16 {vr(A0,16)}, {vr(32+8*a)}, {vr(T,8)}, v{vIDX}")
        s.e(f"v_smfmac_f32_32x32x32_bf16 {vr(A1,16)}, {vr(36+8*a)}, {vr(T+8,8)}, v{vIDX}")
        s.e(f"""
s_nop 11
v_rcp_f32 v56, v{A0+9}
v_rcp_f32 v57, v{A1+9}
v_fma_f32 v58, v{A0+8}, v56, {sT2}
v_fmac_f32 v58, v{A1+8}, v57
v_rcp_f32 v58, v58
s_nop 0
v_pk_mul_f32 v[56:57], v[56:57], v[58:59] op_sel_hi:[1,0]
""")
        for q in range(4): s.e(f"v_pk_mul_f32 {vr(A0+2*q,2)}, {vr(A0+2*q,2)}, v[56:57] op_sel_hi:[1,0]")
        for q in range(4): s.e(f"v_pk_fma_f32 {vr(A0+2*q,2)}, {vr(A1+2*q,2)}, v[56:57], {vr(A0+2*q,2)} op_sel:[0,1,0] op_sel_hi:[1,1,1]")
        for q in range(4): s.e(f"v_cvt_pk_bf16_f32 v{48+4*a+q}, v{A0+2*q}, v{A0+2*q+1}")
        s.vmem(f"buffer_store_dwordx4 {vr(48+4*a)}, v1, {SWS}, {sT1} offen offset:{a*1024} sc1")
    s.wait(vm="all")
    setflag(2)
    s.stamp("ob")
    softbar()
    fin(3, 3)
    fin(0, 4)
    s.stamp("fin34")
    skip = lbl("ae")
    s.e(f"s_cmp_eq_u32 {sHW}, 1\ns_cbranch_scc1 {skip}\ns_waitcnt vmcnt(0)")
    setflag(3)
    s.e(f"{skip}:")
    vP0, vP1, vGF = 18, 19, 28
    s.e(f"""
v_lshl_add_u32 v16, v8, 2, v9
v_lshlrev_b32 v16, 7, v16
v_lshrrev_b32 v17, 1, v9
v_xor_b32 v17, {sP}, v17
v_lshl_add_u32 v16, v17, 6, v16
v_and_b32 v17, 1, v10
v_lshl_add_u32 v16, v17, 5, v16
v_lshl_add_u32 v16, v11, 4, v16
v_lshrrev_b32 v17, 1, v10
v_lshl_add_u32 v16, v17, 3, v16
v_add_u32 v{vP0}, {L_R0}, v16
v_add_u32 v{vP1}, {L_R1}, v16
v_and_b32 v{vGF}, 15, v2
v_lshlrev_b32 v{vGF}, 8, v{vGF}
s_lshl_b32 s87, {sTB}, 12
s_lshl_b32 {sT0}, {sTT}, 7
s_add_u32 s87, s87, {sT0}
s_add_u32 s87, s87, {WS_FL}
s_lshl_b32 s88, {sTT}, 15
s_add_u32 s88, s88, s76
s_add_u32 s88, s88, {WS_OA}
""")
    poll(vGF, SWS, "s87", 1, imm=8)
    s.stamp("obok")
    BA, AA = 96, 112
    s.e(f"s_add_u32 {sT1}, s88, {WS_OB - WS_OA}\ns_lshl1_add_u32 {sT2}, {sTB}, {sTT}\ns_lshl_b32 {sT2}, {sT2}, 7\ns_add_u32 {sT2}, {sT2}, {WS_G}")
    s.vmem(f"buffer_load_dword v30, v{vLrow}, {SWS}, {sT2} offen sc1", "g")
    for t in range(32):
        if t and t % 4 == 0: s.e(f"s_add_u32 {sT1}, {sT1}, 4096")
        s.vmem(f"buffer_load_dwordx4 {ar(4*t)}, v1, {SWS}, {sT1} offen offset:{(t & 3)*1024} sc1", f"ob{t}")
    s.wait(vm="all")
    s.stamp("obld")
    s.e("s_setprio 0")
    gemm([(vP1, t * 2048, 1024, mfma(vr(BA, 16), "WF", ar(4 * t), "0" if t == 0 else vr(BA, 16))) for t in range(32)])
    s.e("s_setprio 2")
    s.stamp("p3b")
    skip = lbl("ae")
    s.e(f"s_cmp_eq_u32 {sHW}, 1\ns_cbranch_scc0 {skip}\ns_mov_b32 {sJ}, 5\ns_call_b64 s[92:93], L_fin\ns_waitcnt vmcnt(0)")
    setflag(3)
    s.e(f"{skip}:")
    poll(vGF, SWS, "s87", 1, imm=12)
    s.stamp("aeok")
    early = [t for t in range(32) if t & 3 != 3]
    s.e(f"s_mov_b32 {sT1}, s88")
    for i, t in enumerate(early):
        if t and t % 4 == 0: s.e(f"s_add_u32 {sT1}, {sT1}, 4096")
        s.vmem(f"buffer_load_dwordx4 {ar(4*i)}, v1, {SWS}, {sT1} offen offset:{(t & 3)*1024} sc1")
    for i in range(8):
        for rd in range(2):
            s.lds(f"ds_read_b64_tr_b16 {ar(96+4*i+2*rd,2)}, v{vP0} offset:{(4*i+3)*2048 + rd*1024}")
    s.e(f"v_sub_f32 v16, 1.0, v30")
    for q in range(8): s.e(f"v_pk_mul_f32 {vr(BA+2*q,2)}, {vr(BA+2*q,2)}, v[16:17] op_sel_hi:[1,0]")
    s.wait(vm="all", lg="all")
    s.stamp("aeld")
    fin(2, 6)
    fin(3, 7)
    s.stamp("fin67")
    softbar(3)
    gemm([(vP0, t * 2048, 1024, mfma(vr(AA, 16), "WF", ar(4 * i), "0" if i == 0 else vr(AA, 16))) for i, t in enumerate(early)])
    s.stamp("p3a")
    top, done = lbl("lt"), lbl("ltd")
    s.e(f"""
v_lshlrev_b32 v17, 10, v6
v_lshl_add_u32 v17, v8, 5, v17
s_lshl_b32 {sT2}, {sTT}, 15
s_add_u32 {sT2}, {sT2}, s76
s_add_u32 {sT2}, {sT2}, s77
s_lshl_b32 {sT3}, {sP}, 6
s_add_u32 {sT2}, {sT2}, {sT3}
{top}:
s_mov_b32 {sT1}, s88
""")
    for i in range(8):
        if i: s.e(f"s_add_u32 {sT1}, {sT1}, 4096")
        s.e(f"buffer_load_dwordx4 {vr(64+4*i)}, v1, {SWS}, {sT1} offen offset:3072 sc1")
    for i in range(8):
        s.e(f"s_waitcnt vmcnt({7-i})")
        if i == 0: s.e("v_max3_u32 v16, v64, v65, v66\nv_max_u32 v16, v16, v67")
        else: s.e(f"v_max3_u32 v16, v16, v{64+4*i}, v{65+4*i}\nv_max3_u32 v16, v16, v{66+4*i}, v{67+4*i}")
    s.e(f"v_cmp_eq_u32 vcc, -1, v16\ns_cbranch_vccz {done}")
    spin_tail(s, top, done, 0)
    s.stamp("late")
    for i in range(8): s.e(mfma(vr(AA, 16), ar(96 + 4 * i), vr(64 + 4 * i), vr(AA, 16)))
    s.e("s_nop 11")
    for q in range(8): s.e(f"v_pk_fma_f32 {vr(AA+2*q,2)}, {vr(AA+2*q,2)}, v[30:31], {vr(BA+2*q,2)} op_sel_hi:[1,0,1]")
    for q in range(8): s.e(f"v_cvt_pk_bf16_f32 v{32+q}, v{AA+2*q}, v{AA+2*q+1}")
    s.e(f"buffer_store_dwordx4 v[32:35], v17, {SOUT}, {sT2} offen\nbuffer_store_dwordx4 v[36:39], v17, {SOUT}, {sT2} offen offset:16")
    if STAMP or CAL:
        s.e("s_waitcnt vmcnt(0)"); s.stamp("end")
    if STAMP: write_stamps(s)
    if CAL: cal_end(s)
    s.e("L_exit:\ns_endpgm")
    top, done = lbl("fp"), lbl("fpd")
    s.e(f"""
L_fin:
s_and_b32 {sT0}, {sJ}, 1
s_mul_i32 {sT1}, {sT0}, 9216
v_add_u32 v14, {sT1}, v{vL4}
v_add_u32 v15, {sT1}, v{vLrow}
s_lshl_b32 {sT0}, {sT0}, 15
s_lshr_b32 {sT1}, {sJ}, 1
s_lshl_b32 {sT1}, {sT1}, 10
s_add_u32 {sT0}, {sT0}, {sT1}
s_add_u32 s89, {sT0}, {sOT}
{top}:
ds_read2st64_b32 v[64:65], v15 offset0:8 offset1:17
ds_read2st64_b32 v[66:67], v15 offset0:26 offset1:35
s_waitcnt lgkmcnt(0)
v_min3_f32 v16, v64, v65, v66
v_min_f32 v16, v16, v67
v_cmp_eq_f32 vcc, -1.0, v16
s_cbranch_vccz {done}
""")
    spin_tail(s, top, done, 2)
    for cw in range(4):
        for q in range(4):
            s.e(f"ds_read2st64_b32 {vr(32+8*cw+2*q,2)}, v14 offset0:{9*cw+2*q} offset1:{9*cw+2*q+1}")
    s.e(f"""
v_pk_add_f32 v[64:65], v[64:65], v[66:67]
v_mov_b32 v17, -1.0
v_add_f32 v64, v64, v65
s_mov_b32 {sT0}, {fbits(2.0**-60)}
s_mov_b32 {sT1}, {fbits(2.0**64)}
v_cmp_nge_f32 s[82:83], v64, {sT0}
v_cmp_nle_f32 s[90:91], v64, {sT1}
s_waitcnt lgkmcnt(0)
ds_write2st64_b32 v14, v17, v17 offset0:8 offset1:17
ds_write2st64_b32 v14, v17, v17 offset0:26 offset1:35
""")
    for q in range(4): s.e(f"v_pk_add_f32 {vr(32+2*q,2)}, {vr(32+2*q,2)}, {vr(40+2*q,2)}")
    for q in range(4): s.e(f"v_pk_add_f32 {vr(48+2*q,2)}, {vr(48+2*q,2)}, {vr(56+2*q,2)}")
    for q in range(4): s.e(f"v_pk_add_f32 {vr(32+2*q,2)}, {vr(32+2*q,2)}, {vr(48+2*q,2)}")
    s.e(f"""
v_pk_mul_f32 v[40:41], v[32:33], v[26:27]
v_pk_fma_f32 v[40:41], v[34:35], v[26:27], v[40:41]
v_pk_fma_f32 v[40:41], v[36:37], v[26:27], v[40:41]
v_pk_fma_f32 v[40:41], v[38:39], v[26:27], v[40:41]
s_or_b64 s[82:83], s[82:83], s[90:91]
v_cmp_u_f32 vcc, v40, v41
s_or_b64 vcc, vcc, s[82:83]
""")
    s.e("s_branch L_fb" if FORCE_FB else "s_cbranch_vccnz L_fb")
    s.e("L_fnorm:\nv_rcp_f32 v64, v64\ns_nop 0")
    for q in range(4): s.e(f"v_pk_mul_f32 {vr(32+2*q,2)}, {vr(32+2*q,2)}, v[64:65] op_sel_hi:[1,0]")
    for q in range(4): s.e(f"v_cvt_pk_bf16_f32 v{40+q}, v{32+2*q}, v{33+2*q}")
    for q in range(4): s.e(f"v_min_u32 v{40+q}, -2, v{40+q}")
    s.e(f"buffer_store_dwordx4 v[40:43], v1, {SWS}, s89 offen sc1\ns_waitcnt lgkmcnt(0)\ns_nop 0\ns_setpc_b64 s[92:93]")
    O, Sx = 32, 48
    s.e(f"""
L_fb:
s_lshl_b32 {sT0}, {sJ}, 10
s_add_u32 {sT0}, {sT0}, {L_Q}
v_add_u32 v16, {sT0}, v1
ds_read_b128 v[68:71], v16
v_and_b32 v16, 15, v6
v_lshl_add_u32 v16, v8, 4, v16
v_lshlrev_b32 v16, 4, v16
v_mov_b32 v17, 0x80000000
v_cmp_gt_u32 vcc, 16, v6
v_mov_b32 v66, 0x400
v_mov_b32 v67, 0x200
v_cndmask_b32 v16, v17, v16, vcc
v_cmp_eq_u32 vcc, 16, v6
v_mov_b32 v64, 0xff800000
s_mov_b32 {sT0}, 0
v_cndmask_b32 v66, v16, v66, vcc
v_cndmask_b32 v67, v16, v67, vcc
L_fb1:
buffer_load_dwordx4 v[72:75], v1, {SWS}, {sT0} offen sc1
s_waitcnt vmcnt(0) lgkmcnt(0)
{mfma(vr(Sx,16), "v[72:75]", "v[68:71]", 0)}
s_nop 11
""")
    for q in range(8): s.e(f"v_max3_f32 v64, v64, v{Sx+2*q}, v{Sx+2*q+1}")
    s.e(f"""
s_add_u32 {sT0}, {sT0}, {KVREC}
s_cmp_lt_u32 {sT0}, {64*KVREC}
s_cbranch_scc1 L_fb1
v_mov_b32 v65, v64
s_nop 1
v_permlane32_swap_b32 v64, v65
v_max_f32 v64, v64, v65
v_mfma_f32_32x32x8_bf16 {vr(O,16)}, v[26:27], v[26:27], 0
s_mov_b32 {sT0}, 0
L_fb2:
buffer_load_dwordx4 v[72:75], v1, {SWS}, {sT0} offen sc1
buffer_load_dwordx4 v[76:79], v66, {SWS}, {sT0} offen offset:1024 sc1
buffer_load_dwordx4 v[80:83], v67, {SWS}, {sT0} offen offset:1536 sc1
s_waitcnt vmcnt(0)
{mfma(vr(Sx,16), "v[72:75]", "v[68:71]", 0)}
s_nop 11
""")
    for q in range(16): s.e(f"v_sub_f32 v{Sx+q}, v{Sx+q}, v64")
    for q in range(16): s.e(f"v_exp_f32 v{Sx+q}, v{Sx+q}")
    s.e(f"""
s_nop 1
v_smfmac_f32_32x32x32_bf16 {vr(O,16)}, v[76:79], {vr(Sx,8)}, v{vIDX}
v_smfmac_f32_32x32x32_bf16 {vr(O,16)}, v[80:83], {vr(Sx+8,8)}, v{vIDX}
s_add_u32 {sT0}, {sT0}, {KVREC}
s_cmp_lt_u32 {sT0}, {64*KVREC}
s_cbranch_scc1 L_fb2
s_nop 11
v_mov_b32 v64, v{O+8}
v_mov_b32 v65, v{O+8}
s_nop 1
v_permlane32_swap_b32 v64, v65
s_branch L_fnorm
""")
    return s

def build():
    p = prologue()
    c = p.fork(); h = p.fork()
    c_path(c); h_path(h)
    hdr = open(os.path.join(os.path.dirname(__file__), "..", "cdna_kernels", NAME + ".s.ref")).read().split("\n")
    top = [l for l in hdr if l.startswith(";") and "@launch" not in l and "Override" not in l and "grid=ceil" not in l]
    out = top + [f"; @launch grid=(256,1,1) block=(512,1,1) lds={LDS_BYTES}",
        '.amdgcn_target "amdgcn-amd-amdhsa--gfx950"', ".text", f".globl {NAME}_kernel", ".p2align 8",
        f".type {NAME}_kernel,@function", f"{NAME}_kernel:", p.text(), c.text(), h.text(),
        '.section .rodata,"a"', ".p2align 6", f".amdhsa_kernel {NAME}_kernel",
        "  .amdhsa_next_free_vgpr 256", "  .amdhsa_next_free_sgpr 102", "  .amdhsa_accum_offset 128",
        "  .amdhsa_group_segment_fixed_size 0", "  .amdhsa_kernarg_size 104", "  .amdhsa_user_sgpr_count 2",
        "  .amdhsa_user_sgpr_kernarg_segment_ptr 1", "  .amdhsa_system_sgpr_workgroup_id_x 1",
        "  .amdhsa_float_denorm_mode_32 3",
        ".end_amdhsa_kernel", ""]
    return "\n".join(out)

if __name__ == "__main__":
    txt = build()
    dst = sys.argv[1] if len(sys.argv) > 1 else os.path.join(os.path.dirname(__file__), "..", "cdna_kernels", NAME + ".s")
    open(dst, "w").write(txt)
    if STAMP:
        import json; json.dump(STAMPS, open(dst + ".json", "w"))
    sys.path.insert(0, os.path.dirname(__file__))
    import hazcheck
    print("hazards:", hazcheck.check(txt), " lines:", txt.count("\n"))
```

```python
import sys, os, math
NAME = "gated_mix__grouped_kv_mqa__linear_kernel_hedgehog__prompt"
STAMP = int(os.environ.get("STAMP", "0"))
CAL = os.environ.get("CAL", "")
FORCE_FB = int(os.environ.get("FORCE_FB", "0"))

KVREC = 2176
WS_KV = 0
WS_G = 0x24000
WS_FL = 0x40000
WS_KVF = 0x60000
WS_ST = 0x80000
WS_KVP = 0x100000
WS_OA = 0x400000
WS_OB = 0x600000
WS_SIZE = 0x800000
L_OACC = 0
L_Q = 18432
L_GATE = 26624
L_WPHI = 27648
L_CNT = 29696
L_ONES = 29712
L_R0 = 32768
L_R1 = 98304
LDS_BYTES = 163840
SX, SWB, SWQ, SJ, SWS, SG, SPH, SOA, SOB, SOUT, SDBG = (f"s[{i}:{i+3}]" for i in range(8, 52, 4))
sW, sTB, sHG, sR, sROLE, sTT, sP, sW1K = "s52", "s53", "s54", "s55", "s56", "s57", "s58", "s59"
KC = [f"s{60+i}" for i in range(8)]
sBUD = "s68"
sT0, sT1, sT2, sT3 = "s69", "s70", "s71", "s72"
sLOG = "s[74:75]"
LOG2E = 0x3fb8aa3b
KSCALE = 0.25 * math.log2(math.e)
import struct
def fbits(x): return struct.unpack("<I", struct.pack("<f", x))[0]

STAMPS = {}
class S:
    def __init__(self):
        self.L = []; self.vm = []; self.lg = []; self.nst = 0
    def e(self, s):
        for l in s.strip("\n").split("\n"): self.L.append("    " + l.strip() if not l.strip().endswith(":") else l.strip())
    def vmem(self, s, tag=None): self.e(s); self.vm.append(tag)
    def lds(self, s, tag=None):
        self.e(s)
        if s.startswith("ds_read"): self.lg.append(tag)
    def _cnt(self, q, tag, mx):
        idx = [i for i, t in enumerate(q) if t == tag]
        if not idx: return None
        n = len(q) - 1 - idx[-1]
        del q[: idx[-1] + 1]
        return min(n, mx)
    def wait(self, vm=None, lg=None):
        parts = []
        if vm == "all": parts.append("vmcnt(0)"); self.vm = []
        elif vm is not None:
            n = self._cnt(self.vm, vm, 63)
            if n is not None: parts.append(f"vmcnt({n})")
        if lg == "all": parts.append("lgkmcnt(0)"); self.lg = []
        elif lg is not None:
            n = self._cnt(self.lg, lg, 15)
            if n is not None: parts.append(f"lgkmcnt({n})")
        if parts: self.e("s_waitcnt " + " ".join(parts))
    def fork(self):
        o = S(); o.vm = list(self.vm); o.lg = list(self.lg); o.nst = self.nst; return o
    def stamp(self, name):
        if CAL and CAL.split(":")[:2] == [self.stv, name]:
            self.e("s_memtime s[94:95]")
        if STAMP:
            names = STAMPS.setdefault(self.stv, [])
            if name not in names: names.append(name)
            k = 2 + names.index(name)
            import re as _re
            if not _re.fullmatch(os.environ.get("STSEL", ".*"), name): return
            if os.environ.get("STWAIT"):
                self.e(f"s_memtime s[98:99]\ns_waitcnt lgkmcnt(0)\nv_writelane_b32 {self.stv}, s98, {k}")
                self.lg = []
            else:
                self.e(f"s_mov_b32 s101, m0\ns_mov_b32 m0, s100\ns_nop 0\nv_writelane_b32 {self.stv}, s98, m0\ns_mov_b32 m0, s101\ns_memtime s[98:99]\ns_mov_b32 s100, {k}")
    def text(self): return "\n".join(self.L)

_lbl = [0]
def lbl(p):
    _lbl[0] += 1
    return f"L_{p}{_lbl[0]}"

def vr(a, n=4): return f"v[{a}:{a+n-1}]"
def ar(a, n=4): return f"a[{a}:{a+n-1}]"
def mfma(d, a, b, c): return f"v_mfma_f32_32x32x16_bf16 {d}, {a}, {b}, {c}"

def spin_tail(s, top, done, sleep):
    s.e(f"s_sub_u32 {sBUD}, {sBUD}, 1\ns_cbranch_scc1 {done}_x")
    if sleep: s.e(f"s_sleep {sleep}")
    s.e(f"s_branch {top}\n{done}_x:\ns_mov_b32 {sBUD}, 0\n{done}:")

PF = int(os.environ.get("PF", "1"))
def prologue():
    s = S()
    if PF:
        s.e("""
s_getpc_b64 s[90:91]
s_lshl_b32 s3, s2, 7
s_and_b32 s3, s3, 0x7c00
v_and_b32 v1, 0x1c0, v0
v_lshl_add_u32 v1, v1, 1, s3
global_load_dword v127, v1, s[90:91]
""")
    s.e(f"""
s_load_dwordx2 s[8:9], s[0:1], 0
s_load_dwordx2 s[16:17], s[0:1], 8
s_load_dwordx4 s[4:7], s[0:1], 16
s_load_dwordx2 s[24:25], s[0:1], 96
s_load_dwordx2 s[28:29], s[0:1], 72
s_load_dwordx2 s[48:49], s[0:1], 88
s_cmp_ge_u32 s2, 0x100
s_cbranch_scc1 L_exit
""")
    if STAMP: s.e("s_memrealtime s[94:95]\ns_memtime s[96:97]\ns_mov_b32 s100, 62\ns_mov_b32 s98, 0")
    if CAL: s.e("s_memtime s[96:97]")
    s.e(f"""
v_lshrrev_b32 v1, 6, v0
s_mov_b32 s10, 0x200000
s_mov_b32 s11, 0x20000
v_readfirstlane_b32 {sW}, v1
v_lshrrev_b32 v6, 3, v0
v_and_b32 v2, 7, v0
v_bfe_u32 v3, v0, 4, 3
v_xor_b32 v3, v3, v2
v_lshlrev_b32 v4, 10, v6
v_lshl_add_u32 v3, v3, 4, v4
s_and_b32 {sT0}, s2, 7
s_bfe_u32 {sHG}, s2, 0x30003
s_lshr_b32 {sT1}, s2, 6
s_lshl2_add_u32 {sTB}, {sT0}, {sT1}
s_lshl_b32 {sT1}, {sT1}, 1
s_add_u32 {sR}, {sHG}, {sT1}
s_add_u32 {sR}, {sR}, {sT0}
s_and_b32 {sR}, {sR}, 7
s_sub_u32 {sT1}, {sHG}, {sT1}
s_and_b32 {sT1}, {sT1}, 7
s_add_u32 {sT1}, {sT1}, 1
s_cmp_lt_u32 {sT1}, 4
s_cselect_b32 {sROLE}, {sT1}, 0
s_lshl_b32 {sW1K}, {sW}, 10
s_lshl_b32 s76, {sTB}, 16
s_lshl_b32 s77, {sHG}, 7
""")
    for c in range(8):
        if c == 0: s.e(f"s_mov_b32 {KC[0]}, {sR}")
        else: s.e(f"s_add_u32 {KC[c]}, {sR}, {c}\ns_and_b32 {KC[c]}, {KC[c]}, 7")
    s.e(f"""
v_lshrrev_b32 v5, 2, v0
v_and_b32 v5, 4, v5
v_xor_b32 v5, v5, v2
v_lshl_add_u32 v4, v5, 4, v4
v_mul_u32_u24 v6, 3072, v6
v_lshl_add_u32 v5, v5, 4, v6
v_and_b32 v2, 63, v0
v_lshlrev_b32 v1, 4, v2
s_mov_b32 s18, 0x80000
s_mov_b32 s19, 0x20000
s_mov_b32 s22, 0x4000
s_mov_b32 s23, 0x20000
s_mov_b32 s26, {WS_SIZE}
s_mov_b32 s27, 0x20000
s_mov_b32 s30, 0x400
s_mov_b32 s31, 0x20000
s_mov_b32 s50, 0x100
s_mov_b32 s51, 0x20000
s_lshl_b32 {sT0}, {KC[0]}, 7
s_add_u32 m0, {sW1K}, {L_R0}
s_add_u32 {sT0}, {sT0}, s76
s_waitcnt lgkmcnt(0)
buffer_load_dwordx4 v3, {SX}, {sT0} offen lds
s_load_dwordx2 s[12:13], s[0:1], 48
s_load_dwordx2 s[32:33], s[0:1], 56
s_load_dwordx2 s[36:37], s[0:1], 32
s_load_dwordx2 s[40:41], s[0:1], 64
s_load_dwordx2 s[44:45], s[0:1], 80
s_cmp_eq_u32 {sROLE}, 2
s_cselect_b64 s[20:21], s[6:7], s[4:5]
s_sub_u32 {sT3}, {sROLE}, 1
s_cmp_lt_u32 {sT3}, 2
s_cbranch_scc0 L_noprod
s_add_u32 {sT0}, {sW}, {sR}
s_and_b32 {sT0}, {sT0}, 7
s_lshl_b32 m0, {sW}, 11
s_lshl_b32 {sT0}, {sT0}, 11
buffer_load_dwordx4 v1, {SJ}, {sT0} offen lds
buffer_load_dwordx4 v1, {SJ}, {sT0} offen offset:1024 lds
s_cmp_eq_u32 {sW}, 4
s_cbranch_scc0 L_burst
v_mov_b32 v8, -1
v_mov_b32 v9, -1
v_mov_b32 v10, -1
v_mov_b32 v11, -1
s_mul_i32 {sT0}, {sTB}, {2*KVREC}
s_lshl_b32 {sT1}, {sT3}, 10
s_add_u32 {sT1}, {sT1}, {sT0}
buffer_store_dwordx4 v[8:11], v1, {SWS}, {sT1} offen sc1
buffer_store_dwordx4 v[8:11], v1, {SWS}, {sT1} offen offset:{KVREC} sc1
v_mov_b32 v12, 0
v_mov_b32 v13, 0
v_mov_b32 v14, 0
v_mov_b32 v15, 0
s_lshl1_add_u32 {sT1}, {sTB}, {sT3}
s_lshl_b32 {sT1}, {sT1}, 11
s_add_u32 {sT1}, {sT1}, {WS_FL}
buffer_store_dwordx4 v[12:15], v1, {SWS}, {sT1} offen sc1
buffer_store_dwordx4 v[12:15], v1, {SWS}, {sT1} offen offset:1024 sc1
s_cmp_eq_u32 {sT3}, 0
s_cbranch_scc0 L_clrV
s_lshl_b32 {sT1}, {sTB}, 8
s_add_u32 {sT1}, {sT1}, {WS_G}
s_mov_b64 exec, 0xffff
buffer_store_dwordx4 v[8:11], v1, {SWS}, {sT1} offen sc1
s_mov_b64 exec, -1
s_branch L_burst
L_clrV:
v_mov_b32 v16, 0x3f803f80
v_mov_b32 v17, v16
v_mov_b32 v18, v16
v_mov_b32 v19, v16
s_add_u32 {sT0}, {sT0}, 2048
s_mov_b64 exec, 0xff
buffer_store_dwordx4 v[16:19], v1, {SWS}, {sT0} offen sc1
buffer_store_dwordx4 v[16:19], v1, {SWS}, {sT0} offen offset:{KVREC} sc1
s_mov_b64 exec, -1
s_branch L_burst
L_noprod:
s_cmp_eq_u32 {sROLE}, 3
s_cbranch_scc0 L_nogate
s_cmp_eq_u32 {sW}, 0
s_cbranch_scc0 L_nogate
s_lshl_b32 {sT0}, {sR}, 7
v_add_u32 v6, {sT0}, v1
s_movk_i32 m0, {L_GATE}
v_and_b32 v6, 0x3ff, v6
buffer_load_dwordx4 v6, {SG}, 0 offen lds
L_nogate:
s_barrier
""")
    for c in range(2):
        s.e(f"s_lshl_b32 {sT0}, {KC[c]}, 16\ns_add_u32 m0, {sW1K}, {L_R1 + c*8192}\ns_add_u32 {sT0}, {sT0}, s77")
        s.e(f"buffer_load_dwordx4 v4, {SWQ}, {sT0} offen lds")
    s.e(f"L_burst:\ns_lshl_b32 {sT0}, {KC[1]}, 7\ns_add_u32 m0, {sW1K}, {L_R0 + 8192}\ns_add_u32 {sT0}, {sT0}, s76")
    s.vmem(f"buffer_load_dwordx4 v3, {SX}, {sT0} offen lds", "X1")
    s.e(f"""
s_mov_b32 s14, 0x180000
s_mov_b32 s15, 0x20000
s_mov_b32 s34, 0x4000
s_mov_b32 s35, 0x20000
s_mov_b32 s38, 0x80000
s_mov_b32 s39, 0x20000
s_mov_b32 s42, 0x80000
s_mov_b32 s43, 0x20000
s_mov_b32 s46, 0x200000
s_mov_b32 s47, 0x20000
s_mov_b32 {sBUD}, 0x80000
s_and_b32 {sTT}, {sW}, 1
s_bfe_u32 {sP}, {sW}, 0x10001
v_and_b32 v6, 31, v2
v_lshrrev_b32 v8, 5, v2
v_bfe_u32 v9, v2, 1, 3
v_xor_b32 v9, v9, v8
s_lshl_b32 {sT0}, {sTT}, 12
s_add_u32 {sT0}, {sT0}, {L_R0}
v_lshlrev_b32 v10, 7, v6
v_add_u32 v10, {sT0}, v10
v_lshl_add_u32 v48, v9, 4, v10
v_xor_b32 v49, 32, v48
v_xor_b32 v50, 64, v48
v_xor_b32 v51, 0x60, v48
v_bfe_u32 v9, v2, 2, 2
v_and_b32 v10, 3, v2
s_waitcnt lgkmcnt(0)
s_cmp_ge_u32 {sW}, 4
s_cbranch_scc1 L_H
""")
    return s
XA = 48

def softmax_max_exp(Ts, tmp):
    out = []
    M = [tmp + 2 * i for i in range(len(Ts))]
    for k in range(4):
        for i, b in enumerate(Ts):
            for sg in range(2):
                m = M[i] + sg; ng = "-" if sg else ""
                if k == 0: out.append(f"v_max3_f32 v{m}, {ng}v{b}, {ng}v{b+1}, {ng}v{b+2}")
                elif k < 3: out.append(f"v_max3_f32 v{m}, v{m}, {ng}v{b+1+2*k}, {ng}v{b+2+2*k}")
                else: out.append(f"v_max_f32 v{m}, v{m}, {ng}v{b+7}")
    out.append("s_nop 1")
    for m in M: out.append(f"v_permlane32_swap_b32 v{m}, v{m+1}")
    for m in M: out.append(f"v_max_f32 v{m}, v{m}, v{m+1}")
    for m in M: out.append(f"v_mul_f32 v{m}, {hex(LOG2E | 0x80000000)}, v{m}")
    for m in M: out.append(f"v_mov_b32 v{m+1}, v{m}")
    out.append("s_nop 1")
    for m in M: out.append(f"v_permlane32_swap_b32 v{m}, v{m+1}")
    for i, T in enumerate(Ts):
        for j in range(4):
            out.append(f"v_pk_fma_f32 {vr(T+8+2*j,2)}, {vr(T+2*j,2)}, {sLOG}, {vr(M[i],2)} op_sel:[0,1,1] op_sel_hi:[1,1,1]")
            out.append(f"v_pk_fma_f32 {vr(T+2*j,2)}, {vr(T+2*j,2)}, {sLOG}, {vr(M[i],2)} op_sel_hi:[1,0,0]")
    for T in Ts:
        for j in range(16): out.append(f"v_exp_f32 v{T+j}, v{T+j}")
    return out

def c_path(s):
    s.stv = "v7"
    if STAMP: s.e("v_mov_b32 v7, 0")
    s.stamp("entry")
    KOFF = [f"s{78+i}" for i in range(16)]
    def common_setup(s):
        s.e(f"""
v_and_b32 v16, 15, v6
v_lshl_add_u32 v17, v8, 4, v16
v_lshlrev_b32 v17, 4, v17
v_mov_b32 v18, 0x80000000
v_cmp_gt_u32 s[90:91], 16, v6
v_cmp_eq_u32 s[92:93], 16, v6
v_mov_b32 v4, 0x400
v_mov_b32 v5, 0x200
v_cndmask_b32 v17, v18, v17, s[90:91]
s_lshr_b32 {sT0}, s2, 3
s_lshl_b32 {sT0}, {sT0}, 1
s_lshl4_add_u32 {sT0}, {sW}, {sT0}
v_cndmask_b32 v4, v17, v4, s[92:93]
v_cndmask_b32 v5, v17, v5, s[92:93]
v_add_u32 v16, {sT0}, v16
v_and_b32 v16, 63, v16
v_mul_u32_u24 v16, {KVREC}, v16
v_lshrrev_b32 v17, 4, v6
v_lshl_add_u32 v0, v17, 10, v16
v_mov_b32 v60, 0
v_mov_b32 v61, 0
v_add_u32 v3, {L_Q}, v1
s_mul_i32 s73, {sW}, 2304
v_lshlrev_b32 v62, 2, v2
v_add_u32 v62, s73, v62
""")
        for t in range(16):
            s.e(f"s_add_u32 {sT1}, {sT0}, {t}\ns_and_b32 {sT1}, {sT1}, 63\ns_mul_i32 {KOFF[t]}, {sT1}, {KVREC}")
    s.e("s_setprio 1")
    common_setup(s)
    s.e(f"s_cmp_ge_u32 {sW}, 2\ns_cbranch_scc1 L_loader")
    base0 = s.fork(); base0.stv = s.stv
    s.e(f"""
v_lshl_add_u32 v20, v8, 3, v9
v_lshlrev_b32 v20, 5, v20
v_lshl_add_u32 v20, v10, 3, v20
v_lshlrev_b32 v21, 4, v8
v_lshlrev_b32 v23, 2, v6
s_lshl1_add_u32 s62, {sTB}, {sTT}
s_mul_i32 s63, s62, {KVREC}
s_cmp_eq_u32 {sROLE}, 1
s_cbranch_scc1 L_jobK
s_cmp_eq_u32 {sROLE}, 2
s_cbranch_scc1 L_jobV
s_cmp_eq_u32 {sROLE}, 3
s_cbranch_scc1 L_jobG
""")
    base = s.fork(); base.stv = s.stv
    s.wait(vm="all")
    for u in range(5): s.e("s_barrier")
    s.e("s_branch L_jobdone")
    ld = base0.fork(); ld.stv = s.stv
    ld.e(f"""
L_loader:
s_lshl_b32 s3, {sTT}, 12
v_lshrrev_b32 v16, 3, v2
v_and_b32 v17, 7, v2
v_lshrrev_b32 v18, 4, v2
v_xor_b32 v18, v18, v17
v_lshrrev_b32 v19, 2, v2
v_and_b32 v19, 4, v19
v_xor_b32 v19, v19, v17
s_lshl_b32 {sT0}, {sTT}, 5
v_add_u32 v16, {sT0}, v16
v_lshlrev_b32 v17, 10, v16
v_lshl_add_u32 v24, v18, 4, v17
v_lshl_add_u32 v28, v19, 4, v17
v_mul_u32_u24 v17, 3072, v16
v_lshl_add_u32 v32, v19, 4, v17
v_add_u32 v32, 0x400, v32
""")
    for jx in range(1, 4):
        ld.e(f"v_add_u32 v{24+jx}, {jx*7168}, v24\nv_add_u32 v{28+jx}, {jx*7168}, v28\nv_add_u32 v{32+jx}, {jx*(24576-1024)}, v32")
    ld.e("v_xor_b32 v25, 64, v25\nv_xor_b32 v27, 64, v27")
    def lchunk(ld, name):
        k, c = name[:-1], int(name[-1])
        if k == "X": ld.e(f"s_lshl_b32 {sT0}, {KC[c]}, 7\ns_add_u32 m0, s3, {L_R0 + c*8192}\ns_add_u32 {sT0}, {sT0}, s76"); vb, srd = 24, SX
        elif k == "KB": ld.e(f"s_mul_i32 {sT0}, {KC[c]}, 196608\ns_add_u32 m0, s3, {L_R0 + c*8192}\ns_add_u32 {sT0}, {sT0}, s77"); vb, srd = 32, SWB
        else: ld.e(f"s_lshl_b32 {sT0}, {KC[c]}, 16\ns_add_u32 m0, s3, {L_R1 + c*8192}\ns_add_u32 {sT0}, {sT0}, s77"); vb, srd = 28, SWQ
        for jx in range(4):
            ld.vmem(f"buffer_load_dwordx4 v{vb+jx}, {srd}, {sT0} offen offset:{jx*1024} lds", name)
    for c in ("X2", "X3", "X4"): lchunk(ld, c)
    ld.wait(vm="X1"); ld.e("s_barrier")
    for c in ("X5", "X6"): lchunk(ld, c)
    ld.wait(vm="X3"); ld.e("s_barrier")
    lchunk(ld, "X7")
    ld.e(f"s_cmp_lt_u32 {sT3}, 2\ns_cbranch_scc1 L_loaderP")
    lp = ld.fork(); lp.stv = s.stv
    for (l_, sched) in ((ld, [(["WQ2"], "X5"), (["WQ3", "WQ4"], "X7"), (["WQ5"], None), (["WQ6", "WQ7"], None)]),
                        (lp, [(["WQ0"], "X5"), (["WQ1", "WQ2"], "X7"), (["WQ3", "WQ4"], "WQ1"), (["WQ5", "WQ6", "WQ7"], None)])):
        if l_ is lp: l_.e("L_loaderP:")
        for n_, (nxt, w_) in enumerate(sched):
            for c in nxt: lchunk(l_, c)
            if n_ == 3: break
            if w_: l_.wait(vm=w_)
            l_.e("s_barrier")
        if l_ is ld: l_.e("s_branch L_loader2")
    lp.e("L_loader2:")
    lp.wait(vm="WQ3"); lp.e("s_barrier")
    lp.e(f"s_lshl_b32 {sT0}, {sHG}, 11\ns_add_u32 m0, {sW1K}, {L_WPHI - 2048}\ns_add_u32 {sT0}, {sT0}, {sW1K}\ns_sub_u32 {sT0}, {sT0}, 2048")
    lp.vmem(f"buffer_load_dwordx4 v1, {SPH}, {sT0} offen lds")
    for c in ("KB0", "KB1"): lchunk(lp, c)
    lp.wait(vm="WQ5"); lp.e("s_barrier")
    for c in ("KB2", "KB3"): lchunk(lp, c)
    lp.wait(vm="WQ7"); lp.e("s_barrier")
    for c in ("KB4", "KB5", "KB6", "KB7"): lchunk(lp, c)
    lp.wait(vm="KB3")
    lp.e("s_barrier\ns_branch L_B9")
    ACC = 24
    def job(kind):
        j = base.fork(); j.stv = s.stv
        j.e(f"L_job{kind}:")
        LAG = 3
        if kind != "G": j.e("s_setprio 3")
        def ring(t): return 8 * (t % 16)
        def mm(t):
            j.wait(lg=f"f{t}")
            x, w = ar(ring(t)), ar(ring(t) + 4)
            c = "0" if t == 0 else vr(ACC, 16)
            j.e(mfma(vr(ACC, 16), x, w, c) if kind == "V" else mfma(vr(ACC, 16), w, x, c))
        if kind == "K":
            j.e(f"""
v_and_b32 v16, 0x13, v6
v_bfe_u32 v17, v6, 2, 1
v_lshl_add_u32 v16, v17, 3, v16
v_bfe_u32 v17, v6, 3, 1
v_lshl_add_u32 v16, v17, 2, v16
v_lshl_add_u32 v16, v8, 5, v16
v_lshlrev_b32 v16, 4, v16
s_mov_b32 s64, {fbits(KSCALE)}
s_mov_b32 s65, {fbits(KSCALE)}
""")
        if kind == "V":
            j.e(f"""
v_and_b32 v16, 15, v6
v_lshl_add_u32 v16, v8, 4, v16
v_lshrrev_b32 v17, 4, v6
v_lshl_add_u32 v16, v17, 5, v16
v_lshlrev_b32 v16, 4, v16
s_mov_b32 s64, 0xffff0000
s_mov_b32 s65, 0xffff0000
""")
        def reads(t):
            c, ks = t >> 2, t & 3
            j.lds(f"ds_read_b128 {ar(ring(t))}, v{XA+ks} offset:{c*8192}", f"f{t}")
            if kind == "G":
                j.lds(f"ds_read_b128 {ar(ring(t)+4)}, v21 offset:{L_GATE + c*128 + ks*32}", f"f{t}")
            else:
                for rd in range(2):
                    j.lds(f"ds_read_b64_tr_b16 {ar(ring(t)+4+2*rd,2)}, v20 offset:{L_OACC + c*2048 + ks*512 + rd*128}", f"f{t}")
        for t in range(32):
            if t % 8 == 0:
                if t == 0: j.wait(vm="all")
                j.e("s_barrier")
            if t % 8 < 4:
                reads((t & ~7) + 2 * (t & 7)); reads((t & ~7) + 2 * (t & 7) + 1)
            if t >= LAG: mm(t - LAG)
        for t in range(32 - LAG, 32): mm(t)
        if kind == "K":
            j.e("s_barrier\ns_nop 10")
            for q in range(4): j.e(f"v_pk_mul_f32 {vr(ACC+2*q,2)}, {vr(ACC+2*q,2)}, s[64:65]")
            for q in range(4): j.e(f"v_cvt_pk_bf16_f32 v{40+q}, v{ACC+2*q}, v{ACC+2*q+1}")
            j.e(f"buffer_store_dwordx4 v[40:43], v16, {SWS}, s63 offen sc1")
            j.stamp("kvstored")
            j.e("s_setprio 1\ns_branch L_jobdone")
        elif kind == "V":
            j.e("s_barrier\ns_nop 10")
            for q in range(4): j.e(f"v_cvt_pk_bf16_f32 v{40+q}, v{ACC+2*q}, v{ACC+2*q+1}")
            j.e("s_mov_b64 exec, s[64:65]")
            for q in range(4): j.e(f"v_cvt_pk_bf16_f32 v{40+q}, v{ACC+8+2*q}, v{ACC+8+2*q+1}")
            j.e("s_mov_b64 exec, -1")
            j.e(f"buffer_store_dwordx4 v[40:43], v16, {SWS}, s63 offen offset:1024 sc1")
            j.stamp("kvstored")
            j.e("s_setprio 1\ns_branch L_jobdone")
        else:
            j.e(f"""
s_barrier
s_nop 10
v_mul_f32 v40, {hex(LOG2E | 0x80000000)}, v{ACC}
v_exp_f32 v40, v40
s_nop 0
v_add_f32 v40, 1.0, v40
v_rcp_f32 v40, v40
""")
        return j
    s.L += ld.L + lp.L + job("K").L + job("V").L + job("G").L
    s.e(f"""
L_jobdone:
s_barrier
s_barrier
s_barrier
s_barrier
s_cmp_eq_u32 {sROLE}, 3
s_cbranch_scc0 L_B9
s_lshl_b32 {sT1}, s62, 7
s_add_u32 {sT1}, {sT1}, {WS_G}
buffer_store_dword v40, v23, {SWS}, {sT1} offen sc1
L_B9:
v_mov_b32 v6, 0xdddddddd
s_mov_b32 s3, 4
""")
    s.vm = ["KB7"]; s.lg = []
    s.stamp("B9")
    S0, S1, O, Q = 8, 24, 40, 56
    def ld(t):
        s.vmem(f"buffer_load_dwordx4 {vr(64+4*t)}, v1, {SWS}, {KOFF[t]} offen sc1", f"K{t}")
        s.vmem(f"buffer_load_dwordx4 {ar(8*t)}, v4, {SWS}, {KOFF[t]} offen offset:1024 sc1", f"Vl{t}")
        s.vmem(f"buffer_load_dwordx4 {ar(8*t+4)}, v5, {SWS}, {KOFF[t]} offen offset:1536 sc1", f"Vh{t}")
    AH0, AHEAD = 2, int(os.environ.get("AHEAD", "4"))
    probe = f"buffer_load_dword v9, v0, {SWS}, 0 offen offset:1020 sc1"
    zero = f"v_mfma_f32_32x32x8_bf16 {vr(O,16)}, v[60:61], v[60:61], 0"
    def smf(a, b): return f"v_smfmac_f32_32x32x32_bf16 {vr(O,16)}, {ar(a)}, {vr(b,8)}, v6"
    s.vmem(probe, "probe")
    for t in range(AH0): ld(t)
    s.lds(f"ds_read_b128 {vr(Q)}, v3", "q")
    s.e(f"s_cmp_lt_u32 {sW}, 2\ns_cbranch_scc1 L_B10")
    s.wait(vm="KB7")
    s.e("L_B10:\ns_barrier")
    s.stamp("B10")
    for t in range(AH0, AHEAD): ld(t)
    s.wait(vm="probe")
    s.e("v_cmp_eq_u32 vcc, -1, v9\ns_cbranch_vccnz L_kvretry\nL_kvok:")
    s.stamp("kvready")
    s.e(zero)
    s.wait(vm="K0", lg="all")
    s.e(mfma(vr(S0, 16), vr(64), vr(Q), 0))
    s.e(f"s_mov_b32 m0, s73\ns_movk_i32 s76, 9216\ns_mov_b32 s77, 7\ns_nop 8")
    s.stamp("S0")
    CHK = (2, 4, 8, 13)
    NDBL = int(os.environ.get("NDBL", "3"))
    LDS_ = {t: [] for t in range(16)}
    nx = AHEAD
    for t in range(16):
        for _ in range(2 if (t % 2 == 1 and t // 2 < NDBL) else 1):
            if nx < 16: LDS_[t].append(nx); nx += 1
    def dump(s):
        for r in range(9): s.e(f"ds_write_addtid_b32 v{O+r} offset:{r*256}")
    def step(s, first):
        for t in range(16):
            Sc, Sn = (S0, S1) if t % 2 == 0 else (S1, S0)
            tn = (t + 1) % 16; tp = (t - 1) % 16
            pos_lo = 13 if (t == 0 and not first) else 11
            for i in range(16):
                if i == 2 and not (first and t == 0):
                    s.e(smf(8 * tp + 4, Sn + 8))
                if i == 5:
                    if first and t < 15: s.wait(vm=f"K{tn}")
                    if t == 15: s.e("s_waitcnt lgkmcnt(0)")
                    s.e(mfma(vr(Sn, 16), vr(64 + 4 * tn), vr(Q), 0))
                    if first:
                        for tl in LDS_[t]: ld(tl)
                        if 15 in LDS_[t]: s.e(f"ds_inc_u32 v60, v6 offset:{L_CNT + 4}")
                    if t == 14:
                        s.e(f"ds_read_b128 {vr(Q)}, v3 offset:1024\nds_read_b32 v63, v62 offset:2048")
                    if t == 15:
                        s.e("v_cmp_neq_f32 vcc, -1.0, v63\nv_add_u32 v3, 0x400, v3")
                if i == 8 and t == 0 and not first:
                    dump(s); s.e(zero)
                if i == pos_lo:
                    if first and t in CHK: s.e(f"v_cmp_u_f32 vcc, v{O}, v{O+4}\ns_cbranch_vccnz L_rs{t}\nL_ct{t}:")
                    if first and t == 15: s.wait(vm="all")
                    s.e(smf(8 * t, Sc))
                s.e(f"v_exp_f32 v{Sc+i}, v{Sc+i}")
    step(s, True)
    s.stamp("step0")
    s.e(".p2align 6\nL_att:\ns_cbranch_vccnz L_attwait\nL_attgo:\nv_add_u32 v62, s76, v62")
    step(s, False)
    s.e(f"s_add_u32 m0, m0, s76\ns_sub_u32 s76, 0, s76\ns_sub_u32 s77, s77, 1\ns_cmp_lg_u32 s77, 0\ns_cbranch_scc1 L_att")
    s.e("s_cbranch_vccnz L_attwait\nL_attfin:")
    s.e(smf(8 * 15 + 4, S1 + 8))
    s.e("s_nop 11")
    dump(s)
    s.stamp("T")
    s.e("s_waitcnt lgkmcnt(0)\ns_barrier\ns_barrier")
    if STAMP: write_stamps(s)
    if CAL: cal_end(s)
    s.e("s_endpgm")
    top, done = "L_attwait", lbl("awd")
    s.e(f"{top}:\nds_read_b32 v63, v62 offset:2048\ns_waitcnt lgkmcnt(0)\nv_cmp_neq_f32 vcc, -1.0, v63\ns_cbranch_vccz {done}")
    spin_tail(s, top, done, 1)
    s.e("s_cmp_lg_u32 s77, 0\ns_cbranch_scc1 L_attgo\ns_branch L_attfin")
    for t in CHK:
        s.e(f"L_rs{t}:\ns_cmp_eq_u32 s3, 0\ns_cbranch_scc1 L_ct{t}\ns_branch L_rs")
    s.e("L_rs:\ns_sub_u32 s3, s3, 1")
    if STAMP: s.e(f"v_mov_b32 v9, 1\ns_mov_b64 exec, 1\nbuffer_atomic_add v9, v60, {SDBG}, 0 offen offset:12 sc1\ns_mov_b64 exec, -1")
    top, done = "L_kvretry", lbl("kvr")
    s.e(f"{top}:\n{probe}\ns_waitcnt vmcnt(0)\nv_cmp_eq_u32 vcc, -1, v9\ns_cbranch_vccz {done}")
    spin_tail(s, top, done, 0)
    s.vm = []
    for t in range(AHEAD): ld(t)
    s.e("s_branch L_kvok")
    return s

def cal_end(s):
    role, name, wg = CAL.split(":")
    if role != s.stv: return
    s.e(f"""
s_waitcnt vmcnt(0) lgkmcnt(0)
s_cmp_eq_u32 s2, {wg}
s_cbranch_scc0 L_calx
s_and_b32 s69, {sW}, 3
s_cmp_eq_u32 s69, 3
s_cbranch_scc0 L_calx
s_sub_u32 s94, s94, s96
s_lshl_b32 s94, s94, 3
s_memtime s[96:97]
s_waitcnt lgkmcnt(0)
L_calw:
s_sleep 4
s_memtime s[98:99]
s_waitcnt lgkmcnt(0)
s_sub_u32 s98, s98, s96
s_cmp_lt_u32 s98, s94
s_cbranch_scc1 L_calw
L_calx:
""")

def write_stamps(s):
    s.e(f"""
s_waitcnt lgkmcnt(0)
s_mov_b32 m0, s100
s_nop 0
v_writelane_b32 {s.stv}, s98, m0
v_writelane_b32 {s.stv}, s96, 0
v_writelane_b32 {s.stv}, s94, 1
s_memrealtime s[94:95]
s_waitcnt lgkmcnt(0)
v_writelane_b32 {s.stv}, s94, 63
s_lshl3_add_u32 {sT0}, s2, {sW}
s_lshl_b32 {sT0}, {sT0}, 8
s_add_u32 {sT0}, {sT0}, {WS_ST}
v_lshrrev_b32 v0, 2, v1
buffer_store_dword {s.stv}, v0, {SWS}, {sT0} offen
""")

def h_path(s):
    s.stv = "v31"
    s.e("L_H:\ns_setprio 2")
    if STAMP: s.e("v_mov_b32 v31, 0")
    s.stamp("entry")
    sHW, sFL, sJ, sOT = "s78", "s79", "s80", "s81"
    vW0, vW1, vPB, vONE, vNEG, vIDX, vZ = 18, 19, 20, 21, 22, 25, 26
    vOD, vOL = 14, 15
    vWPH, vPHW, vPHR, vU, vVXR, vSCW, vKVPS, vFLG, vGF, vKFS, vKFL = 0, 3, 7, 23, 24, 28, 29, 6, 8, 9, 10
    O_PHI, O_VX, O_SC = 0, 20480, 36864
    vSCR, vFC, vG = 30, 2, 5
    vQW, vTO = 52, 104
    s.e(f"""
s_and_b32 {sHW}, {sW}, 3
s_mov_b32 s74, {LOG2E}
s_mov_b32 s75, {LOG2E | 0x80000000}
v_bfe_u32 v11, v2, 4, 1
v_subrev_u32 v12, {32*1024}, v4
v_subrev_u32 v13, {32*3072}, v5
v_lshrrev_b32 v17, 1, v9
v_xor_b32 v17, {sP}, v17
v_lshlrev_b32 v32, 6, v17
v_lshl_add_u32 v16, v8, 3, v9
v_lshl_add_u32 v16, v16, 7, v32
v_lshl_add_u32 v16, v11, 5, v16
v_lshl_add_u32 v16, v10, 3, v16
v_add_u32 v{vW0}, {L_R0}, v16
v_add_u32 v{vW1}, {L_R1}, v16
v_lshl_add_u32 v33, v8, 2, v9
v_lshl_add_u32 v16, v33, 7, v32
v_and_b32 v17, 1, v10
v_lshl_add_u32 v16, v17, 5, v16
v_lshl_add_u32 v16, v11, 4, v16
v_lshrrev_b32 v17, 1, v10
v_lshl_add_u32 v{vPB}, v17, 3, v16
v_mov_b32 v{vONE}, 1
v_mov_b32 v{vNEG}, -1.0
v_mov_b32 v{vIDX}, 0xdddddddd
v_mov_b32 v26, 0
v_mov_b32 v27, 0
s_mul_i32 {sT0}, {sTT}, 9216
v_lshl_add_u32 v{vOD}, v2, 2, {sT0}
v_lshl_add_u32 v{vOL}, v6, 2, {sT0}
v_lshlrev_b32 v16, 5, v33
v_lshl_add_u32 v16, v10, 3, v16
s_lshl_b32 {sT0}, {sP}, 10
v_add_u32 v{vWPH}, {sT0}, v16
s_lshl_b32 {sT1}, {sHW}, 12
s_add_u32 {sT1}, {sT1}, {L_R1}
v_add_u32 v{vU}, {sT1}, v1
s_mul_i32 {sT1}, {sHW}, 4608
s_add_u32 {sT1}, {sT1}, {L_R1}
v_mul_u32_u24 v16, 72, v6
v_lshl_add_u32 v17, v8, 3, v16
v_add_u32 v{vPHW}, {sT1}, v17
v_lshlrev_b32 v16, 1, v16
v_lshl_add_u32 v16, v8, 6, v16
v_add_u32 v{vSCW}, {sT1}, v16
v_lshrrev_b32 v16, 3, v2
v_and_b32 v17, 7, v2
v_mul_u32_u24 v34, 144, v16
v_lshl_add_u32 v34, v17, 4, v34
v_add_u32 v{vSCR}, {sT1}, v34
v_lshlrev_b32 v16, 12, v16
v_lshl_add_u32 v{vKVPS}, v17, 4, v16
s_mul_i32 {sT1}, {sP}, 9216
s_mul_i32 {sT0}, {sTT}, 2304
s_add_u32 {sT0}, {sT0}, {sT1}
s_add_u32 {sT0}, {sT0}, {L_R1}
v_mul_u32_u24 v16, 72, v33
v_lshl_add_u32 v16, v11, 5, v16
v_lshl_add_u32 v16, v10, 3, v16
v_add_u32 v{vPHR}, {sT0}, v16
s_lshl_b32 {sT1}, {sP}, 13
s_lshl_b32 {sT0}, {sTT}, 8
s_add_u32 {sT0}, {sT0}, {sT1}
s_add_u32 {sT0}, {sT0}, {L_R1}
v_add_u32 v{vVXR}, {sT0}, v1
s_lshl2_add_u32 {sT0}, {sP}, {sTT}
s_lshl_b32 {sT0}, {sT0}, 10
s_add_u32 {sT0}, {sT0}, {L_Q}
v_add_u32 v{vQW}, {sT0}, v1
v_lshl_add_u32 v16, v11, 1, v8
v_lshl_add_u32 v16, v10, 3, v16
v_bfe_u32 v17, v2, 2, 1
v_lshl_add_u32 v16, v17, 2, v16
v_lshlrev_b32 v{vKFS}, 1, v16
v_min_u32 v16, 16, v6
v_lshlrev_b32 v16, 7, v16
v_lshl_add_u32 v{vKFL}, v8, 4, v16
v_lshlrev_b32 v16, 12, v6
v_lshl_add_u32 v{vFLG}, v8, 7, v16
v_and_b32 v16, 15, v2
v_lshlrev_b32 v{vGF}, 8, v16
s_lshl_b32 {sT0}, {sTT}, 2
v_mov_b32 v{vFC}, {sT0}
v_mov_b32 v17, 0x3f803f80
s_lshl3_add_u32 {sFL}, {sTB}, {sHG}
s_lshl2_add_u32 {sFL}, {sFL}, {sHW}
s_lshl_b32 {sFL}, {sFL}, 7
s_add_u32 {sFL}, {sFL}, {WS_FL}
s_lshl_b32 s88, {sTT}, 15
s_add_u32 s88, s88, s76
s_add_u32 s88, s88, {WS_OA}
s_lshl_b32 {sOT}, {sHG}, 12
s_add_u32 {sOT}, {sOT}, s88
s_lshl2_add_u32 s84, {sHG}, {sHW}
s_mul_i32 s85, s84, {17*4096}
s_add_u32 s85, s85, {WS_KVP}
s_lshl1_add_u32 s86, {sHG}, {sP}
s_lshl_b32 s87, {sTB}, 12
s_lshl_b32 {sT0}, {sTT}, 7
s_add_u32 s87, s87, {sT0}
s_add_u32 s87, s87, {WS_FL}
ds_write_b64 v{vZ}, v[26:27] offset:{L_CNT}
ds_write_b64 v{vZ}, v[26:27] offset:{L_CNT+8}
ds_write_b32 v{vZ}, v17 offset:{L_ONES}
ds_write_b32 v{vZ}, v17 offset:{L_ONES+4}
ds_write_b32 v{vZ}, v17 offset:{L_ONES+8}
ds_write_b32 v{vZ}, v17 offset:{L_ONES+12}
s_waitcnt vmcnt(0)
s_cmp_eq_u32 {sW}, 4
s_cbranch_scc0 L_nosig
s_cmp_lt_u32 {sT3}, 2
s_cbranch_scc0 L_nosig
s_lshl_b32 {sT0}, {sT3}, 7
s_mov_b64 exec, 1
buffer_atomic_add v{vONE}, v{vZ}, {SDBG}, {sT0} offen sc1
s_mov_b64 exec, -1
L_nosig:
""")
    s.vm = []
    for u in range(4):
        s.e("s_barrier")
        s.stamp(f"B{u+1}")
        for t in range(8 * u, 8 * u + 8):
            s.lds(f"ds_read_b128 {ar(4*t)}, v{XA + (t & 3)} offset:{(t >> 2)*8192}", "x")
    A0, A1 = 64, 80
    LAG = 4
    def ring(t): return 32 + 4 * (t % 5)
    def gemm(steps, pre=None):
        n = len(steps)
        def mm(t):
            s.wait(lg=f"w{t}")
            s.e(steps[t][3].replace("WF", vr(ring(t))))
        for t in range(n):
            if pre: pre(t)
            a, off, rs, _ = steps[t]
            for rd in range(2):
                s.lds(f"ds_read_b64_tr_b16 {vr(ring(t)+2*rd,2)}, v{a} offset:{off + rd*rs}", f"w{t}")
            if t >= LAG: mm(t - LAG)
        for t in range(n - LAG, n): mm(t)
    def p1steps(va, acc, swap):
        return [(va, t * 2048, 512, mfma(vr(acc, 16), *((ar(4 * t), "WF") if swap else ("WF", ar(4 * t))), "0" if t == 0 else vr(acc, 16))) for t in range(32)]
    def pre(t):
        if t % 8 == 0:
            s.e("s_barrier")
            s.stamp(f"B{5 + t // 8}")
        if t == 24:
            skip = lbl("cs")
            s.e(f"v_and_b32 v17, 0x80, v{vFLG}\ns_cmp_eq_u32 {sHW}, 3\ns_cbranch_scc0 {skip}\nbuffer_load_dword v16, v17, {SDBG}, 0 offen sc1\n{skip}:")
        if t == 8:
            s.lds(f"ds_write2st64_b32 v{vOD}, v{vNEG}, v{vNEG} offset0:8 offset1:17")
            s.lds(f"ds_write2st64_b32 v{vOD}, v{vNEG}, v{vNEG} offset0:26 offset1:35")
    gemm(p1steps(vW1, A1, False), pre)
    s.e("s_nop 11")
    for a in range(2):
        for q in range(4): s.e(f"v_cvt_pk_bf16_f32 v{104+4*a+q}, v{A1+8*a+2*q}, v{A1+8*a+2*q+1}")
        s.lds(f"ds_write_b128 v{vQW}, {vr(104+4*a)} offset:{a*2048}")
    top, done = lbl("cl"), lbl("cld")
    s.e(f"s_cmp_eq_u32 {sHW}, 3\ns_cbranch_scc0 {done}\ns_branch {top}c\n{top}:\nbuffer_load_dword v16, v17, {SDBG}, 0 offen sc1")
    s.e(f"{top}c:\ns_waitcnt vmcnt(0)\nv_cmp_gt_u32 vcc, 32, v16\ns_cbranch_vccz {done}")
    spin_tail(s, top, done, 2)
    s.wait(lg="all"); s.stamp("qdone"); s.e("s_barrier")
    def dma_chunk(c, srd, voff, rowbytes, colimm, region, tag, natural):
        s.e(f"s_mul_i32 {sT0}, {KC[c]}, {64*rowbytes}\ns_add_u32 {sT0}, {sT0}, s77")
        if colimm: s.e(f"s_add_u32 {sT0}, {sT0}, {colimm}")
        if natural: s.e(f"s_lshl_b32 {sT1}, {KC[c]}, 13\ns_add_u32 {sT1}, {sT1}, {sW1K}\ns_add_u32 m0, {sT1}, {region}")
        else: s.e(f"s_add_u32 m0, {sW1K}, {region + c*8192}")
        s.e("s_nop 0")
        s.vmem(f"buffer_load_dwordx4 v{voff}, {srd}, {sT0} offen lds", tag)
        s.e(f"s_sub_u32 m0, m0, 4096\ns_nop 0")
        s.vmem(f"buffer_load_dwordx4 v{voff+8}, {srd}, {sT0} offen lds", tag)
    def dma_group(*a):
        for c in range(8): dma_chunk(c, *a)
    def ldswait(off, target, sleep):
        top, done = lbl("sb"), lbl("sbd")
        s.e(f"{top}:\nds_read_b32 v16, v{vZ} offset:{off}\ns_waitcnt lgkmcnt(0)\nv_readfirstlane_b32 {sT0}, v16\ns_cmp_ge_u32 {sT0}, {target}\ns_cbranch_scc1 {done}")
        spin_tail(s, top, done, sleep)
        s.lg = []
    nsb = [0]
    def sb_arrive():
        nsb[0] += 1
        s.e(f"s_mov_b64 exec, 1\nds_add_u32 v{vZ}, v{vONE} offset:{L_CNT}\ns_mov_b64 exec, -1")
    def sb_wait(sleep=1):
        ldswait(L_CNT, 4 * nsb[0], sleep)
        s.stamp(f"S{nsb[0]}")
    def softbar(sleep=1):
        sb_arrive(); sb_wait(sleep)
    def poll(vaddr, soff, imm, sleep=2):
        top, done = lbl("pl"), lbl("pld")
        o = f" offset:{imm}" if imm else ""
        s.e(f"{top}:\nbuffer_load_dword v16, v{vaddr}, {SWS}, {soff} offen{o} sc1\ns_waitcnt vmcnt(0)\nv_cmp_ne_u32 vcc, 1, v16\ns_cbranch_vccz {done}")
        spin_tail(s, top, done, sleep)
        s.vm = []
    def setflag(k):
        s.e(f"s_mov_b64 exec, 1")
        s.vmem(f"buffer_store_dword v{vONE}, v{vZ}, {SWS}, {sFL} offen offset:{4*k} sc1")
        s.e("s_mov_b64 exec, -1")
    def fin(hw, j, flag=False):
        skip = lbl("nf")
        s.e(f"s_cmp_eq_u32 {sHW}, {hw}\ns_cbranch_scc0 {skip}\ns_mov_b32 {sJ}, {j}\ns_call_b64 s[92:93], L_fin")
        s.e(f"{skip}:")
        s.stamp(f"fin{j}")
    def kvp_stores(r0, r1, r2):
        s.e(f"s_lshl_b32 {sT1}, {sTB}, 7\ns_add_u32 {sT1}, {sT1}, s85")
        s.vmem(f"buffer_store_dwordx4 {vr(r0)}, v{vKVPS}, {SWS}, {sT1} offen sc1")
        s.e(f"s_add_u32 {sT1}, {sT1}, 32768")
        s.vmem(f"buffer_store_dwordx4 {vr(r1)}, v{vKVPS}, {SWS}, {sT1} offen sc1")
        s.e(f"s_add_u32 {sT1}, {sT1}, 32768\ns_mov_b64 exec, 0xff")
        s.vmem(f"buffer_store_dwordx4 {vr(r2)}, v{vKVPS}, {SWS}, {sT1} offen sc1")
        s.e("s_mov_b64 exec, -1")
    T0, T1 = 96, 112
    def phi_logits():
        for a in range(2):
            for rd in range(2):
                s.lds(f"ds_read_b64_tr_b16 {vr(40+4*a+2*rd,2)}, v{vWPH} offset:{L_WPHI + a*512 + rd*256}")
        s.e("s_nop 4")
        for q in range(8): s.e(f"v_cvt_pk_bf16_f32 v{56+q}, v{A0+2*q}, v{A0+2*q+1}")
        s.wait(lg="all")
        s.e("s_nop 0")
        s.e(mfma(vr(T0, 16), "v[40:43]", "v[56:59]", 0))
        s.e(mfma(vr(T1, 16), "v[44:47]", "v[60:63]", 0))
        s.e("s_nop 11")
    s.stamp("B9")
    def pre(t):
        if t == 16: s.e("s_barrier"); s.stamp("B10")
    gemm(p1steps(vW0, A0, False), pre)
    sb_arrive()
    phi_logits()
    s.stamp("kgemm")
    sm = softmax_max_exp([T0, T1], 48)
    for k in range(3):
        for i, T in enumerate((T0, T1)):
            for sg in range(2):
                b = T + 8 * sg; d = 56 + 4 * i + 2 * sg
                if k == 0: sm.append(f"v_pk_add_f32 {vr(d,2)}, {vr(b,2)}, {vr(b+2,2)}")
                else: sm.append(f"v_pk_add_f32 {vr(d,2)}, {vr(d,2)}, {vr(b+2+2*k,2)}")
    for i in range(2):
        for sg in range(2):
            d = 56 + 4 * i + 2 * sg
            sm.append(f"v_add_f32 v{48+2*i+sg}, v{d}, v{d+1}")
    sm.append("s_nop 1")
    for m in (48, 50): sm.append(f"v_permlane32_swap_b32 v{m}, v{m+1}")
    for m in (48, 50): sm.append(f"v_add_f32 v{m}, v{m}, v{m+1}")
    for m in (48, 50): sm.append(f"v_rcp_f32 v{m}, v{m}")
    sm.append("s_nop 0")
    for m in (48, 50): sm.append(f"v_mov_b32 v{m+1}, v{m}")
    sm.append("s_nop 1")
    for m in (48, 50): sm.append(f"v_permlane32_swap_b32 v{m}, v{m+1}")
    for i, T in enumerate((T0, T1)):
        for j in range(8):
            sel = "op_sel_hi:[1,0]" if j < 4 else "op_sel:[0,1] op_sel_hi:[1,1]"
            sm.append(f"v_pk_mul_f32 {vr(T+2*j,2)}, {vr(T+2*j,2)}, {vr(48+2*i,2)} {sel}")
        for j in range(8):
            sm.append(f"v_cvt_pk_bf16_f32 v{T+j}, v{T+2*j}, v{T+2*j+1}")
    s.e("\n".join(sm))
    s.e(f"v_lshlrev_b32 v{vTO}, 6, v1")
    for q in range(4): s.e(f"v_mov_b32 v{56+q}, -1")
    s.stamp("ksm")
    sb_wait()
    ldswait(L_CNT + 4, 256, 3)
    s.stamp("go")
    dma_group(SWB, 5, 3072, 2048, L_R1, "VB", False)
    s.e(f"""
s_mul_i32 s3, s84, 17
s_add_u32 s3, s3, {sTB}
s_lshl_b32 s3, s3, 7
s_add_u32 s3, s3, {WS_KVF}
s_cmp_gt_u32 {sTB}, 16
s_cbranch_scc1 L_nokf
s_mov_b64 exec, 0xff
buffer_store_dwordx4 v[56:59], v1, {SWS}, s3 offen sc1
s_mov_b64 exec, -1
L_nokf:
s_cmp_ge_u32 {sHW}, 2
s_cbranch_scc0 L_nooa
buffer_store_dwordx4 v[56:59], v1, {SWS}, {sOT} offen offset:3072 sc1
L_nooa:
""")
    kvp_stores(56, 56, 56)
    s.vm[-1] = "clr"
    dma_chunk(0, SWB, 5, 3072, 0, L_R0, "QB", False)
    dma_chunk(1, SWB, 5, 3072, 0, L_R0, "QB", False)
    s.stamp("vbiss")
    s.wait(vm="VB")
    softbar()
    s.e("s_setprio 0")
    def pre(t):
        if t % 4 == 0 and t // 4 < 6: dma_chunk(2 + t // 4, SWB, 5, 3072, 0, L_R0, "QB", False)
        if t == 24:
            s.e(f"""
s_cmp_eq_u32 {sTT}, 0
s_cselect_b32 {sT1}, {KC[0]}, {KC[1]}
s_lshl_b32 {sT0}, {sT1}, 16
s_add_u32 {sT0}, {sT0}, s77
s_cmp_eq_u32 {sP}, 0
s_cbranch_scc0 L_tch1
buffer_load_dword v11, v{vTO}, {SOB}, {sT0} offen
s_branch L_tch2
L_tch1:
buffer_load_dword v11, v{vTO}, {SOA}, {sT0} offen
L_tch2:
""")
            s.vm.append("t")
            s.wait(vm="clr")
            setflag(0)
        if t == 22:
            s.e(f"""
s_lshl1_add_u32 s5, {sTB}, {sTT}
s_lshl_b32 s5, s5, 7
s_add_u32 s5, s5, {WS_G}
s_mul_i32 {sT0}, {sTT}, 9216
s_sub_u32 s5, s5, {sT0}
""")
            s.vmem(f"buffer_load_dword v{vG}, v{vOL}, {SWS}, s5 offen sc1", "QB")
    gemm(p1steps(vW1, A0, True), pre)
    s.e("s_setprio 2")
    s.wait(vm="QB")
    sb_arrive()
    top, done = lbl("gw"), lbl("gwd")
    s.e(f"s_nop 4\ns_branch {top}c\n{top}:\nbuffer_load_dword v{vG}, v{vOL}, {SWS}, s5 offen sc1\ns_waitcnt vmcnt(0)\n{top}c:\nv_cmp_eq_u32 vcc, -1, v{vG}\ns_cbranch_vccz {done}")
    spin_tail(s, top, done, 2)
    for q in range(8): s.e(f"v_cvt_pk_bf16_f32 v{104+q}, v{A0+2*q}, v{A0+2*q+1}")
    s.stamp("vgemm")
    sb_wait()
    for a, T in enumerate((T0, T1)):
        for q in range(4): s.lds(f"ds_write_b64 v{vPHW}, {vr(T+2*q,2)} offset:{O_PHI + a*2304 + q*16}")
    s.lds(f"ds_write_b128 v{vU}, v[104:107] offset:{O_VX}"); s.lds(f"ds_write_b128 v{vU}, v[108:111] offset:{O_VX + 1024}")
    for f in range(4): s.lds(f"ds_read_b128 {vr(80+4*f)}, v{vZ} offset:{L_ONES}")
    s.e("s_mov_b32 s82, 0xffff\ns_mov_b32 s83, 0xffff")
    softbar(0)
    for tt in range(2):
        for th in range(2):
            for rd in range(2):
                s.lds(f"ds_read_b64_tr_b16 {vr(96+8*tt+4*th+2*rd,2)}, v{vPHR} offset:{O_PHI + tt*4608 + th*16*72 + rd*8*72}")
    s.e("s_mov_b64 exec, s[82:83]")
    for tt in range(2):
        for th in range(2):
            s.lds(f"ds_read_b128 {vr(80+8*tt+4*th)}, v{vVXR} offset:{O_VX + tt*4096 + th*1024}")
    s.e("s_mov_b64 exec, -1")
    s.wait(lg="all")
    for f in range(4): s.e(mfma(vr(A0, 16), vr(96 + 4 * f), vr(80 + 4 * f), "0" if f == 0 else vr(A0, 16)))
    s.e("s_nop 11")
    for q in range(4): s.lds(f"ds_write_b128 v{vSCW}, {vr(A0+4*q)} offset:{O_SC + 16*q}")
    for t in range(3): s.lds(f"ds_read_b128 {vr(112+4*t)}, v{vSCR} offset:{O_SC + 1152*t}")
    s.wait(lg="all")
    kvp_stores(112, 116, 120)
    sb_arrive()
    s.e(f"s_lshl_b32 s73, s86, 8\ns_add_u32 s73, s73, {WS_FL}\nbuffer_load_dword v11, v{vFLG}, {SWS}, s73 offen sc1\nbuffer_load_dword v13, v{vZ}, {SWS}, s73 offen sc1")
    s.stamp("kvp")
    fin(0, 0); fin(1, 1)
    s.vm = []
    def a_loads():
        for t in range(4): s.e(f"buffer_load_dwordx4 {vr(80+4*t)}, v1, {SWS}, s4 offen offset:{1024*t} sc1")
    s.e(f"""
s_lshl_b32 s4, {sTB}, 12
s_add_u32 s4, s4, s85
s_setprio 0
""")
    TA_LD, TA_RED = int(os.environ.get("TALD", "10")), int(os.environ.get("TARED", "18"))
    def pre(t):
        if t == TA_LD:
            okl = lbl("fl")
            s.e(f"s_setprio 2\ns_waitcnt vmcnt(1)\nv_cmp_ne_u32 vcc, 1, v11\ns_cbranch_vccz {okl}")
            poll(vFLG, "s73", 0)
            s.e(f"{okl}:\ns_setprio 0\ns_cmp_gt_u32 {sTB}, 16\ns_cbranch_scc1 L_noal")
            a_loads()
            s.e("L_noal:")
        if t == TA_RED:
            top, done = lbl("sa"), lbl("sad")
            s.e(f"s_setprio 2\ns_cmp_gt_u32 {sTB}, 16\ns_cbranch_scc1 L_noA\ns_branch {top}c\n{top}:")
            a_loads()
            s.e(f"{top}c:\ns_waitcnt vmcnt(0)\nv_max3_u32 v16, v80, v81, v82")
            for q in range(6): s.e(f"v_max3_u32 v16, v16, v{83+2*q}, v{84+2*q}")
            s.e(f"v_max_u32 v16, v16, v95\nv_cmp_eq_u32 vcc, -1, v16\ns_cbranch_vccz {done}")
            spin_tail(s, top, done, 3)
            s.stamp("kvpok")
            s.e(f"""
v_pk_add_f32 v[80:81], v[80:81], v[84:85]
v_pk_add_f32 v[82:83], v[82:83], v[86:87]
v_pk_add_f32 v[88:89], v[88:89], v[92:93]
v_pk_add_f32 v[90:91], v[90:91], v[94:95]
v_pk_add_f32 v[80:81], v[80:81], v[88:89]
v_pk_add_f32 v[82:83], v[82:83], v[90:91]
s_nop 1
v_permlane32_swap_b32 v80, v81
v_permlane32_swap_b32 v82, v83
v_add_f32 v80, v80, v81
v_add_f32 v82, v82, v83
s_nop 1
v_permlane16_swap_b32 v80, v82
v_add_f32 v80, v80, v82
s_nop 1
v_add_f32_dpp v80, v80, v80 row_ror:8 row_mask:0xf bank_mask:0xf
v_cvt_pk_bf16_f32 v17, v80, v80
buffer_store_short v17, v{vKFS}, {SWS}, s3 offen sc1
L_noA:
""")
            s.stamp("stageA")
            sb_wait(); s.e("s_setprio 0")
        if TA_RED <= t < TA_RED + 8: dma_chunk(t - TA_RED, SOB, 4, 1024, 0, L_R1, "WOB", True)
    gemm(p1steps(vW0, A0, False), pre)
    s.e("s_setprio 2\ns_nop 2")
    s.stamp("qgemm")
    phi_logits()
    s.e("\n".join(softmax_max_exp([T0, T1], 48)))
    s.stamp("qsm")
    fin(2, 2); fin(3, 3)
    for f in range(4): s.lds(f"ds_read_b128 {vr(32+4*f)}, v{vZ} offset:{L_ONES}")
    s.e(f"""
s_mul_i32 s73, s86, {2*17*128}
s_add_u32 s73, s73, {WS_KVF}
s_mov_b32 s82, 0x5555ffff
s_mov_b32 s83, 0x5555ffff
""")
    s.wait(lg="all")
    def kvf_loads():
        s.e("s_mov_b64 exec, s[82:83]")
        for a in range(2):
            for sg in range(2):
                s.e(f"buffer_load_dwordx4 {vr(32+8*a+4*sg)}, v{vKFL}, {SWS}, s73 offen offset:{a*17*128 + sg*32} sc1")
        s.e("s_mov_b64 exec, -1")
    top, done = lbl("sbk"), lbl("sbkd")
    s.e(f"{top}:")
    kvf_loads()
    s.e(f"s_waitcnt vmcnt(0)\nv_pk_max_u16 v16, v32, v33")
    for q in range(14): s.e(f"v_pk_max_u16 v16, v16, v{34+q}")
    s.e(f"v_pk_max_u16 v16, v16, v16 op_sel:[0,1] op_sel_hi:[1,0]\nv_cmp_eq_u32 vcc, -1, v16\ns_cbranch_vccz {done}")
    spin_tail(s, top, done, 2)
    s.vm = []
    sb_arrive()
    s.stamp("kvfok")
    s.e(f"""
s_lshl_b32 {sT2}, {sP}, 11
s_add_u32 {sT1}, {sOT}, {sT2}
s_add_u32 {sT1}, {sT1}, {WS_OB - WS_OA}
s_mov_b32 {sT2}, {fbits(1e-6)}
v_sub_f32 v60, 1.0, v{vG}
""")
    for a in range(2):
        T = (T0, T1)[a]
        for D in (A0, A1): s.e(f"v_mfma_f32_32x32x8_bf16 {vr(D,16)}, v[26:27], v[26:27], 0")
        s.e("s_nop 9")
        s.e(f"v_smfmac_f32_32x32x32_bf16 {vr(A0,16)}, {vr(32+8*a)}, {vr(T,8)}, v{vIDX}")
        s.e(f"v_smfmac_f32_32x32x32_bf16 {vr(A1,16)}, {vr(36+8*a)}, {vr(T+8,8)}, v{vIDX}")
        s.e(f"""
s_nop 11
v_rcp_f32 v56, v{A0+9}
v_rcp_f32 v57, v{A1+9}
v_fma_f32 v58, v{A0+8}, v56, {sT2}
v_fmac_f32 v58, v{A1+8}, v57
v_rcp_f32 v58, v58
s_nop 0
v_mul_f32 v58, v58, v60
v_pk_mul_f32 v[56:57], v[56:57], v[58:59] op_sel_hi:[1,0]
""")
        for q in range(4): s.e(f"v_pk_mul_f32 {vr(A0+2*q,2)}, {vr(A0+2*q,2)}, v[56:57] op_sel_hi:[1,0]")
        for q in range(4): s.e(f"v_pk_fma_f32 {vr(A0+2*q,2)}, {vr(A1+2*q,2)}, v[56:57], {vr(A0+2*q,2)} op_sel:[0,1,0] op_sel_hi:[1,1,1]")
        for q in range(4): s.e(f"v_cvt_pk_bf16_f32 v{48+4*a+q}, v{A0+2*q}, v{A0+2*q+1}")
        s.vmem(f"buffer_store_dwordx4 {vr(48+4*a)}, v1, {SWS}, {sT1} offen offset:{a*1024} sc1", "ob")
    s.stamp("obst")
    sb_wait()
    dma_group(SOA, 4, 1024, 0, L_R0, "WOA", True)
    s.wait(vm="ob")
    setflag(2)
    s.stamp("ob")
    vBo, vBx, vAo, vAx, vAl, vXW, vXR, vOUT = vW0, vW1, vPHW, vPHR, vPB, vU, vVXR, vSCW
    s.e(f"""
s_lshl_b32 {sT0}, {sP}, 15
s_add_u32 {sT1}, {sT0}, {L_R1}
v_add_u32 v{vBo}, {sT1}, v{vPB}
v_xor_b32 v{vBx}, 64, v{vBo}
s_lshl_b32 s4, {sP}, 14
s_add_u32 s4, s4, s88
""")
    fin(0, 4)
    poll(vGF, "s87", 8)
    skip = lbl("ae")
    s.e(f"s_cmp_eq_u32 {sHW}, 0\ns_cbranch_scc0 {skip}")
    setflag(3)
    s.e(f"{skip}:")
    s.vm = []
    s.stamp("obok")
    AO, AX = 96, 112
    s.e(f"s_add_u32 {sT1}, s4, {WS_OB - WS_OA}")
    for t in range(16):
        if t and t % 4 == 0: s.e(f"s_add_u32 {sT1}, {sT1}, 4096")
        s.vmem(f"buffer_load_dwordx4 {ar(4*t)}, v1, {SWS}, {sT1} offen offset:{(t & 3)*1024} sc1", "obf")
    def a_early(heads):
        s.e(f"s_mov_b32 {sT1}, s4")
        for g in range(4):
            if g: s.e(f"s_add_u32 {sT1}, {sT1}, 4096")
            for a in heads: s.vmem(f"buffer_load_dwordx4 {ar(64 + 16*a + 4*g)}, v1, {SWS}, {sT1} offen offset:{a*1024} sc1")
    a_early((0, 1))
    s.stamp("obiss")
    skip = lbl("f5")
    s.e(f"s_cmp_eq_u32 {sHW}, 1\ns_cbranch_scc0 {skip}\ns_mov_b32 {sJ}, 5\ns_call_b64 s[92:93], L_fin\ns_waitcnt vmcnt(0)")
    sv = list(s.vm); setflag(3); s.vm = sv
    s.e(f"{skip}:")
    s.stamp("fin5")
    s.wait(vm="obf")
    s.e("s_setprio 0")
    gemm([(vBx, t * 2048, 1024, mfma(vr(AX, 16), "WF", ar(4 * t), "0" if t == 0 else vr(AX, 16))) for t in range(16)])
    s.e(f"s_setprio 2\nv_and_b32 v{vGF}, 0xe00, v{vGF}")
    s.stamp("p3b")
    poll(vGF, "s87", 12, sleep=4)
    s.stamp("aeok")
    a_early((2,))
    fin(2, 6)
    s.wait(vm="all")
    s.stamp("aeld")
    s.e("s_barrier")
    s.stamp("BT")
    fin(3, 7)
    s.e(f"""
s_lshl_b32 {sT0}, {sP}, 15
s_add_u32 {sT1}, {sT0}, {L_R0}
v_add_u32 v{vAo}, {sT1}, v{vPB}
v_xor_b32 v{vAx}, 64, v{vAo}
v_add_u32 v{vAl}, {L_R0}, v{vPB}
""")
    ea = [(g, a) for g in range(4) for a in range(3)]
    steps = [(vAx, (4*g + a) * 2048, 1024, mfma(vr(AX, 16), "WF", ar(64 + 16*a + 4*g), vr(AX, 16))) for g, a in ea]
    steps += [(vBo, t * 2048, 1024, mfma(vr(AO, 16), "WF", ar(4 * t), "0" if t == 0 else vr(AO, 16))) for t in range(16)]
    steps += [(vAo, (4*g + a) * 2048, 1024, mfma(vr(AO, 16), "WF", ar(64 + 16*a + 4*g), vr(AO, 16))) for g, a in ea]
    def late_loads():
        s.e(f"s_mov_b32 {sT1}, s88")
        for i in range(8):
            if i: s.e(f"s_add_u32 {sT1}, {sT1}, 4096")
            s.e(f"buffer_load_dwordx4 {vr(64+4*i)}, v1, {SWS}, {sT1} offen offset:3072 sc1")
    TLATE = int(os.environ.get("TLATE", "26"))
    def pre(t):
        if t == 5:
            s.e(f"""
s_lshl_b32 {sT0}, {sTT}, 12
s_lshr_b32 {sT1}, {L_Q}, {sTT}
s_cmp_eq_u32 {sP}, 0
s_cselect_b32 {sT2}, {sT0}, {sT1}
s_cselect_b32 {sT3}, {sT1}, {sT0}
""")
        if t == 6: s.e(f"v_add_u32 v{vXW}, {sT2}, v1\nv_add_u32 v{vXR}, {sT3}, v1\nv_and_b32 v17, 0x1f0, v1")
        if t == 7: s.e(f"v_lshlrev_b32 v17, 6, v17\nv_lshrrev_b32 v16, 9, v1\nv_lshl_add_u32 v{vOUT}, v16, 5, v17")
        if t == 8: s.e(f"s_sub_u32 s5, s88, {WS_OA}\ns_add_u32 s5, s5, s77\ns_lshl_b32 {sT3}, {sP}, 6\ns_add_u32 s5, s5, {sT3}")
        if 19 <= t < 23: s.lds(f"ds_write_b128 v{vXW}, {vr(AX + 4*(t-19))} offset:{(t-19)*1024}")
        if t == TLATE: late_loads()
        if t >= 32:
            i = t - 32
            for rd in range(2):
                s.lds(f"ds_read_b64_tr_b16 {ar(4*i+2*rd,2)}, v{vAl} offset:{(4*i+3)*2048 + rd*1024}", f"w{t}")
    gemm(steps, pre)
    s.e("s_waitcnt lgkmcnt(0)\ns_barrier")
    for q in range(4): s.lds(f"ds_read_b128 {vr(AX + 4*q)}, v{vXR} offset:{q*1024}")
    s.stamp("p3a")
    top, done = lbl("lt"), lbl("ltd")
    s.e(f"s_branch {top}c\n{top}:")
    late_loads()
    s.e(f"{top}c:")
    for i in range(8):
        s.e(f"s_waitcnt vmcnt({7-i})")
        if i == 0: s.e("v_max3_u32 v16, v64, v65, v66\nv_max_u32 v16, v16, v67")
        else: s.e(f"v_max3_u32 v16, v16, v{64+4*i}, v{65+4*i}\nv_max3_u32 v16, v16, v{66+4*i}, v{67+4*i}")
    s.e(f"v_cmp_eq_u32 vcc, -1, v16\ns_cbranch_vccz {done}")
    spin_tail(s, top, done, 0)
    s.stamp("late")
    for i in range(8): s.e(mfma(vr(AO, 16), ar(4 * i), vr(64 + 4 * i), vr(AO, 16)))
    s.wait(lg="all")
    s.e("s_nop 10")
    for q in range(8): s.e(f"v_pk_add_f32 {vr(AO+2*q,2)}, {vr(AO+2*q,2)}, {vr(AX+2*q,2)}")
    for q in range(8): s.e(f"v_cvt_pk_bf16_f32 v{36+q}, v{AO+2*q}, v{AO+2*q+1}")
    s.e(f"buffer_store_dwordx4 v[36:39], v{vOUT}, {SOUT}, s5 offen\nbuffer_store_dwordx4 v[40:43], v{vOUT}, {SOUT}, s5 offen offset:16")
    if STAMP or CAL:
        s.e("s_waitcnt vmcnt(0)"); s.stamp("end")
    if STAMP: write_stamps(s)
    if CAL: cal_end(s)
    s.e("L_exit:\ns_endpgm")
    top, done = "L_fin", lbl("fpd")
    s.e(f"""
{top}:
ds_read_b32 v17, v{vFC} offset:{L_CNT + 8}
ds_read2st64_b32 v[64:65], v{vOL} offset0:8 offset1:17
ds_read2st64_b32 v[66:67], v{vOL} offset0:26 offset1:35
""")
    for cw in range(4):
        for q in range(4):
            s.e(f"ds_read2st64_b32 {vr(32+8*cw+2*q,2)}, v{vOD} offset0:{9*cw+2*q} offset1:{9*cw+2*q+1}")
    s.e(f"""
s_lshr_b32 {sT1}, {sJ}, 1
s_waitcnt lgkmcnt(15)
v_min3_f32 v16, v64, v65, v66
v_cmp_ne_u32 s[82:83], {sT1}, v17
v_min_f32 v16, v16, v67
v_cmp_eq_f32 vcc, -1.0, v16
s_or_b64 vcc, vcc, s[82:83]
s_cbranch_vccz {done}
""")
    spin_tail(s, top, done, 2)
    s.e(f"""
v_pk_add_f32 v[64:65], v[64:65], v[66:67]
v_add_u32 v17, 1, v17
s_lshl_b32 {sT1}, {sT1}, 10
s_add_u32 s89, {sT1}, {sOT}
v_add_f32 v64, v64, v65
s_mov_b32 {sT0}, {fbits(2.0**-60)}
s_mov_b32 {sT1}, {fbits(2.0**64)}
v_cmp_nge_f32 s[82:83], v64, {sT0}
v_cmp_nle_f32 s[90:91], v64, {sT1}
v_rcp_f32 v64, v64
s_waitcnt lgkmcnt(0)
ds_write2st64_b32 v{vOD}, v{vNEG}, v{vNEG} offset0:8 offset1:17
ds_write2st64_b32 v{vOD}, v{vNEG}, v{vNEG} offset0:26 offset1:35
ds_write_b32 v{vFC}, v17 offset:{L_CNT + 8}
""")
    for q in range(4): s.e(f"v_pk_add_f32 {vr(32+2*q,2)}, {vr(32+2*q,2)}, {vr(40+2*q,2)}")
    for q in range(4): s.e(f"v_pk_add_f32 {vr(48+2*q,2)}, {vr(48+2*q,2)}, {vr(56+2*q,2)}")
    for q in range(4): s.e(f"v_pk_add_f32 {vr(32+2*q,2)}, {vr(32+2*q,2)}, {vr(48+2*q,2)}")
    s.e(f"""
v_pk_mul_f32 v[40:41], v[32:33], v[26:27]
v_pk_fma_f32 v[40:41], v[34:35], v[26:27], v[40:41]
v_pk_fma_f32 v[40:41], v[36:37], v[26:27], v[40:41]
v_pk_fma_f32 v[40:41], v[38:39], v[26:27], v[40:41]
s_or_b64 s[82:83], s[82:83], s[90:91]
v_cmp_u_f32 vcc, v40, v41
s_or_b64 vcc, vcc, s[82:83]
""")
    s.e("s_branch L_fb" if FORCE_FB else "s_cbranch_vccnz L_fb")
    s.e(f"L_fnorm:\nv_mul_f32 v64, v64, v{vG}")
    for q in range(4): s.e(f"v_pk_mul_f32 {vr(32+2*q,2)}, {vr(32+2*q,2)}, v[64:65] op_sel_hi:[1,0]")
    for q in range(4): s.e(f"v_cvt_pk_bf16_f32 v{68+q}, v{32+2*q}, v{33+2*q}")
    s.e(f"buffer_store_dwordx4 v[68:71], v1, {SWS}, s89 offen sc1\ns_nop 0\ns_setpc_b64 s[92:93]")
    O, Sx = 32, 48
    if STAMP: s.e(f"L_fb:\ns_mov_b64 exec, 1\nbuffer_atomic_add v{vONE}, v{vZ}, {SDBG}, 0 offen offset:8 sc1\ns_mov_b64 exec, -1")
    else: s.e("L_fb:")
    t1, d1, t2, d2 = lbl("fa"), lbl("fad"), lbl("fc"), lbl("fcd")
    s.e(f"""
s_lshl_b32 {sT0}, {sJ}, 10
s_add_u32 {sT0}, {sT0}, {L_Q}
v_add_u32 v16, {sT0}, v1
ds_read_b128 v[68:71], v16
v_bfe_u32 v65, v1, 4, 5
v_lshrrev_b32 v17, 9, v1
v_bfe_u32 v16, v1, 4, 4
v_lshl_add_u32 v16, v17, 4, v16
v_lshlrev_b32 v16, 4, v16
v_mov_b32 v17, 0x80000000
v_cmp_gt_u32 vcc, 16, v65
v_mov_b32 v66, 0x400
v_mov_b32 v67, 0x200
v_cndmask_b32 v16, v17, v16, vcc
v_cmp_eq_u32 vcc, 16, v65
v_mov_b32 v64, 0xff800000
s_mov_b32 {sT0}, 0
v_cndmask_b32 v66, v16, v66, vcc
v_cndmask_b32 v67, v16, v67, vcc
{t1}:
buffer_load_dwordx4 v[72:75], v1, {SWS}, {sT0} offen sc1
s_waitcnt vmcnt(0) lgkmcnt(0)
v_max3_u32 v16, v72, v73, v74
v_max_u32 v16, v16, v75
v_cmp_eq_u32 vcc, -1, v16
s_cbranch_vccz {d1}
""")
    spin_tail(s, t1, d1, 2)
    s.e(mfma(vr(Sx,16), "v[72:75]", "v[68:71]", 0) + "\ns_nop 11")
    for q in range(8): s.e(f"v_max3_f32 v64, v64, v{Sx+2*q}, v{Sx+2*q+1}")
    s.e(f"""
s_add_u32 {sT0}, {sT0}, {KVREC}
s_cmp_lt_u32 {sT0}, {64*KVREC}
s_cbranch_scc1 {t1}
v_mov_b32 v65, v64
s_nop 1
v_permlane32_swap_b32 v64, v65
v_max_f32 v64, v64, v65
v_mfma_f32_32x32x8_bf16 {vr(O,16)}, v[26:27], v[26:27], 0
s_mov_b32 {sT0}, 0
{t2}:
buffer_load_dwordx4 v[72:75], v1, {SWS}, {sT0} offen sc1
buffer_load_dwordx4 v[76:79], v66, {SWS}, {sT0} offen offset:1024 sc1
buffer_load_dwordx4 v[80:83], v67, {SWS}, {sT0} offen offset:1536 sc1
s_waitcnt vmcnt(0)
v_max3_u32 v16, v76, v77, v78
v_max3_u32 v16, v16, v79, v80
v_max3_u32 v16, v16, v81, v82
v_max_u32 v16, v16, v83
v_cmp_eq_u32 vcc, -1, v16
s_cbranch_vccz {d2}
""")
    spin_tail(s, t2, d2, 2)
    s.e(mfma(vr(Sx,16), "v[72:75]", "v[68:71]", 0) + "\ns_nop 11")
    for q in range(16): s.e(f"v_sub_f32 v{Sx+q}, v{Sx+q}, v64")
    for q in range(16): s.e(f"v_exp_f32 v{Sx+q}, v{Sx+q}")
    s.e(f"""
s_nop 1
v_smfmac_f32_32x32x32_bf16 {vr(O,16)}, v[76:79], {vr(Sx,8)}, v{vIDX}
v_smfmac_f32_32x32x32_bf16 {vr(O,16)}, v[80:83], {vr(Sx+8,8)}, v{vIDX}
s_add_u32 {sT0}, {sT0}, {KVREC}
s_cmp_lt_u32 {sT0}, {64*KVREC}
s_cbranch_scc1 {t2}
s_nop 11
v_rcp_f32 v64, v{O+8}
s_nop 0
v_mov_b32 v65, v64
s_nop 1
v_permlane32_swap_b32 v64, v65
s_branch L_fnorm
""")
    return s

def build():
    p = prologue()
    c = p.fork(); h = p.fork()
    c_path(c); h_path(h)
    hdr = open(os.path.join(os.path.dirname(__file__), "..", "cdna_kernels", NAME + ".s.ref")).read().split("\n")
    top = [l for l in hdr if l.startswith(";") and "@launch" not in l and "Override" not in l and "grid=ceil" not in l]
    out = top + [f"; @launch grid=(256,1,1) block=(512,1,1) lds={LDS_BYTES}",
        '.amdgcn_target "amdgcn-amd-amdhsa--gfx950"', ".text", f".globl {NAME}_kernel", ".p2align 8",
        f".type {NAME}_kernel,@function", f"{NAME}_kernel:", p.text(), c.text(), h.text(),
        f".fill (33024 - (. - {NAME}_kernel)) / 4, 4, 0xbf810000",
        '.section .rodata,"a"', ".p2align 6", f".amdhsa_kernel {NAME}_kernel",
        "  .amdhsa_next_free_vgpr 256", "  .amdhsa_next_free_sgpr 102", "  .amdhsa_accum_offset 128",
        "  .amdhsa_group_segment_fixed_size 0", "  .amdhsa_kernarg_size 104", "  .amdhsa_user_sgpr_count 2",
        "  .amdhsa_user_sgpr_kernarg_segment_ptr 1", "  .amdhsa_system_sgpr_workgroup_id_x 1",
        "  .amdhsa_float_denorm_mode_32 3",
        ".end_amdhsa_kernel", ""]
    return "\n".join(out)

if __name__ == "__main__":
    txt = build()
    dst = sys.argv[1] if len(sys.argv) > 1 else os.path.join(os.path.dirname(__file__), "..", "cdna_kernels", NAME + ".s")
    open(dst, "w").write(txt)
    if STAMP:
        import json; json.dump(STAMPS, open(dst + ".json", "w"))
    sys.path.insert(0, os.path.dirname(__file__))
    import hazcheck
    print("hazards:", hazcheck.check(txt), " lines:", txt.count("\n"))
```

```python
import sys, os, math
NAME = "gated_mix__grouped_kv_mqa__linear_kernel_hedgehog__prompt"
STAMP = int(os.environ.get("STAMP", "0"))
CAL = os.environ.get("CAL", "")
FORCE_FB = int(os.environ.get("FORCE_FB", "0"))

KVREC = 2176
WS_KV = 0
WS_G = 0x24000
WS_FL = 0x40000
WS_KVF = 0x60000
WS_ST = 0x80000
WS_KVP = 0x100000
WS_OA = 0x400000
WS_OB = 0x600000
WS_SIZE = 0x800000
L_OACC = 0
L_Q = 18432
L_GATE = 26688
L_WPHI = 27712
L_CNT = 26624
L_ONES = 26640
L_R0 = 32768
L_R1 = 98304
LDS_BYTES = 163840
SX, SWB, SWQ, SJ, SWS, SG, SPH, SOA, SOB, SOUT, SDBG = (f"s[{i}:{i+3}]" for i in range(8, 52, 4))
sW, sTB, sHG, sR, sROLE, sTT, sP, sW1K = "s52", "s53", "s54", "s55", "s56", "s57", "s58", "s59"
KC = [f"s{60+i}" for i in range(8)]
sBUD = "s68"
sT0, sT1, sT2, sT3 = "s69", "s70", "s71", "s72"
sLOG = "s[74:75]"
LOG2E = 0x3fb8aa3b
KSCALE = 0.25 * math.log2(math.e)
import struct
def fbits(x): return struct.unpack("<I", struct.pack("<f", x))[0]

STAMPS = {}
class S:
    def __init__(self):
        self.L = []; self.vm = []; self.lg = []; self.nst = 0
    def e(self, s):
        for l in s.strip("\n").split("\n"): self.L.append("    " + l.strip() if not l.strip().endswith(":") else l.strip())
    def vmem(self, s, tag=None): self.e(s); self.vm.append(tag)
    def lds(self, s, tag=None):
        self.e(s)
        if s.startswith("ds_read"): self.lg.append(tag)
    def _cnt(self, q, tag, mx):
        idx = [i for i, t in enumerate(q) if t == tag]
        if not idx: return None
        n = len(q) - 1 - idx[-1]
        del q[: idx[-1] + 1]
        return min(n, mx)
    def wait(self, vm=None, lg=None):
        parts = []
        if vm == "all": parts.append("vmcnt(0)"); self.vm = []
        elif vm is not None:
            n = self._cnt(self.vm, vm, 63)
            if n is not None: parts.append(f"vmcnt({n})")
        if lg == "all": parts.append("lgkmcnt(0)"); self.lg = []
        elif lg is not None:
            n = self._cnt(self.lg, lg, 15)
            if n is not None: parts.append(f"lgkmcnt({n})")
        if parts: self.e("s_waitcnt " + " ".join(parts))
    def fork(self):
        o = S(); o.vm = list(self.vm); o.lg = list(self.lg); o.nst = self.nst; return o
    def stamp(self, name):
        if CAL and CAL.split(":")[:2] == [self.stv, name]:
            self.e("s_memtime s[94:95]")
        if STAMP:
            names = STAMPS.setdefault(self.stv, [])
            if name not in names: names.append(name)
            k = 2 + names.index(name)
            import re as _re
            if not _re.fullmatch(os.environ.get("STSEL", ".*"), name): return
            if os.environ.get("STWAIT"):
                self.e(f"s_memtime s[98:99]\ns_waitcnt lgkmcnt(0)\nv_writelane_b32 {self.stv}, s98, {k}")
                self.lg = []
            else:
                self.e(f"s_mov_b32 s101, m0\ns_mov_b32 m0, s100\ns_nop 0\nv_writelane_b32 {self.stv}, s98, m0\ns_mov_b32 m0, s101\ns_memtime s[98:99]\ns_mov_b32 s100, {k}")
    def text(self): return "\n".join(self.L)

_lbl = [0]
def lbl(p):
    _lbl[0] += 1
    return f"L_{p}{_lbl[0]}"

def vr(a, n=4): return f"v[{a}:{a+n-1}]"
def ar(a, n=4): return f"a[{a}:{a+n-1}]"
def mfma(d, a, b, c): return f"v_mfma_f32_32x32x16_bf16 {d}, {a}, {b}, {c}"

def spin_tail(s, top, done, sleep):
    s.e(f"s_sub_u32 {sBUD}, {sBUD}, 1\ns_cbranch_scc1 {done}_x")
    if sleep: s.e(f"s_sleep {sleep}")
    s.e(f"s_branch {top}\n{done}_x:\ns_mov_b32 {sBUD}, 0\n{done}:")

PF = int(os.environ.get("PF", "1"))
def prologue():
    s = S()
    if PF:
        s.e("""
s_getpc_b64 s[90:91]
s_lshl_b32 s3, s2, 7
s_and_b32 s3, s3, 0x7c00
v_and_b32 v1, 0x1c0, v0
v_lshl_add_u32 v1, v1, 1, s3
v_and_b32 v2, 1, v0
v_lshl_add_u32 v1, v2, 15, v1
v_min_u32 v1, CODE_BYTES, v1
global_load_dword v127, v1, s[90:91]
""")
    s.e(f"""
s_load_dwordx2 s[8:9], s[0:1], 0
s_load_dwordx2 s[16:17], s[0:1], 8
s_load_dwordx4 s[4:7], s[0:1], 16
s_load_dwordx2 s[24:25], s[0:1], 96
s_load_dwordx2 s[28:29], s[0:1], 72
s_load_dwordx2 s[48:49], s[0:1], 88
s_cmp_ge_u32 s2, 0x100
s_cbranch_scc1 L_exit
""")
    if STAMP: s.e("s_memrealtime s[94:95]\ns_memtime s[96:97]\ns_mov_b32 s100, 62\ns_mov_b32 s98, 0")
    if CAL: s.e("s_memtime s[96:97]")
    s.e(f"""
v_lshrrev_b32 v1, 6, v0
s_mov_b32 s10, 0x200000
s_mov_b32 s11, 0x20000
v_readfirstlane_b32 {sW}, v1
v_lshrrev_b32 v6, 3, v0
v_and_b32 v2, 7, v0
v_bfe_u32 v3, v0, 4, 3
v_xor_b32 v3, v3, v2
v_lshlrev_b32 v4, 10, v6
v_lshl_add_u32 v3, v3, 4, v4
s_and_b32 {sT0}, s2, 7
s_bfe_u32 {sHG}, s2, 0x30003
s_lshr_b32 {sT1}, s2, 6
s_lshl2_add_u32 {sTB}, {sT0}, {sT1}
s_lshl_b32 {sT1}, {sT1}, 1
s_add_u32 {sR}, {sHG}, {sT1}
s_add_u32 {sR}, {sR}, {sT0}
s_and_b32 {sR}, {sR}, 7
s_sub_u32 {sT1}, {sHG}, {sT1}
s_and_b32 {sT1}, {sT1}, 7
s_add_u32 {sT1}, {sT1}, 1
s_cmp_lt_u32 {sT1}, 4
s_cselect_b32 {sROLE}, {sT1}, 0
s_lshl_b32 {sW1K}, {sW}, 10
s_lshl_b32 s76, {sTB}, 16
s_lshl_b32 s77, {sHG}, 7
""")
    for c in range(8):
        if c == 0: s.e(f"s_mov_b32 {KC[0]}, {sR}")
        else: s.e(f"s_add_u32 {KC[c]}, {sR}, {c}\ns_and_b32 {KC[c]}, {KC[c]}, 7")
    s.e(f"""
v_lshrrev_b32 v5, 2, v0
v_and_b32 v5, 4, v5
v_xor_b32 v5, v5, v2
v_lshl_add_u32 v4, v5, 4, v4
v_mul_u32_u24 v6, 3072, v6
v_lshl_add_u32 v5, v5, 4, v6
v_and_b32 v2, 63, v0
v_lshlrev_b32 v1, 4, v2
s_mov_b32 s18, 0x80000
s_mov_b32 s19, 0x20000
s_mov_b32 s22, 0x4000
s_mov_b32 s23, 0x20000
s_mov_b32 s26, {WS_SIZE}
s_mov_b32 s27, 0x20000
s_mov_b32 s30, 0x400
s_mov_b32 s31, 0x20000
s_mov_b32 s50, 0x100
s_mov_b32 s51, 0x20000
s_lshl_b32 {sT0}, {KC[0]}, 7
s_add_u32 m0, {sW1K}, {L_R0}
s_add_u32 {sT0}, {sT0}, s76
s_waitcnt lgkmcnt(0)
buffer_load_dwordx4 v3, {SX}, {sT0} offen lds
s_load_dwordx2 s[12:13], s[0:1], 48
s_load_dwordx2 s[32:33], s[0:1], 56
s_load_dwordx2 s[36:37], s[0:1], 32
s_load_dwordx2 s[40:41], s[0:1], 64
s_load_dwordx2 s[44:45], s[0:1], 80
s_cmp_eq_u32 {sROLE}, 2
s_cselect_b64 s[20:21], s[6:7], s[4:5]
s_sub_u32 {sT3}, {sROLE}, 1
s_cmp_lt_u32 {sT3}, 2
s_cbranch_scc0 L_noprod
s_add_u32 {sT0}, {sW}, {sR}
s_and_b32 {sT0}, {sT0}, 7
s_lshl_b32 m0, {sW}, 11
s_lshl_b32 {sT0}, {sT0}, 11
buffer_load_dwordx4 v1, {SJ}, {sT0} offen lds
buffer_load_dwordx4 v1, {SJ}, {sT0} offen offset:1024 lds
s_cmp_eq_u32 {sW}, 4
s_cbranch_scc0 L_burst
v_mov_b32 v8, -1
v_mov_b32 v9, -1
v_mov_b32 v10, -1
v_mov_b32 v11, -1
s_mul_i32 {sT0}, {sTB}, {2*KVREC}
s_lshl_b32 {sT1}, {sT3}, 10
s_add_u32 {sT1}, {sT1}, {sT0}
buffer_store_dwordx4 v[8:11], v1, {SWS}, {sT1} offen sc1
buffer_store_dwordx4 v[8:11], v1, {SWS}, {sT1} offen offset:{KVREC} sc1
v_mov_b32 v12, 0
v_mov_b32 v13, 0
v_mov_b32 v14, 0
v_mov_b32 v15, 0
s_lshl1_add_u32 {sT1}, {sTB}, {sT3}
s_lshl_b32 {sT1}, {sT1}, 11
s_add_u32 {sT1}, {sT1}, {WS_FL}
buffer_store_dwordx4 v[12:15], v1, {SWS}, {sT1} offen sc1
buffer_store_dwordx4 v[12:15], v1, {SWS}, {sT1} offen offset:1024 sc1
s_cmp_eq_u32 {sT3}, 0
s_cbranch_scc0 L_clrV
s_lshl_b32 {sT1}, {sTB}, 8
s_add_u32 {sT1}, {sT1}, {WS_G}
s_mov_b64 exec, 0xffff
buffer_store_dwordx4 v[8:11], v1, {SWS}, {sT1} offen sc1
s_mov_b64 exec, -1
s_branch L_burst
L_clrV:
v_mov_b32 v16, 0x3f803f80
v_mov_b32 v17, v16
v_mov_b32 v18, v16
v_mov_b32 v19, v16
s_add_u32 {sT0}, {sT0}, 2048
s_mov_b64 exec, 0xff
buffer_store_dwordx4 v[16:19], v1, {SWS}, {sT0} offen sc1
buffer_store_dwordx4 v[16:19], v1, {SWS}, {sT0} offen offset:{KVREC} sc1
s_mov_b64 exec, -1
s_branch L_burst
L_noprod:
s_cmp_eq_u32 {sROLE}, 3
s_cbranch_scc0 L_nogate
s_cmp_eq_u32 {sW}, 0
s_cbranch_scc0 L_nogate
s_lshl_b32 {sT0}, {sR}, 7
v_add_u32 v6, {sT0}, v1
s_movk_i32 m0, {L_GATE}
v_and_b32 v6, 0x3ff, v6
buffer_load_dwordx4 v6, {SG}, 0 offen lds
L_nogate:
s_barrier
""")
    for c in range(2):
        s.e(f"s_lshl_b32 {sT0}, {KC[c]}, 16\ns_add_u32 m0, {sW1K}, {L_R1 + c*8192}\ns_add_u32 {sT0}, {sT0}, s77")
        s.e(f"buffer_load_dwordx4 v4, {SWQ}, {sT0} offen lds")
    s.e(f"L_burst:\ns_lshl_b32 {sT0}, {KC[1]}, 7\ns_add_u32 m0, {sW1K}, {L_R0 + 8192}\ns_add_u32 {sT0}, {sT0}, s76")
    s.vmem(f"buffer_load_dwordx4 v3, {SX}, {sT0} offen lds", "X1")
    s.e(f"""
s_mov_b32 s14, 0x180000
s_mov_b32 s15, 0x20000
s_mov_b32 s34, 0x4000
s_mov_b32 s35, 0x20000
s_mov_b32 s38, 0x80000
s_mov_b32 s39, 0x20000
s_mov_b32 s42, 0x80000
s_mov_b32 s43, 0x20000
s_mov_b32 s46, 0x200000
s_mov_b32 s47, 0x20000
s_mov_b32 {sBUD}, 0x80000
s_and_b32 {sTT}, {sW}, 1
s_bfe_u32 {sP}, {sW}, 0x10001
v_and_b32 v6, 31, v2
v_lshrrev_b32 v8, 5, v2
v_bfe_u32 v9, v2, 1, 3
v_xor_b32 v9, v9, v8
s_lshl_b32 {sT0}, {sTT}, 12
s_add_u32 {sT0}, {sT0}, {L_R0}
v_lshlrev_b32 v10, 7, v6
v_add_u32 v10, {sT0}, v10
v_lshl_add_u32 v48, v9, 4, v10
v_xor_b32 v49, 32, v48
v_xor_b32 v50, 64, v48
v_xor_b32 v51, 0x60, v48
v_bfe_u32 v9, v2, 2, 2
v_and_b32 v10, 3, v2
s_waitcnt lgkmcnt(0)
s_cmp_ge_u32 {sW}, 4
s_cbranch_scc1 L_H
""")
    return s
XA = 48

def softmax_max_exp(Ts, tmp):
    out = []
    M = [tmp + 2 * i for i in range(len(Ts))]
    for k in range(4):
        for i, b in enumerate(Ts):
            for sg in range(2):
                m = M[i] + sg; ng = "-" if sg else ""
                if k == 0: out.append(f"v_max3_f32 v{m}, {ng}v{b}, {ng}v{b+1}, {ng}v{b+2}")
                elif k < 3: out.append(f"v_max3_f32 v{m}, v{m}, {ng}v{b+1+2*k}, {ng}v{b+2+2*k}")
                else: out.append(f"v_max_f32 v{m}, v{m}, {ng}v{b+7}")
    out.append("s_nop 1")
    for m in M: out.append(f"v_permlane32_swap_b32 v{m}, v{m+1}")
    for m in M: out.append(f"v_max_f32 v{m}, v{m}, v{m+1}")
    for m in M: out.append(f"v_mul_f32 v{m}, {hex(LOG2E | 0x80000000)}, v{m}")
    for m in M: out.append(f"v_mov_b32 v{m+1}, v{m}")
    out.append("s_nop 1")
    for m in M: out.append(f"v_permlane32_swap_b32 v{m}, v{m+1}")
    for i, T in enumerate(Ts):
        for j in range(4):
            out.append(f"v_pk_fma_f32 {vr(T+8+2*j,2)}, {vr(T+2*j,2)}, {sLOG}, {vr(M[i],2)} op_sel:[0,1,1] op_sel_hi:[1,1,1]")
            out.append(f"v_pk_fma_f32 {vr(T+2*j,2)}, {vr(T+2*j,2)}, {sLOG}, {vr(M[i],2)} op_sel_hi:[1,0,0]")
    for T in Ts:
        for j in range(16): out.append(f"v_exp_f32 v{T+j}, v{T+j}")
    return out

def c_path(s):
    s.stv = "v7"
    if STAMP: s.e("v_mov_b32 v7, 0")
    s.stamp("entry")
    KOFF = [f"s{78+i}" for i in range(16)]
    def common_setup(s):
        s.e(f"""
v_and_b32 v16, 15, v6
v_lshl_add_u32 v17, v8, 4, v16
v_lshlrev_b32 v17, 4, v17
v_mov_b32 v18, 0x80000000
v_cmp_gt_u32 s[90:91], 16, v6
v_cmp_eq_u32 s[92:93], 16, v6
v_mov_b32 v4, 0x400
v_mov_b32 v5, 0x200
v_cndmask_b32 v17, v18, v17, s[90:91]
s_lshr_b32 {sT0}, s2, 3
s_lshl_b32 {sT0}, {sT0}, 1
s_lshl4_add_u32 {sT0}, {sW}, {sT0}
v_cndmask_b32 v4, v17, v4, s[92:93]
v_cndmask_b32 v5, v17, v5, s[92:93]
v_add_u32 v16, {sT0}, v16
v_and_b32 v16, 63, v16
v_mul_u32_u24 v16, {KVREC}, v16
v_lshrrev_b32 v17, 4, v6
v_lshl_add_u32 v0, v17, 10, v16
v_mov_b32 v60, 0
v_mov_b32 v61, 0
v_add_u32 v3, {L_Q}, v1
s_mul_i32 s73, {sW}, 2304
v_lshlrev_b32 v62, 2, v2
v_add_u32 v62, s73, v62
""")
        for t in range(16):
            s.e(f"s_add_u32 {sT1}, {sT0}, {t}\ns_and_b32 {sT1}, {sT1}, 63\ns_mul_i32 {KOFF[t]}, {sT1}, {KVREC}")
    s.e("s_setprio 1")
    common_setup(s)
    s.e(f"s_cmp_ge_u32 {sW}, 2\ns_cbranch_scc1 L_loader")
    base0 = s.fork(); base0.stv = s.stv
    s.e(f"""
v_lshl_add_u32 v20, v8, 3, v9
v_lshlrev_b32 v20, 5, v20
v_lshl_add_u32 v20, v10, 3, v20
v_lshlrev_b32 v21, 4, v8
v_lshlrev_b32 v23, 2, v6
s_lshl1_add_u32 s62, {sTB}, {sTT}
s_mul_i32 s63, s62, {KVREC}
s_cmp_eq_u32 {sROLE}, 1
s_cbranch_scc1 L_jobK
s_cmp_eq_u32 {sROLE}, 2
s_cbranch_scc1 L_jobV
s_cmp_eq_u32 {sROLE}, 3
s_cbranch_scc1 L_jobG
""")
    base = s.fork(); base.stv = s.stv
    s.wait(vm="all")
    for u in range(5): s.e("s_barrier")
    s.e("s_branch L_jobdone")
    ld = base0.fork(); ld.stv = s.stv
    ld.e(f"""
L_loader:
s_lshl_b32 s3, {sTT}, 12
v_lshrrev_b32 v16, 3, v2
v_and_b32 v17, 7, v2
v_lshrrev_b32 v18, 4, v2
v_xor_b32 v18, v18, v17
v_lshrrev_b32 v19, 2, v2
v_and_b32 v19, 4, v19
v_xor_b32 v19, v19, v17
s_lshl_b32 {sT0}, {sTT}, 5
v_add_u32 v16, {sT0}, v16
v_lshlrev_b32 v17, 10, v16
v_lshl_add_u32 v24, v18, 4, v17
v_lshl_add_u32 v28, v19, 4, v17
v_mul_u32_u24 v17, 3072, v16
v_lshl_add_u32 v32, v19, 4, v17
v_add_u32 v32, 0x400, v32
""")
    for jx in range(1, 4):
        ld.e(f"v_add_u32 v{24+jx}, {jx*7168}, v24\nv_add_u32 v{28+jx}, {jx*7168}, v28\nv_add_u32 v{32+jx}, {jx*(24576-1024)}, v32")
    ld.e("v_xor_b32 v25, 64, v25\nv_xor_b32 v27, 64, v27")
    def lchunk(ld, name):
        k, c = name[:-1], int(name[-1])
        if k == "X": ld.e(f"s_lshl_b32 {sT0}, {KC[c]}, 7\ns_add_u32 m0, s3, {L_R0 + c*8192}\ns_add_u32 {sT0}, {sT0}, s76"); vb, srd = 24, SX
        elif k == "KB": ld.e(f"s_mul_i32 {sT0}, {KC[c]}, 196608\ns_add_u32 m0, s3, {L_R0 + c*8192}\ns_add_u32 {sT0}, {sT0}, s77"); vb, srd = 32, SWB
        else: ld.e(f"s_lshl_b32 {sT0}, {KC[c]}, 16\ns_add_u32 m0, s3, {L_R1 + c*8192}\ns_add_u32 {sT0}, {sT0}, s77"); vb, srd = 28, SWQ
        for jx in range(4):
            ld.vmem(f"buffer_load_dwordx4 v{vb+jx}, {srd}, {sT0} offen offset:{jx*1024} lds", name)
    for c in ("X2", "X3", "X4"): lchunk(ld, c)
    ld.wait(vm="X1"); ld.e("s_barrier")
    for c in ("X5", "X6"): lchunk(ld, c)
    ld.wait(vm="X3"); ld.e("s_barrier")
    lchunk(ld, "X7")
    ld.e(f"s_cmp_lt_u32 {sT3}, 2\ns_cbranch_scc1 L_loaderP")
    lp = ld.fork(); lp.stv = s.stv
    for (l_, sched) in ((ld, [(["WQ2"], "X5"), (["WQ3", "WQ4"], "X7"), (["WQ5"], None), (["WQ6", "WQ7"], None)]),
                        (lp, [(["WQ0"], "X5"), (["WQ1", "WQ2"], "X7"), (["WQ3", "WQ4"], "WQ1"), (["WQ5", "WQ6", "WQ7"], None)])):
        if l_ is lp: l_.e("L_loaderP:")
        for n_, (nxt, w_) in enumerate(sched):
            for c in nxt: lchunk(l_, c)
            if n_ == 3: break
            if w_: l_.wait(vm=w_)
            l_.e("s_barrier")
        if l_ is ld: l_.e("s_branch L_loader2")
    lp.e("L_loader2:")
    lp.wait(vm="WQ3"); lp.e("s_barrier")
    lp.e(f"s_lshl_b32 {sT0}, {sHG}, 11\ns_add_u32 m0, {sW1K}, {L_WPHI - 2048}\ns_add_u32 {sT0}, {sT0}, {sW1K}\ns_sub_u32 {sT0}, {sT0}, 2048")
    lp.vmem(f"buffer_load_dwordx4 v1, {SPH}, {sT0} offen lds")
    for c in ("KB0", "KB1"): lchunk(lp, c)
    lp.wait(vm="WQ5"); lp.e("s_barrier")
    for c in ("KB2", "KB3"): lchunk(lp, c)
    lp.wait(vm="WQ7"); lp.e("s_barrier")
    for c in ("KB4", "KB5", "KB6", "KB7"): lchunk(lp, c)
    lp.wait(vm="KB3")
    lp.e("s_barrier\ns_branch L_B9")
    ACC = 24
    def job(kind):
        j = base.fork(); j.stv = s.stv
        j.e(f"L_job{kind}:")
        LAG = 3
        if kind != "G": j.e("s_setprio 3")
        def ring(t): return 8 * (t % 16)
        def mm(t):
            j.wait(lg=f"f{t}")
            x, w = ar(ring(t)), ar(ring(t) + 4)
            c = "0" if t == 0 else vr(ACC, 16)
            j.e(mfma(vr(ACC, 16), x, w, c) if kind == "V" else mfma(vr(ACC, 16), w, x, c))
        if kind == "K":
            j.e(f"""
v_and_b32 v16, 0x13, v6
v_bfe_u32 v17, v6, 2, 1
v_lshl_add_u32 v16, v17, 3, v16
v_bfe_u32 v17, v6, 3, 1
v_lshl_add_u32 v16, v17, 2, v16
v_lshl_add_u32 v16, v8, 5, v16
v_lshlrev_b32 v16, 4, v16
s_mov_b32 s64, {fbits(KSCALE)}
s_mov_b32 s65, {fbits(KSCALE)}
""")
        if kind == "V":
            j.e(f"""
v_and_b32 v16, 15, v6
v_lshl_add_u32 v16, v8, 4, v16
v_lshrrev_b32 v17, 4, v6
v_lshl_add_u32 v16, v17, 5, v16
v_lshlrev_b32 v16, 4, v16
s_mov_b32 s64, 0xffff0000
s_mov_b32 s65, 0xffff0000
""")
        def reads(t):
            c, ks = t >> 2, t & 3
            j.lds(f"ds_read_b128 {ar(ring(t))}, v{XA+ks} offset:{c*8192}", f"f{t}")
            if kind == "G":
                j.lds(f"ds_read_b128 {ar(ring(t)+4)}, v21 offset:{L_GATE + c*128 + ks*32}", f"f{t}")
            else:
                for rd in range(2):
                    j.lds(f"ds_read_b64_tr_b16 {ar(ring(t)+4+2*rd,2)}, v20 offset:{L_OACC + c*2048 + ks*512 + rd*128}", f"f{t}")
        for t in range(32):
            if t % 8 == 0:
                if t == 0: j.wait(vm="all")
                j.e("s_barrier")
            if t % 8 < 4:
                reads((t & ~7) + 2 * (t & 7)); reads((t & ~7) + 2 * (t & 7) + 1)
            if t >= LAG: mm(t - LAG)
        for t in range(32 - LAG, 32): mm(t)
        if kind == "K":
            j.e("s_barrier\ns_nop 10")
            for q in range(4): j.e(f"v_pk_mul_f32 {vr(ACC+2*q,2)}, {vr(ACC+2*q,2)}, s[64:65]")
            for q in range(4): j.e(f"v_cvt_pk_bf16_f32 v{40+q}, v{ACC+2*q}, v{ACC+2*q+1}")
            j.e(f"buffer_store_dwordx4 v[40:43], v16, {SWS}, s63 offen sc1")
            j.stamp("kvstored")
            j.e("s_setprio 1\ns_branch L_jobdone")
        elif kind == "V":
            j.e("s_barrier\ns_nop 10")
            for q in range(4): j.e(f"v_cvt_pk_bf16_f32 v{40+q}, v{ACC+2*q}, v{ACC+2*q+1}")
            j.e("s_mov_b64 exec, s[64:65]")
            for q in range(4): j.e(f"v_cvt_pk_bf16_f32 v{40+q}, v{ACC+8+2*q}, v{ACC+8+2*q+1}")
            j.e("s_mov_b64 exec, -1")
            j.e(f"buffer_store_dwordx4 v[40:43], v16, {SWS}, s63 offen offset:1024 sc1")
            j.stamp("kvstored")
            j.e("s_setprio 1\ns_branch L_jobdone")
        else:
            j.e(f"""
s_barrier
s_nop 10
v_mul_f32 v40, {hex(LOG2E | 0x80000000)}, v{ACC}
v_exp_f32 v40, v40
s_nop 0
v_add_f32 v40, 1.0, v40
v_rcp_f32 v40, v40
""")
        return j
    jg = job("G"); jg.e("s_branch L_jobdone")
    s.L += ld.L + lp.L + [".p2align 12"] + job("K").L + job("V").L + jg.L + [".p2align 12"]
    s.e(f"""
L_jobdone:
s_barrier
s_barrier
s_barrier
s_barrier
s_cmp_eq_u32 {sROLE}, 3
s_cbranch_scc0 L_B9
s_lshl_b32 {sT1}, s62, 7
s_add_u32 {sT1}, {sT1}, {WS_G}
buffer_store_dword v40, v23, {SWS}, {sT1} offen sc1
L_B9:
v_mov_b32 v6, 0xdddddddd
s_mov_b32 s3, 4
""")
    s.vm = ["KB7"]; s.lg = []
    s.stamp("B9")
    S0, S1, O, Q = 8, 24, 40, 56
    def ld(t):
        s.vmem(f"buffer_load_dwordx4 {vr(64+4*t)}, v1, {SWS}, {KOFF[t]} offen sc1", f"K{t}")
        s.vmem(f"buffer_load_dwordx4 {ar(8*t)}, v4, {SWS}, {KOFF[t]} offen offset:1024 sc1", f"Vl{t}")
        s.vmem(f"buffer_load_dwordx4 {ar(8*t+4)}, v5, {SWS}, {KOFF[t]} offen offset:1536 sc1", f"Vh{t}")
    AH0, AHEAD = 2, int(os.environ.get("AHEAD", "4"))
    probe = f"buffer_load_dword v9, v0, {SWS}, 0 offen offset:1020 sc1"
    zero = f"v_mfma_f32_32x32x8_bf16 {vr(O,16)}, v[60:61], v[60:61], 0"
    def smf(a, b): return f"v_smfmac_f32_32x32x32_bf16 {vr(O,16)}, {ar(a)}, {vr(b,8)}, v6"
    s.vmem(probe, "probe")
    for t in range(AH0): ld(t)
    s.lds(f"ds_read_b128 {vr(Q)}, v3", "q")
    s.e(f"s_cmp_lt_u32 {sW}, 2\ns_cbranch_scc1 L_B10")
    s.wait(vm="KB7")
    s.e("L_B10:\ns_barrier")
    s.stamp("B10")
    for t in range(AH0, AHEAD): ld(t)
    s.wait(vm="probe")
    s.e("v_cmp_eq_u32 vcc, -1, v9\ns_cbranch_vccnz L_kvretry\nL_kvok:")
    s.stamp("kvready")
    s.e(zero)
    s.wait(vm="K0", lg="all")
    s.e(mfma(vr(S0, 16), vr(64), vr(Q), 0))
    s.e(f"s_mov_b32 m0, s73\ns_nop 10")
    s.stamp("S0")
    CHK = (2, 4, 8, 13)
    NDBL = int(os.environ.get("NDBL", "3"))
    LDS_ = {t: [] for t in range(16)}
    nx = AHEAD
    for t in range(16):
        for _ in range(2 if (t % 2 == 1 and t // 2 < NDBL) else 1):
            if nx < 16: LDS_[t].append(nx); nx += 1
    def dump(s, k):
        for r in range(9): s.e(f"ds_write_addtid_b32 v{O+r} offset:{(k & 1)*9216 + r*256}")
    def step(s, k):
        first = k == 0
        for t in range(16):
            Sc, Sn = (S0, S1) if t % 2 == 0 else (S1, S0)
            tn = (t + 1) % 16; tp = (t - 1) % 16
            pos_lo = 13 if (t == 0 and not first) else 11
            for i in range(16):
                if i == 2 and not (first and t == 0):
                    s.e(smf(8 * tp + 4, Sn + 8))
                if i == 5:
                    if first and t < 15: s.wait(vm=f"K{tn}")
                    if t == 15: s.e("s_waitcnt lgkmcnt(0)")
                    if not (k == 7 and t == 15): s.e(mfma(vr(Sn, 16), vr(64 + 4 * tn), vr(Q), 0))
                    if first:
                        for tl in LDS_[t]: ld(tl)
                        if 15 in LDS_[t]: s.e(f"ds_inc_u32 v60, v6 offset:{L_CNT + 4}")
                    if t == 14:
                        if k < 7: s.e(f"ds_read_b128 {vr(Q)}, v3 offset:{(k+1)*1024}")
                        if k >= 2: s.e(f"ds_read_b32 v63, v62 offset:{(k & 1)*9216 + 2048}")
                    if t == 15 and k >= 2:
                        s.e(f"v_cmp_neq_f32 vcc, -1.0, v63")
                if i == 8 and t == 0 and not first:
                    if k >= 3: s.e(f"s_cbranch_vccnz L_aw{k-1}\nL_ag{k-1}:")
                    dump(s, k - 1); s.e(zero)
                if i == pos_lo:
                    if first and t in CHK: s.e(f"v_cmp_u_f32 vcc, v{O}, v{O+4}\ns_cbranch_vccnz L_rs{t}\nL_ct{t}:")
                    if first and t == 15: s.wait(vm="all")
                    s.e(smf(8 * t, Sc))
                s.e(f"v_exp_f32 v{Sc+i}, v{Sc+i}")
    for k in range(8):
        step(s, k)
        if k < 7: s.stamp(f"step{k}")
    s.e(f"""
v_lshrrev_b32 v14, 2, v1
s_lshl_b32 s89, {sHG}, 12
{smf(8 * 15 + 4, S1 + 8)}
s_cbranch_vccnz L_aw7
L_ag7:
s_cmp_eq_u32 {sW}, 3
s_cbranch_scc1 L_c3
s_nop 8
""")
    dump(s, 7)
    s.stamp("T")
    s.e(f"""
s_waitcnt lgkmcnt(0)
s_barrier
s_branch L_cend
L_c3:
ds_read_b32 v11, v14 offset:{L_GATE}
v_and_b32 v15, 0x7c, v14
s_add_u32 s89, s89, s76
s_add_u32 s89, s89, {WS_OA + 32768 + 3072}
s_mov_b32 s80, 7
s_mov_b32 {sT0}, {fbits(2.0**-60)}
s_mov_b32 {sT1}, {fbits(2.0**64)}
s_setprio 3
v_mov_b32 v12, 0x207
v_mov_b32 v13, v{O+8}
s_nop 1
v_permlane32_swap_b32 v{O+8}, v13
""")
    s.stamp("T")
    s.e(f"s_barrier\nds_read2st64_b32 v[8:9], v15 offset0:{36+8} offset1:{36+17}\nds_read_b32 v10, v15 offset:{9216 + 26*256}")
    for cw in range(3):
        for q in range(4): s.e(f"ds_read2st64_b32 {vr(16+8*cw+2*q,2)}, v14 offset0:{36+9*cw+2*q} offset1:{36+9*cw+2*q+1}")
    s.e(f"""
s_waitcnt lgkmcnt(12)
v_add_f32 v8, v8, v9
v_add_f32 v10, v10, v{O+8}
v_add_f32 v8, v8, v10
v_cmp_nge_f32 s[82:83], v8, {sT0}
v_cmp_nle_f32 s[90:91], v8, {sT1}
v_rcp_f32 v8, v8
""")
    for cw in range(3):
        s.e(f"s_waitcnt lgkmcnt({8 - 4*cw})")
        for q in range(8): s.e(f"v_add_f32 v{O+q}, v{O+q}, v{16+8*cw+q}")
        if cw == 0: s.e("v_mul_f32 v9, v8, v11\ns_or_b64 s[82:83], s[82:83], s[90:91]")
    for q in range(8): s.e(f"v_mul_f32 v{O+q}, v{O+q}, v9")
    s.e(f"""
v_fma_f32 v10, v{O}, v{O+1}, v{O+2}
v_cvt_pk_bf16_f32 v16, v{O}, v{O+1}
v_fma_f32 v10, v{O+3}, v{O+4}, v10
v_cvt_pk_bf16_f32 v17, v{O+2}, v{O+3}
v_fma_f32 v10, v{O+5}, v{O+6}, v10
v_cvt_pk_bf16_f32 v18, v{O+4}, v{O+5}
v_add_f32 v10, v10, v{O+7}
v_cvt_pk_bf16_f32 v19, v{O+6}, v{O+7}
v_cmp_class_f32 vcc, v10, v12
s_or_b64 vcc, vcc, s[82:83]
{"s_branch" if FORCE_FB else "s_cbranch_vccnz"} L_c3fb
buffer_store_dwordx4 v[16:19], v1, {SWS}, s89 offen sc1
L_cend:
""")
    s.stamp("fin7")
    s.e("s_barrier")
    if STAMP: write_stamps(s)
    if CAL: cal_end(s)
    s.e("s_endpgm")
    s.e("L_c3fb:\nv_mov_b32 v25, v6\nv_mov_b32 v26, 0\nv_mov_b32 v27, 0\nv_mov_b32 v21, 1\ns_call_b64 s[92:93], L_fb\ns_branch L_cend")
    for k in range(2, 8):
        top, done = f"L_aw{k}", lbl("awd")
        s.e(f"{top}:\nds_read_b32 v63, v62 offset:{(k & 1)*9216 + 2048}\ns_waitcnt lgkmcnt(0)\nv_cmp_neq_f32 vcc, -1.0, v63\ns_cbranch_vccz {done}")
        spin_tail(s, top, done, 1)
        s.e(f"s_branch L_ag{k}")
    for t in CHK:
        s.e(f"L_rs{t}:\ns_cmp_eq_u32 s3, 0\ns_cbranch_scc1 L_ct{t}\ns_branch L_rs")
    s.e("L_rs:\ns_sub_u32 s3, s3, 1")
    if STAMP: s.e(f"v_mov_b32 v9, 1\ns_mov_b64 exec, 1\nbuffer_atomic_add v9, v60, {SDBG}, 0 offen offset:12 sc1\ns_mov_b64 exec, -1")
    top, done = "L_kvretry", lbl("kvr")
    s.e(f"{top}:\n{probe}\ns_waitcnt vmcnt(0)\nv_cmp_eq_u32 vcc, -1, v9\ns_cbranch_vccz {done}")
    spin_tail(s, top, done, 0)
    s.vm = []
    for t in range(AHEAD): ld(t)
    s.e("s_branch L_kvok")
    return s

def cal_end(s):
    role, name, wg = CAL.split(":")
    if role != s.stv: return
    s.e(f"""
s_waitcnt vmcnt(0) lgkmcnt(0)
s_cmp_eq_u32 s2, {wg}
s_cbranch_scc0 L_calx
s_and_b32 s69, {sW}, 3
s_cmp_eq_u32 s69, 3
s_cbranch_scc0 L_calx
s_sub_u32 s94, s94, s96
s_lshl_b32 s94, s94, 3
s_memtime s[96:97]
s_waitcnt lgkmcnt(0)
L_calw:
s_sleep 4
s_memtime s[98:99]
s_waitcnt lgkmcnt(0)
s_sub_u32 s98, s98, s96
s_cmp_lt_u32 s98, s94
s_cbranch_scc1 L_calw
L_calx:
""")

def write_stamps(s):
    s.e(f"""
s_waitcnt lgkmcnt(0)
s_mov_b32 m0, s100
s_nop 0
v_writelane_b32 {s.stv}, s98, m0
v_writelane_b32 {s.stv}, s96, 0
v_writelane_b32 {s.stv}, s94, 1
s_memrealtime s[94:95]
s_waitcnt lgkmcnt(0)
v_writelane_b32 {s.stv}, s94, 63
s_lshl3_add_u32 {sT0}, s2, {sW}
s_lshl_b32 {sT0}, {sT0}, 8
s_add_u32 {sT0}, {sT0}, {WS_ST}
v_lshrrev_b32 v0, 2, v1
buffer_store_dword {s.stv}, v0, {SWS}, {sT0} offen
""")

def h_path(s):
    s.stv = "v31"
    s.e(".p2align 12\nL_H:\ns_setprio 2")
    if STAMP: s.e("v_mov_b32 v31, 0")
    s.stamp("entry")
    sHW, sFL, sJ, sOT = "s78", "s79", "s80", "s81"
    vW0, vW1, vPB, vONE, vNEG, vIDX, vZ = 18, 19, 20, 21, 22, 25, 26
    vOD, vOL = 14, 15
    vWPH, vPHW, vPHR, vU, vVXR, vSCW, vKVPS, vFLG, vGF, vKFS, vKFL = 0, 3, 7, 23, 24, 28, 29, 6, 8, 9, 10
    O_PHI, O_VX, O_SC = 0, 20480, 36864
    vSCR, vFC, vG = 30, 2, 11
    vQW, vTO = 52, 104
    s.e(f"""
s_and_b32 {sHW}, {sW}, 3
s_mov_b32 s74, {LOG2E}
s_mov_b32 s75, {LOG2E | 0x80000000}
v_bfe_u32 v11, v2, 4, 1
v_subrev_u32 v12, {32*1024}, v4
v_subrev_u32 v13, {32*3072}, v5
v_lshrrev_b32 v17, 1, v9
v_xor_b32 v17, {sP}, v17
v_lshlrev_b32 v32, 6, v17
v_lshl_add_u32 v16, v8, 3, v9
v_lshl_add_u32 v16, v16, 7, v32
v_lshl_add_u32 v16, v11, 5, v16
v_lshl_add_u32 v16, v10, 3, v16
v_add_u32 v{vW0}, {L_R0}, v16
v_add_u32 v{vW1}, {L_R1}, v16
v_lshl_add_u32 v33, v8, 2, v9
v_lshl_add_u32 v16, v33, 7, v32
v_and_b32 v17, 1, v10
v_lshl_add_u32 v16, v17, 5, v16
v_lshl_add_u32 v16, v11, 4, v16
v_lshrrev_b32 v17, 1, v10
v_lshl_add_u32 v{vPB}, v17, 3, v16
v_mov_b32 v{vONE}, 1
v_mov_b32 v{vNEG}, -1.0
v_mov_b32 v{vIDX}, 0xdddddddd
v_mov_b32 v26, 0
v_mov_b32 v27, 0
s_mul_i32 {sT0}, {sTT}, 9216
v_lshl_add_u32 v{vOD}, v2, 2, {sT0}
v_lshl_add_u32 v{vOL}, v6, 2, {sT0}
v_lshlrev_b32 v16, 5, v33
v_lshl_add_u32 v16, v10, 3, v16
s_lshl_b32 {sT0}, {sP}, 10
v_add_u32 v{vWPH}, {sT0}, v16
s_lshl_b32 {sT1}, {sHW}, 12
s_add_u32 {sT1}, {sT1}, {L_R1}
v_add_u32 v{vU}, {sT1}, v1
s_mul_i32 {sT1}, {sHW}, 4608
s_add_u32 {sT1}, {sT1}, {L_R1}
v_mul_u32_u24 v16, 72, v6
v_lshl_add_u32 v17, v8, 3, v16
v_add_u32 v{vPHW}, {sT1}, v17
v_lshlrev_b32 v16, 1, v16
v_lshl_add_u32 v16, v8, 6, v16
v_add_u32 v{vSCW}, {sT1}, v16
v_lshrrev_b32 v16, 3, v2
v_and_b32 v17, 7, v2
v_mul_u32_u24 v34, 144, v16
v_lshl_add_u32 v34, v17, 4, v34
v_add_u32 v{vSCR}, {sT1}, v34
v_lshlrev_b32 v16, 12, v16
v_lshl_add_u32 v{vKVPS}, v17, 4, v16
s_mul_i32 {sT1}, {sP}, 9216
s_mul_i32 {sT0}, {sTT}, 2304
s_add_u32 {sT0}, {sT0}, {sT1}
s_add_u32 {sT0}, {sT0}, {L_R1}
v_mul_u32_u24 v16, 72, v33
v_lshl_add_u32 v16, v11, 5, v16
v_lshl_add_u32 v16, v10, 3, v16
v_add_u32 v{vPHR}, {sT0}, v16
s_lshl_b32 {sT1}, {sP}, 13
s_lshl_b32 {sT0}, {sTT}, 8
s_add_u32 {sT0}, {sT0}, {sT1}
s_add_u32 {sT0}, {sT0}, {L_R1}
v_add_u32 v{vVXR}, {sT0}, v1
s_lshl2_add_u32 {sT0}, {sP}, {sTT}
s_lshl_b32 {sT0}, {sT0}, 10
s_add_u32 {sT0}, {sT0}, {L_Q}
v_add_u32 v{vQW}, {sT0}, v1
v_lshl_add_u32 v16, v11, 1, v8
v_lshl_add_u32 v16, v10, 3, v16
v_bfe_u32 v17, v2, 2, 1
v_lshl_add_u32 v16, v17, 2, v16
v_lshlrev_b32 v{vKFS}, 1, v16
v_min_u32 v16, 16, v6
v_lshlrev_b32 v16, 7, v16
v_lshl_add_u32 v{vKFL}, v8, 4, v16
v_lshlrev_b32 v16, 12, v6
v_lshl_add_u32 v{vFLG}, v8, 7, v16
v_and_b32 v16, 15, v2
v_lshlrev_b32 v{vGF}, 8, v16
s_lshl_b32 {sT0}, {sTT}, 2
v_mov_b32 v{vFC}, {sT0}
v_mov_b32 v17, 0x3f803f80
s_lshl3_add_u32 {sFL}, {sTB}, {sHG}
s_lshl2_add_u32 {sFL}, {sFL}, {sHW}
s_lshl_b32 {sFL}, {sFL}, 7
s_add_u32 {sFL}, {sFL}, {WS_FL}
s_lshl_b32 s88, {sTT}, 15
s_add_u32 s88, s88, s76
s_add_u32 s88, s88, {WS_OA}
s_lshl_b32 {sOT}, {sHG}, 12
s_add_u32 {sOT}, {sOT}, s88
s_lshl2_add_u32 s84, {sHG}, {sHW}
s_mul_i32 s85, s84, {17*4096}
s_add_u32 s85, s85, {WS_KVP}
s_lshl1_add_u32 s86, {sHG}, {sP}
s_lshl_b32 s87, {sTB}, 12
s_lshl_b32 {sT0}, {sTT}, 7
s_add_u32 s87, s87, {sT0}
s_add_u32 s87, s87, {WS_FL}
ds_write_b64 v{vZ}, v[26:27] offset:{L_CNT}
ds_write_b64 v{vZ}, v[26:27] offset:{L_CNT+8}
ds_write_b32 v{vZ}, v17 offset:{L_ONES}
ds_write_b32 v{vZ}, v17 offset:{L_ONES+4}
ds_write_b32 v{vZ}, v17 offset:{L_ONES+8}
ds_write_b32 v{vZ}, v17 offset:{L_ONES+12}
s_waitcnt vmcnt(0)
s_cmp_eq_u32 {sW}, 4
s_cbranch_scc0 L_nosig
s_cmp_lt_u32 {sT3}, 2
s_cbranch_scc0 L_nosig
s_lshl_b32 {sT0}, {sT3}, 7
s_mov_b64 exec, 1
buffer_atomic_add v{vONE}, v{vZ}, {SDBG}, {sT0} offen sc1
s_mov_b64 exec, -1
L_nosig:
""")
    s.vm = []
    for u in range(4):
        s.e("s_barrier")
        s.stamp(f"B{u+1}")
        for t in range(8 * u, 8 * u + 8):
            s.lds(f"ds_read_b128 {ar(4*t)}, v{XA + (t & 3)} offset:{(t >> 2)*8192}", "x")
    A0, A1 = 64, 80
    LAG = 4
    def ring(t): return 32 + 4 * (t % 5)
    def gemm(steps, pre=None):
        n = len(steps)
        def mm(t):
            s.wait(lg=f"w{t}")
            s.e(steps[t][3].replace("WF", vr(ring(t))))
        for t in range(n):
            if pre: pre(t)
            a, off, rs, _ = steps[t]
            for rd in range(2):
                s.lds(f"ds_read_b64_tr_b16 {vr(ring(t)+2*rd,2)}, v{a} offset:{off + rd*rs}", f"w{t}")
            if t >= LAG: mm(t - LAG)
        for t in range(n - LAG, n): mm(t)
    def p1steps(va, acc, swap):
        return [(va, t * 2048, 512, mfma(vr(acc, 16), *((ar(4 * t), "WF") if swap else ("WF", ar(4 * t))), "0" if t == 0 else vr(acc, 16))) for t in range(32)]
    def pre(t):
        if t % 8 == 0:
            s.e("s_barrier")
            s.stamp(f"B{5 + t // 8}")
        if t == 24:
            skip = lbl("cs")
            s.e(f"v_and_b32 v17, 0x80, v{vFLG}\ns_cmp_eq_u32 {sHW}, 3\ns_cbranch_scc0 {skip}\nbuffer_load_dword v16, v17, {SDBG}, 0 offen sc1\n{skip}:")
        if t == 8:
            s.lds(f"ds_write2st64_b32 v{vOD}, v{vNEG}, v{vNEG} offset0:8 offset1:17")
            s.lds(f"ds_write2st64_b32 v{vOD}, v{vNEG}, v{vNEG} offset0:26 offset1:35")
    gemm(p1steps(vW1, A1, False), pre)
    s.e("s_nop 11")
    for a in range(2):
        for q in range(4): s.e(f"v_cvt_pk_bf16_f32 v{104+4*a+q}, v{A1+8*a+2*q}, v{A1+8*a+2*q+1}")
        s.lds(f"ds_write_b128 v{vQW}, {vr(104+4*a)} offset:{a*2048}")
    top, done = lbl("cl"), lbl("cld")
    s.e(f"s_cmp_eq_u32 {sHW}, 3\ns_cbranch_scc0 {done}\ns_branch {top}c\n{top}:\nbuffer_load_dword v16, v17, {SDBG}, 0 offen sc1")
    s.e(f"{top}c:\ns_waitcnt vmcnt(0)\nv_cmp_gt_u32 vcc, 32, v16\ns_cbranch_vccz {done}")
    spin_tail(s, top, done, 2)
    s.wait(lg="all"); s.stamp("qdone"); s.e("s_barrier")
    def dma_chunk(c, srd, voff, rowbytes, colimm, region, tag, natural):
        s.e(f"s_mul_i32 {sT0}, {KC[c]}, {64*rowbytes}\ns_add_u32 {sT0}, {sT0}, s77")
        if colimm: s.e(f"s_add_u32 {sT0}, {sT0}, {colimm}")
        if natural: s.e(f"s_lshl_b32 {sT1}, {KC[c]}, 13\ns_add_u32 {sT1}, {sT1}, {sW1K}\ns_add_u32 m0, {sT1}, {region}")
        else: s.e(f"s_add_u32 m0, {sW1K}, {region + c*8192}")
        s.e("s_nop 0")
        s.vmem(f"buffer_load_dwordx4 v{voff}, {srd}, {sT0} offen lds", tag)
        s.e(f"s_sub_u32 m0, m0, 4096\ns_nop 0")
        s.vmem(f"buffer_load_dwordx4 v{voff+8}, {srd}, {sT0} offen lds", tag)
    def dma_group(*a):
        for c in range(8): dma_chunk(c, *a)
    def ldswait(off, target, sleep):
        top, done = lbl("sb"), lbl("sbd")
        s.e(f"{top}:\nds_read_b32 v16, v{vZ} offset:{off}\ns_waitcnt lgkmcnt(0)\nv_readfirstlane_b32 {sT0}, v16\ns_cmp_ge_u32 {sT0}, {target}\ns_cbranch_scc1 {done}")
        spin_tail(s, top, done, sleep)
        s.lg = []
    nsb = [0]
    def sb_arrive():
        nsb[0] += 1
        s.e(f"s_mov_b64 exec, 1\nds_add_u32 v{vZ}, v{vONE} offset:{L_CNT}\ns_mov_b64 exec, -1")
    def sb_wait(sleep=1):
        ldswait(L_CNT, 4 * nsb[0], sleep)
        s.stamp(f"S{nsb[0]}")
    def softbar(sleep=1):
        sb_arrive(); sb_wait(sleep)
    def poll(vaddr, soff, imm, sleep=2):
        top, done = lbl("pl"), lbl("pld")
        o = f" offset:{imm}" if imm else ""
        s.e(f"{top}:\nbuffer_load_dword v16, v{vaddr}, {SWS}, {soff} offen{o} sc1\ns_waitcnt vmcnt(0)\nv_cmp_ne_u32 vcc, 1, v16\ns_cbranch_vccz {done}")
        spin_tail(s, top, done, sleep)
        s.vm = []
    def setflag(k):
        s.e(f"s_mov_b64 exec, 1")
        s.vmem(f"buffer_store_dword v{vONE}, v{vZ}, {SWS}, {sFL} offen offset:{4*k} sc1")
        s.e("s_mov_b64 exec, -1")
    def fin(hw, j, flag=False):
        skip = lbl("nf")
        s.e(f"s_cmp_eq_u32 {sHW}, {hw}\ns_cbranch_scc0 {skip}\ns_mov_b32 {sJ}, {j}\ns_call_b64 s[92:93], L_fin")
        s.e(f"{skip}:")
        s.stamp(f"fin{j}")
    def kvp_stores(r0, r1, r2):
        s.e(f"s_lshl_b32 {sT1}, {sTB}, 7\ns_add_u32 {sT1}, {sT1}, s85")
        s.vmem(f"buffer_store_dwordx4 {vr(r0)}, v{vKVPS}, {SWS}, {sT1} offen sc1")
        s.e(f"s_add_u32 {sT1}, {sT1}, 32768")
        s.vmem(f"buffer_store_dwordx4 {vr(r1)}, v{vKVPS}, {SWS}, {sT1} offen sc1")
        s.e(f"s_add_u32 {sT1}, {sT1}, 32768\ns_mov_b64 exec, 0xff")
        s.vmem(f"buffer_store_dwordx4 {vr(r2)}, v{vKVPS}, {SWS}, {sT1} offen sc1")
        s.e("s_mov_b64 exec, -1")
    T0, T1 = 96, 112
    def phi_logits():
        for a in range(2):
            for rd in range(2):
                s.lds(f"ds_read_b64_tr_b16 {vr(40+4*a+2*rd,2)}, v{vWPH} offset:{L_WPHI + a*512 + rd*256}")
        s.e("s_nop 4")
        for q in range(8): s.e(f"v_cvt_pk_bf16_f32 v{56+q}, v{A0+2*q}, v{A0+2*q+1}")
        s.wait(lg="all")
        s.e("s_nop 0")
        s.e(mfma(vr(T0, 16), "v[40:43]", "v[56:59]", 0))
        s.e(mfma(vr(T1, 16), "v[44:47]", "v[60:63]", 0))
        s.e("s_nop 11")
    s.stamp("B9")
    def pre(t):
        if t == 16: s.e("s_barrier"); s.stamp("B10")
    gemm(p1steps(vW0, A0, False), pre)
    sb_arrive()
    phi_logits()
    s.stamp("kgemm")
    sm = softmax_max_exp([T0, T1], 48)
    for k in range(3):
        for i, T in enumerate((T0, T1)):
            for sg in range(2):
                b = T + 8 * sg; d = 56 + 4 * i + 2 * sg
                if k == 0: sm.append(f"v_pk_add_f32 {vr(d,2)}, {vr(b,2)}, {vr(b+2,2)}")
                else: sm.append(f"v_pk_add_f32 {vr(d,2)}, {vr(d,2)}, {vr(b+2+2*k,2)}")
    for i in range(2):
        for sg in range(2):
            d = 56 + 4 * i + 2 * sg
            sm.append(f"v_add_f32 v{48+2*i+sg}, v{d}, v{d+1}")
    sm.append("s_nop 1")
    for m in (48, 50): sm.append(f"v_permlane32_swap_b32 v{m}, v{m+1}")
    for m in (48, 50): sm.append(f"v_add_f32 v{m}, v{m}, v{m+1}")
    for m in (48, 50): sm.append(f"v_rcp_f32 v{m}, v{m}")
    sm.append("s_nop 0")
    for m in (48, 50): sm.append(f"v_mov_b32 v{m+1}, v{m}")
    sm.append("s_nop 1")
    for m in (48, 50): sm.append(f"v_permlane32_swap_b32 v{m}, v{m+1}")
    for i, T in enumerate((T0, T1)):
        for j in range(8):
            sel = "op_sel_hi:[1,0]" if j < 4 else "op_sel:[0,1] op_sel_hi:[1,1]"
            sm.append(f"v_pk_mul_f32 {vr(T+2*j,2)}, {vr(T+2*j,2)}, {vr(48+2*i,2)} {sel}")
        for j in range(8):
            sm.append(f"v_cvt_pk_bf16_f32 v{T+j}, v{T+2*j}, v{T+2*j+1}")
    s.e("\n".join(sm))
    s.e(f"v_lshlrev_b32 v{vTO}, 6, v1")
    for q in range(4): s.e(f"v_mov_b32 v{56+q}, -1")
    s.stamp("ksm")
    s.e(";WARMUP")
    sb_wait()
    ldswait(L_CNT + 4, 256, 3)
    s.stamp("go")
    s.e(f"""
s_lshl1_add_u32 s5, {sTB}, {sTT}
s_lshl_b32 s5, s5, 7
s_add_u32 s5, s5, {WS_G}
s_mul_i32 {sT0}, {sTT}, 9216
s_sub_u32 s5, s5, {sT0}
""")
    s.vmem(f"buffer_load_dword v{vG}, v{vOL}, {SWS}, s5 offen sc1", "g")
    dma_group(SWB, 5, 3072, 2048, L_R1, "VB", False)
    s.e(f"""
s_mul_i32 s3, s84, 17
s_add_u32 s3, s3, {sTB}
s_lshl_b32 s3, s3, 7
s_add_u32 s3, s3, {WS_KVF}
s_cmp_gt_u32 {sTB}, 16
s_cbranch_scc1 L_nokf
s_mov_b64 exec, 0xff
buffer_store_dwordx4 v[56:59], v1, {SWS}, s3 offen sc1
s_mov_b64 exec, -1
L_nokf:
s_cmp_ge_u32 {sHW}, 2
s_cbranch_scc0 L_nooa
buffer_store_dwordx4 v[56:59], v1, {SWS}, {sOT} offen offset:3072 sc1
L_nooa:
""")
    kvp_stores(56, 56, 56)
    s.vm[-1] = "clr"
    dma_chunk(0, SWB, 5, 3072, 0, L_R0, "QB", False)
    dma_chunk(1, SWB, 5, 3072, 0, L_R0, "QB", False)
    s.stamp("vbiss")
    s.wait(vm="g")
    top, done = lbl("gw"), lbl("gwd")
    s.e(f"s_branch {top}c\n{top}:\nbuffer_load_dword v{vG}, v{vOL}, {SWS}, s5 offen sc1\ns_waitcnt vmcnt(0)\n{top}c:\nv_cmp_eq_u32 vcc, -1, v{vG}\ns_cbranch_vccz {done}")
    spin_tail(s, top, done, 2)
    s.e(f"s_cmp_eq_u32 {sHW}, 1\ns_cbranch_scc0 L_nog\nds_write_b32 v{vOD}, v{vG} offset:{L_GATE - 9216}\nL_nog:")
    fin(0, 0)
    s.wait(vm="VB")
    softbar()
    s.e("s_setprio 0")
    def pre(t):
        if t % 4 == 0 and t // 4 < 6: dma_chunk(2 + t // 4, SWB, 5, 3072, 0, L_R0, "QB", False)
        if t == 24:
            s.e(f"""
s_cmp_eq_u32 {sTT}, 0
s_cselect_b32 {sT1}, {KC[0]}, {KC[1]}
s_lshl_b32 {sT0}, {sT1}, 16
s_add_u32 {sT0}, {sT0}, s77
s_cmp_eq_u32 {sP}, 0
s_cbranch_scc0 L_tch1
buffer_load_dword v5, v{vTO}, {SOB}, {sT0} offen
s_branch L_tch2
L_tch1:
buffer_load_dword v5, v{vTO}, {SOA}, {sT0} offen
L_tch2:
""")
            s.vm.append("t")
            s.wait(vm="clr")
            setflag(0)
    gemm(p1steps(vW1, A0, True), pre)
    s.e("s_setprio 2")
    s.wait(vm="QB")
    sb_arrive()
    s.e("s_nop 6")
    for q in range(8): s.e(f"v_cvt_pk_bf16_f32 v{104+q}, v{A0+2*q}, v{A0+2*q+1}")
    s.stamp("vgemm")
    sb_wait()
    for a, T in enumerate((T0, T1)):
        for q in range(4): s.lds(f"ds_write_b64 v{vPHW}, {vr(T+2*q,2)} offset:{O_PHI + a*2304 + q*16}")
    s.lds(f"ds_write_b128 v{vU}, v[104:107] offset:{O_VX}"); s.lds(f"ds_write_b128 v{vU}, v[108:111] offset:{O_VX + 1024}")
    for f in range(4): s.lds(f"ds_read_b128 {vr(80+4*f)}, v{vZ} offset:{L_ONES}")
    s.e("s_mov_b32 s82, 0xffff\ns_mov_b32 s83, 0xffff")
    softbar(0)
    for tt in range(2):
        for th in range(2):
            for rd in range(2):
                s.lds(f"ds_read_b64_tr_b16 {vr(96+8*tt+4*th+2*rd,2)}, v{vPHR} offset:{O_PHI + tt*4608 + th*16*72 + rd*8*72}")
    s.e("s_mov_b64 exec, s[82:83]")
    for tt in range(2):
        for th in range(2):
            s.lds(f"ds_read_b128 {vr(80+8*tt+4*th)}, v{vVXR} offset:{O_VX + tt*4096 + th*1024}")
    s.e("s_mov_b64 exec, -1")
    s.wait(lg="all")
    for f in range(4): s.e(mfma(vr(A0, 16), vr(96 + 4 * f), vr(80 + 4 * f), "0" if f == 0 else vr(A0, 16)))
    s.e("s_nop 11")
    for q in range(4): s.lds(f"ds_write_b128 v{vSCW}, {vr(A0+4*q)} offset:{O_SC + 16*q}")
    for t in range(3): s.lds(f"ds_read_b128 {vr(112+4*t)}, v{vSCR} offset:{O_SC + 1152*t}")
    s.wait(lg="all")
    kvp_stores(112, 116, 120)
    sb_arrive()
    s.e(f"s_lshl_b32 s73, s86, 8\ns_add_u32 s73, s73, {WS_FL}\nbuffer_load_dword v5, v{vFLG}, {SWS}, s73 offen sc1\nbuffer_load_dword v13, v{vZ}, {SWS}, s73 offen sc1")
    s.stamp("kvp")
    fin(1, 1)
    s.vm = []
    def a_loads():
        for t in range(4): s.e(f"buffer_load_dwordx4 {vr(80+4*t)}, v1, {SWS}, s4 offen offset:{1024*t} sc1")
    s.e(f"""
s_lshl_b32 s4, {sTB}, 12
s_add_u32 s4, s4, s85
s_setprio 0
""")
    TA_LD, TA_RED = int(os.environ.get("TALD", "10")), int(os.environ.get("TARED", "18"))
    def pre(t):
        if t == TA_LD:
            okl = lbl("fl")
            s.e(f"s_setprio 2\ns_waitcnt vmcnt(1)\nv_cmp_ne_u32 vcc, 1, v5\ns_cbranch_vccz {okl}")
            poll(vFLG, "s73", 0)
            s.e(f"{okl}:\ns_setprio 0\ns_cmp_gt_u32 {sTB}, 16\ns_cbranch_scc1 L_noal")
            a_loads()
            s.e("L_noal:")
        if t == TA_RED:
            top, done = lbl("sa"), lbl("sad")
            s.e(f"s_setprio 2\ns_cmp_gt_u32 {sTB}, 16\ns_cbranch_scc1 L_noA\ns_branch {top}c\n{top}:")
            a_loads()
            s.e(f"{top}c:\ns_waitcnt vmcnt(0)\nv_max3_u32 v16, v80, v81, v82")
            for q in range(6): s.e(f"v_max3_u32 v16, v16, v{83+2*q}, v{84+2*q}")
            s.e(f"v_max_u32 v16, v16, v95\nv_cmp_eq_u32 vcc, -1, v16\ns_cbranch_vccz {done}")
            spin_tail(s, top, done, 3)
            s.stamp("kvpok")
            s.e(f"""
v_pk_add_f32 v[80:81], v[80:81], v[84:85]
v_pk_add_f32 v[82:83], v[82:83], v[86:87]
v_pk_add_f32 v[88:89], v[88:89], v[92:93]
v_pk_add_f32 v[90:91], v[90:91], v[94:95]
v_pk_add_f32 v[80:81], v[80:81], v[88:89]
v_pk_add_f32 v[82:83], v[82:83], v[90:91]
s_nop 1
v_permlane32_swap_b32 v80, v81
v_permlane32_swap_b32 v82, v83
v_add_f32 v80, v80, v81
v_add_f32 v82, v82, v83
s_nop 1
v_permlane16_swap_b32 v80, v82
v_add_f32 v80, v80, v82
s_nop 1
v_add_f32_dpp v80, v80, v80 row_ror:8 row_mask:0xf bank_mask:0xf
v_cvt_pk_bf16_f32 v17, v80, v80
buffer_store_short v17, v{vKFS}, {SWS}, s3 offen sc1
L_noA:
""")
            s.stamp("stageA")
            sb_wait(); s.e("s_setprio 0")
        if TA_RED <= t < TA_RED + 8: dma_chunk(t - TA_RED, SOB, 4, 1024, 0, L_R1, "WOB", True)
    gemm(p1steps(vW0, A0, False), pre)
    s.e("s_setprio 2\ns_nop 2")
    s.stamp("qgemm")
    phi_logits()
    for f in range(4): s.lds(f"ds_read_b128 {vr(32+4*f)}, v{vZ} offset:{L_ONES}")
    s.e(f"""
s_mul_i32 s73, s86, {2*17*128}
s_add_u32 s73, s73, {WS_KVF}
s_mov_b32 s82, 0x5555ffff
s_mov_b32 s83, 0x5555ffff
""")
    s.wait(lg="all")
    def kvf_loads():
        s.e("s_mov_b64 exec, s[82:83]")
        for a in range(2):
            for sg in range(2):
                s.e(f"buffer_load_dwordx4 {vr(32+8*a+4*sg)}, v{vKFL}, {SWS}, s73 offen offset:{a*17*128 + sg*32} sc1")
        s.e("s_mov_b64 exec, -1")
    kvf_loads()
    s.e("\n".join(softmax_max_exp([T0, T1], 48)))
    s.stamp("qsm")
    top, done = lbl("sbk"), lbl("sbkd")
    s.e(f"s_branch {top}c\n{top}:")
    kvf_loads()
    s.e(f"{top}c:\ns_waitcnt vmcnt(0)\nv_pk_max_u16 v16, v32, v33")
    for q in range(14): s.e(f"v_pk_max_u16 v16, v16, v{34+q}")
    s.e(f"v_pk_max_u16 v16, v16, v16 op_sel:[0,1] op_sel_hi:[1,0]\nv_cmp_eq_u32 vcc, -1, v16\ns_cbranch_vccz {done}")
    spin_tail(s, top, done, 2)
    s.vm = []
    sb_arrive()
    s.stamp("kvfok")
    s.e(f"""
s_lshl_b32 {sT2}, {sP}, 11
s_add_u32 {sT1}, {sOT}, {sT2}
s_add_u32 {sT1}, {sT1}, {WS_OB - WS_OA}
s_mov_b32 {sT2}, {fbits(1e-6)}
v_sub_f32 v60, 1.0, v{vG}
""")
    for a in range(2):
        T = (T0, T1)[a]
        for D in (A0, A1): s.e(f"v_mfma_f32_32x32x8_bf16 {vr(D,16)}, v[26:27], v[26:27], 0")
        s.e("s_nop 9")
        s.e(f"v_smfmac_f32_32x32x32_bf16 {vr(A0,16)}, {vr(32+8*a)}, {vr(T,8)}, v{vIDX}")
        s.e(f"v_smfmac_f32_32x32x32_bf16 {vr(A1,16)}, {vr(36+8*a)}, {vr(T+8,8)}, v{vIDX}")
        s.e(f"""
s_nop 11
v_rcp_f32 v56, v{A0+9}
v_rcp_f32 v57, v{A1+9}
v_fma_f32 v58, v{A0+8}, v56, {sT2}
v_fmac_f32 v58, v{A1+8}, v57
v_rcp_f32 v58, v58
s_nop 0
v_mul_f32 v58, v58, v60
v_pk_mul_f32 v[56:57], v[56:57], v[58:59] op_sel_hi:[1,0]
""")
        for q in range(4): s.e(f"v_pk_mul_f32 {vr(A0+2*q,2)}, {vr(A0+2*q,2)}, v[56:57] op_sel_hi:[1,0]")
        for q in range(4): s.e(f"v_pk_fma_f32 {vr(A0+2*q,2)}, {vr(A1+2*q,2)}, v[56:57], {vr(A0+2*q,2)} op_sel:[0,1,0] op_sel_hi:[1,1,1]")
        for q in range(4): s.e(f"v_cvt_pk_bf16_f32 v{48+4*a+q}, v{A0+2*q}, v{A0+2*q+1}")
        s.vmem(f"buffer_store_dwordx4 {vr(48+4*a)}, v1, {SWS}, {sT1} offen offset:{a*1024} sc1", "ob")
    s.stamp("obst")
    s.e(f"buffer_load_dword v13, v{vZ}, {SWS}, s73 offen sc1")
    fin(2, 2); fin(3, 3)
    s.e("s_waitcnt vmcnt(1)")
    setflag(2)
    s.stamp("ob")
    sb_wait()
    dma_group(SOA, 4, 1024, 0, L_R0, "WOA", True)
    vBo, vBx, vAo, vAx, vAl, vXW, vXR, vOUT = vW0, vW1, vPHW, vPHR, vPB, vU, vVXR, vSCW
    s.e(f"""
s_lshl_b32 {sT0}, {sP}, 15
s_add_u32 {sT1}, {sT0}, {L_R1}
v_add_u32 v{vBo}, {sT1}, v{vPB}
v_xor_b32 v{vBx}, 64, v{vBo}
s_lshl_b32 s4, {sP}, 14
s_add_u32 s4, s4, s88
""")
    fin(0, 4)
    poll(vGF, "s87", 8)
    skip = lbl("ae")
    s.e(f"s_cmp_eq_u32 {sHW}, 1\ns_cbranch_scc1 {skip}")
    setflag(3)
    s.e(f"{skip}:")
    s.vm = []
    s.stamp("obok")
    AO, AX = 96, 112
    s.e(f"s_add_u32 {sT1}, s4, {WS_OB - WS_OA}")
    for t in range(16):
        if t and t % 4 == 0: s.e(f"s_add_u32 {sT1}, {sT1}, 4096")
        s.vmem(f"buffer_load_dwordx4 {ar(4*t)}, v1, {SWS}, {sT1} offen offset:{(t & 3)*1024} sc1", "obf")
    def a_early(heads):
        s.e(f"s_mov_b32 {sT1}, s4")
        for g in range(4):
            if g: s.e(f"s_add_u32 {sT1}, {sT1}, 4096")
            for a in heads: s.vmem(f"buffer_load_dwordx4 {ar(64 + 16*a + 4*g)}, v1, {SWS}, {sT1} offen offset:{a*1024} sc1")
    s.stamp("obiss")
    skip = lbl("f5")
    s.e(f"s_cmp_eq_u32 {sHW}, 1\ns_cbranch_scc0 {skip}\ns_mov_b32 {sJ}, 5\ns_call_b64 s[92:93], L_fin\ns_waitcnt vmcnt(0)")
    sv = list(s.vm); setflag(3); s.vm = sv
    s.e(f"{skip}:")
    s.stamp("fin5")
    NIN = int(os.environ.get("NIN", "0"))
    bx = [(vBx, t * 2048, 1024, mfma(vr(AX, 16), "WF", ar(4 * t), "0" if t == 0 else vr(AX, 16))) for t in range(16)]
    if NIN:
        s.wait(vm="obf")
        s.e("s_setprio 0")
        gemm(bx[:NIN])
        s.e(f"s_setprio 2")
        s.stamp("p3b")
    poll(vGF, "s87", 12, sleep=4)
    s.stamp("aeok")
    a_early((0, 1, 2))
    fin(2, 6)
    s.e(f"""
s_lshl_b32 {sT0}, {sP}, 15
s_add_u32 {sT1}, {sT0}, {L_R0}
v_add_u32 v{vAo}, {sT1}, v{vPB}
v_xor_b32 v{vAx}, 64, v{vAo}
s_sub_u32 s5, s88, {WS_OA}
s_add_u32 s5, s5, s77
s_lshl_b32 {sT3}, {sP}, 6
s_add_u32 s5, s5, {sT3}
s_lshl_b32 {sT0}, {sTT}, 12
s_mul_i32 {sT1}, {sTT}, {L_WPHI - L_Q}
s_add_u32 {sT1}, {sT1}, {L_Q}
s_cmp_eq_u32 {sP}, 0
s_cselect_b32 {sT2}, {sT0}, {sT1}
s_cselect_b32 {sT3}, {sT1}, {sT0}
""")
    s.wait(vm="all")
    s.stamp("aeld")
    s.e("s_barrier")
    s.stamp("BT")
    ea = [(g, a) for g in range(4) for a in range(3)]
    steps = bx[NIN:] + [(vAx, (4*g + a) * 2048, 1024, mfma(vr(AX, 16), "WF", ar(64 + 16*a + 4*g), vr(AX, 16))) for g, a in ea]
    NX = len(steps)
    steps += [(vBo, t * 2048, 1024, mfma(vr(AO, 16), "WF", ar(4 * t), "0" if t == 0 else vr(AO, 16))) for t in range(16)]
    steps += [(vAo, (4*g + a) * 2048, 1024, mfma(vr(AO, 16), "WF", ar(64 + 16*a + 4*g), vr(AO, 16))) for g, a in ea]
    NS = len(steps)
    def late_load(i):
        s.e(f"s_add_u32 s6, s88, {4096*i}\nbuffer_load_dwordx4 {vr(64+4*i)}, v1, {SWS}, s6 offen offset:3072 sc1")
    def late_loads():
        for i in range(8): late_load(i)
    TLATE = NS - int(os.environ.get("TLATE", "16"))
    def pre(t):
        if t == 5: s.e(f"v_add_u32 v{vXW}, {sT2}, v1\nv_add_u32 v{vXR}, {sT3}, v1")
        if t == 6: s.e(f"v_and_b32 v17, 0x1f0, v1\nv_lshlrev_b32 v17, 6, v17")
        if t == 7: s.e(f"v_lshrrev_b32 v16, 9, v1\nv_lshl_add_u32 v{vOUT}, v16, 5, v17")
        if t == 8: s.e(f"v_add_u32 v{vAl}, {L_R0}, v{vPB}")
        if NX + 7 <= t < NX + 11: s.lds(f"ds_write_b128 v{vXW}, {vr(AX + 4*(t-NX-7))} offset:{(t-NX-7)*1024}")
        if t == NX + 15: s.e("s_barrier")
        if TLATE <= t < TLATE + 8: late_load(t - TLATE)
        if t == NX + 16:
            for q in range(4): s.lds(f"ds_read_b128 {vr(AX + 4*q)}, v{vXR} offset:{q*1024}", f"w{t}")
        if t >= NS - 8:
            i = t - (NS - 8)
            for rd in range(2):
                s.lds(f"ds_read_b64_tr_b16 {ar(4*i+2*rd,2)}, v{vAl} offset:{(4*i+3)*2048 + rd*1024}", f"w{t}")
    gemm(steps, pre)
    s.stamp("p3a")
    top, done = lbl("lt"), lbl("ltd")
    def late_check():
        for i in range(8):
            s.e(f"s_waitcnt vmcnt({7-i})")
            if i == 0: s.e("v_max3_u32 v16, v64, v65, v66\nv_max_u32 v16, v16, v67")
            else: s.e(f"v_max3_u32 v16, v16, v{64+4*i}, v{65+4*i}\nv_max3_u32 v16, v16, v{66+4*i}, v{67+4*i}")
        s.e(f"v_cmp_eq_u32 vcc, -1, v16")
    late_check()
    for q in range(8): s.e(f"v_pk_add_f32 {vr(AO+2*q,2)}, {vr(AO+2*q,2)}, {vr(AX+2*q,2)}")
    s.e(f"s_nop 0\ns_cbranch_vccz {done}\n{top}:")
    late_loads()
    late_check()
    s.e(f"s_cbranch_vccz {done}")
    spin_tail(s, top, done, 0)
    s.stamp("late")
    for i in range(8): s.e(mfma(vr(AO, 16), ar(4 * i), vr(64 + 4 * i), vr(AO, 16)))
    s.e("s_nop 11")
    for q in range(8): s.e(f"v_cvt_pk_bf16_f32 v{36+q}, v{AO+2*q}, v{AO+2*q+1}")
    s.e(f"buffer_store_dwordx4 v[36:39], v{vOUT}, {SOUT}, s5 offen\nbuffer_store_dwordx4 v[40:43], v{vOUT}, {SOUT}, s5 offen offset:16")
    if STAMP or CAL:
        s.e("s_waitcnt vmcnt(0)"); s.stamp("end")
    if STAMP: write_stamps(s)
    if CAL: cal_end(s)
    s.e("L_exit:\ns_endpgm")
    top, done = "L_fin", lbl("fpd")
    s.e(f"""
{top}:
ds_read_b32 v17, v{vFC} offset:{L_CNT + 8}
ds_read2st64_b32 v[64:65], v{vOL} offset0:8 offset1:17
ds_read2st64_b32 v[66:67], v{vOL} offset0:26 offset1:35
""")
    for cw in range(4):
        for q in range(4):
            s.e(f"ds_read2st64_b32 {vr(32+8*cw+2*q,2)}, v{vOD} offset0:{9*cw+2*q} offset1:{9*cw+2*q+1}")
    s.e(f"""
s_lshr_b32 {sT1}, {sJ}, 1
s_waitcnt lgkmcnt(15)
v_min3_f32 v16, v64, v65, v66
v_cmp_ne_u32 s[82:83], {sT1}, v17
v_min_f32 v16, v16, v67
v_cmp_eq_f32 vcc, -1.0, v16
s_or_b64 vcc, vcc, s[82:83]
s_cbranch_vccz {done}
""")
    spin_tail(s, top, done, 2)
    s.e(f"""
v_pk_add_f32 v[64:65], v[64:65], v[66:67]
v_add_u32 v17, 1, v17
s_lshl_b32 {sT1}, {sT1}, 10
s_add_u32 s89, {sT1}, {sOT}
v_add_f32 v64, v64, v65
s_mov_b32 {sT0}, {fbits(2.0**-60)}
s_mov_b32 {sT1}, {fbits(2.0**64)}
v_cmp_nge_f32 s[82:83], v64, {sT0}
v_cmp_nle_f32 s[90:91], v64, {sT1}
v_rcp_f32 v64, v64
s_waitcnt lgkmcnt(0)
ds_write2st64_b32 v{vOD}, v{vNEG}, v{vNEG} offset0:8 offset1:17
ds_write2st64_b32 v{vOD}, v{vNEG}, v{vNEG} offset0:26 offset1:35
ds_write_b32 v{vFC}, v17 offset:{L_CNT + 8}
""")
    for q in range(4): s.e(f"v_pk_add_f32 {vr(32+2*q,2)}, {vr(32+2*q,2)}, {vr(40+2*q,2)}")
    for q in range(4): s.e(f"v_pk_add_f32 {vr(48+2*q,2)}, {vr(48+2*q,2)}, {vr(56+2*q,2)}")
    for q in range(4): s.e(f"v_pk_add_f32 {vr(32+2*q,2)}, {vr(32+2*q,2)}, {vr(48+2*q,2)}")
    s.e(f"""
s_or_b64 s[82:83], s[82:83], s[90:91]
s_movk_i32 {sT0}, 0x207
L_fnorm:
v_mul_f32 v64, v64, v{vG}
""")
    for q in range(4): s.e(f"v_pk_mul_f32 {vr(32+2*q,2)}, {vr(32+2*q,2)}, v[64:65] op_sel_hi:[1,0]")
    s.e("v_fma_f32 v16, v32, v33, v34\nv_fma_f32 v16, v35, v36, v16\nv_fma_f32 v16, v37, v38, v16\nv_add_f32 v16, v16, v39")
    for q in range(4): s.e(f"v_cvt_pk_bf16_f32 v{68+q}, v{32+2*q}, v{33+2*q}")
    s.e(f"v_cmp_class_f32 vcc, v16, {sT0}")
    if FORCE_FB: s.e(f"s_cmp_lg_u32 {sT0}, 0\ns_cbranch_scc1 L_fb")
    s.e("s_or_b64 vcc, vcc, s[82:83]\ns_cbranch_vccnz L_fb")
    s.e(f"buffer_store_dwordx4 v[68:71], v1, {SWS}, s89 offen sc1\ns_nop 0\ns_setpc_b64 s[92:93]")
    O, Sx = 32, 48
    if STAMP: s.e(f"L_fb:\ns_mov_b64 exec, 1\nbuffer_atomic_add v{vONE}, v{vZ}, {SDBG}, 0 offen offset:8 sc1\ns_mov_b64 exec, -1")
    else: s.e("L_fb:")
    t1, d1, t2, d2 = lbl("fa"), lbl("fad"), lbl("fc"), lbl("fcd")
    s.e(f"""
s_lshl_b32 {sT0}, {sJ}, 10
s_add_u32 {sT0}, {sT0}, {L_Q}
v_add_u32 v16, {sT0}, v1
ds_read_b128 v[68:71], v16
v_bfe_u32 v65, v1, 4, 5
v_lshrrev_b32 v17, 9, v1
v_bfe_u32 v16, v1, 4, 4
v_lshl_add_u32 v16, v17, 4, v16
v_lshlrev_b32 v16, 4, v16
v_mov_b32 v17, 0x80000000
v_cmp_gt_u32 vcc, 16, v65
v_mov_b32 v66, 0x400
v_mov_b32 v67, 0x200
v_cndmask_b32 v16, v17, v16, vcc
v_cmp_eq_u32 vcc, 16, v65
v_mov_b32 v64, 0xff800000
s_mov_b32 {sT0}, 0
v_cndmask_b32 v66, v16, v66, vcc
v_cndmask_b32 v67, v16, v67, vcc
{t1}:
buffer_load_dwordx4 v[72:75], v1, {SWS}, {sT0} offen sc1
s_waitcnt vmcnt(0) lgkmcnt(0)
v_max3_u32 v16, v72, v73, v74
v_max_u32 v16, v16, v75
v_cmp_eq_u32 vcc, -1, v16
s_cbranch_vccz {d1}
""")
    spin_tail(s, t1, d1, 2)
    s.e(mfma(vr(Sx,16), "v[72:75]", "v[68:71]", 0) + "\ns_nop 11")
    for q in range(8): s.e(f"v_max3_f32 v64, v64, v{Sx+2*q}, v{Sx+2*q+1}")
    s.e(f"""
s_add_u32 {sT0}, {sT0}, {KVREC}
s_cmp_lt_u32 {sT0}, {64*KVREC}
s_cbranch_scc1 {t1}
v_mov_b32 v65, v64
s_nop 1
v_permlane32_swap_b32 v64, v65
v_max_f32 v64, v64, v65
v_mfma_f32_32x32x8_bf16 {vr(O,16)}, v[26:27], v[26:27], 0
s_mov_b32 {sT0}, 0
{t2}:
buffer_load_dwordx4 v[72:75], v1, {SWS}, {sT0} offen sc1
buffer_load_dwordx4 v[76:79], v66, {SWS}, {sT0} offen offset:1024 sc1
buffer_load_dwordx4 v[80:83], v67, {SWS}, {sT0} offen offset:1536 sc1
s_waitcnt vmcnt(0)
v_max3_u32 v16, v76, v77, v78
v_max3_u32 v16, v16, v79, v80
v_max3_u32 v16, v16, v81, v82
v_max_u32 v16, v16, v83
v_cmp_eq_u32 vcc, -1, v16
s_cbranch_vccz {d2}
""")
    spin_tail(s, t2, d2, 2)
    s.e(mfma(vr(Sx,16), "v[72:75]", "v[68:71]", 0) + "\ns_nop 11")
    for q in range(16): s.e(f"v_sub_f32 v{Sx+q}, v{Sx+q}, v64")
    for q in range(16): s.e(f"v_exp_f32 v{Sx+q}, v{Sx+q}")
    s.e(f"""
s_nop 1
v_smfmac_f32_32x32x32_bf16 {vr(O,16)}, v[76:79], {vr(Sx,8)}, v{vIDX}
v_smfmac_f32_32x32x32_bf16 {vr(O,16)}, v[80:83], {vr(Sx+8,8)}, v{vIDX}
s_add_u32 {sT0}, {sT0}, {KVREC}
s_cmp_lt_u32 {sT0}, {64*KVREC}
s_cbranch_scc1 {t2}
s_nop 11
v_rcp_f32 v64, v{O+8}
s_nop 0
v_mov_b32 v65, v64
s_nop 1
v_permlane32_swap_b32 v64, v65
s_mov_b64 s[82:83], 0
s_mov_b32 {sT0}, 0
s_branch L_fnorm
""")
    return s

def build():
    p = prologue()
    c = p.fork(); h = p.fork()
    c_path(c); h_path(h)
    hdr = open(os.path.join(os.path.dirname(__file__), "..", "cdna_kernels", NAME + ".s.ref")).read().split("\n")
    top = [l for l in hdr if l.startswith(";") and "@launch" not in l and "Override" not in l and "grid=ceil" not in l]
    out = top + [f"; @launch grid=(256,1,1) block=(512,1,1) lds={LDS_BYTES}",
        '.amdgcn_target "amdgcn-amd-amdhsa--gfx950"', ".text", f".globl {NAME}_kernel", ".p2align 12", ".p2align 8",
        f".type {NAME}_kernel,@function", f"{NAME}_kernel:", p.text(), c.text(), h.text(),
        "L_codeend:", ".fill 8, 4, 0xbf810000", f".set CODE_BYTES, L_codeend - {NAME}_kernel",
        '.section .rodata,"a"', ".p2align 6", f".amdhsa_kernel {NAME}_kernel",
        "  .amdhsa_next_free_vgpr 256", "  .amdhsa_next_free_sgpr 102", "  .amdhsa_accum_offset 128",
        "  .amdhsa_group_segment_fixed_size 0", "  .amdhsa_kernarg_size 104", "  .amdhsa_user_sgpr_count 2",
        "  .amdhsa_user_sgpr_kernarg_segment_ptr 1", "  .amdhsa_system_sgpr_workgroup_id_x 1",
        "  .amdhsa_float_denorm_mode_32 3",
        ".end_amdhsa_kernel", ""]
    return "\n".join(out)

def addresses(txt):
    import subprocess, re
    sys.path.insert(0, os.path.join(os.path.dirname(os.path.abspath(__file__)), "..", "cdna_kernels"))
    import cdna_launch as cl
    L = txt.split("\n"); o = []
    for n, l in enumerate(L):
        if l.startswith("    ") and not l.strip().startswith((".", ";")): o.append(f"Lq{n}:")
        o.append(l)
    os.makedirs("t", exist_ok=True)
    open("q.s", "w").write(cl.with_harness_metadata("\n".join(o), NAME + "_kernel", 13, launch_lists=True))
    subprocess.run(["clang", "-x", "assembler", "-target", "amdgcn-amd-amdhsa", "-mcpu=gfx950", "q.s", "-o", "q.co"], check=True)
    r = subprocess.run(["llvm-readelf", "-s", "q.co"], capture_output=True, text=True).stdout
    return {int(m.group(2)): int(m.group(1), 16) for m in re.finditer(r": ([0-9a-f]+) .* Lq(\d+)$", r, re.M)}

def add_page_stubs(txt):
    NMAX = 12
    def warm(n):
        o = ["    s_mov_b64 exec, 0"]
        for k in range(NMAX):
            if k < n: o += [f"    s_cmp_eq_u32 s78, {k % 4}", f"    s_cbranch_scc0 L_wk{k}", f"    s_call_b64 s[92:93], L_pg{k}", f"L_wk{k}:"]
        o += ["    s_branch L_wdone", "L_wret:", "    s_setpc_b64 s[92:93]"] + ["    s_nop 0"] * (3 * (NMAX - n)) + ["L_wdone:", "    s_mov_b64 exec, -1"]
        return "\n".join(o)
    n = 0
    for lab in ("L_fin:",):
        txt = txt.replace("\n" + lab + "\n", f"\nL_pg{n}:\n    s_cbranch_execz L_wret\n{lab}\n", 1); n += 1
    while True:
        cur = txt.replace("    ;WARMUP", warm(n))
        A = addresses(cur); L = cur.split("\n")
        idx = sorted(A); todo = None
        for a, b in zip(idx, idx[1:]):
            if A[a] >> 12 != A[b] >> 12 and A[b] - A[a] <= 8 and not L[a].strip().startswith(("s_branch", "s_endpgm", "s_setpc")) and "L_wret" not in L[b] and "L_wk" not in L[a] + L[b]:
                todo = b; break
        if todo is None: return cur, A
        T = txt.split("\n"); w = T.index("    ;WARMUP"); ext = len(warm(n).split("\n")) - 1
        pos = todo if todo < w else todo - ext
        while T[pos - 1].endswith(":"): pos -= 1
        T[pos:pos] = [f"L_pg{n}:", "    s_cbranch_execz L_wret"]
        txt = "\n".join(T); n += 1
        assert n <= NMAX

if __name__ == "__main__":
    txt = build()
    raw = txt
    if int(os.environ.get("WARM", "1")): txt, A = add_page_stubs(txt)
    dst = sys.argv[1] if len(sys.argv) > 1 else os.path.join(os.path.dirname(__file__), "..", "cdna_kernels", NAME + ".s")
    open(dst, "w").write(txt)
    if STAMP:
        import json; json.dump(STAMPS, open(dst + ".json", "w"))
    sys.path.insert(0, os.path.dirname(__file__))
    import hazcheck
    print("hazards:", hazcheck.check(raw), " lines:", txt.count("\n"))
```

```python
import sys, os, math
NAME = "gated_mix__grouped_kv_mqa__linear_kernel_hedgehog__prompt"
STAMP = int(os.environ.get("STAMP", "0"))
CAL = os.environ.get("CAL", "")
FORCE_FB = int(os.environ.get("FORCE_FB", "0"))

KVREC = 2176
WS_KV = 0
WS_G = 0x24000
WS_FL = 0x40000
WS_FLL = 0x60000
WS_KVF = 0x340000
WS_ST = 0x80000
WS_KVP = 0x100000
WS_OA = 0x400000
WS_OB = 0x600000
WS_OL = 0x800000
WS_SIZE = 0xa00000
L_OACC = 0
L_Q = 18432
L_GROW = 26688
L_WPHI = 26944
L_GATE = 28992
L_VX = L_GATE
L_CNT = 26624
L_ONES = 26640
L_R0 = 32768
L_R1 = 98304
LDS_BYTES = 163840
SX, SWB, SWQ, SJ, SWS, SG, SPH, SOA, SOB, SOUT, SDBG = (f"s[{i}:{i+3}]" for i in range(8, 52, 4))
sW, sTB, sHG, sR, sROLE, sTT, sP, sW1K = "s52", "s53", "s54", "s55", "s56", "s57", "s58", "s59"
KC = [f"s{60+i}" for i in range(8)]
sBUD = "s68"
sT0, sT1, sT2, sT3 = "s69", "s70", "s71", "s72"
sLOG = "s[74:75]"
LOG2E = 0x3fb8aa3b
KSCALE = 0.25 * math.log2(math.e)
import struct
def fbits(x): return struct.unpack("<I", struct.pack("<f", x))[0]

STAMPS = {}
class S:
    def __init__(self):
        self.L = []; self.vm = []; self.lg = []; self.nst = 0
    def e(self, s):
        for l in s.strip("\n").split("\n"): self.L.append("    " + l.strip() if not l.strip().endswith(":") else l.strip())
    def vmem(self, s, tag=None): self.e(s); self.vm.append(tag)
    def lds(self, s, tag=None):
        self.e(s)
        if s.startswith("ds_read"): self.lg.append(tag)
    def _cnt(self, q, tag, mx):
        idx = [i for i, t in enumerate(q) if t == tag]
        if not idx: return None
        n = len(q) - 1 - idx[-1]
        del q[: idx[-1] + 1]
        return min(n, mx)
    def wait(self, vm=None, lg=None):
        parts = []
        if vm == "all": parts.append("vmcnt(0)"); self.vm = []
        elif vm is not None:
            n = self._cnt(self.vm, vm, 63)
            if n is not None: parts.append(f"vmcnt({n})")
        if lg == "all": parts.append("lgkmcnt(0)"); self.lg = []
        elif lg is not None:
            n = self._cnt(self.lg, lg, 15)
            if n is not None: parts.append(f"lgkmcnt({n})")
        if parts: self.e("s_waitcnt " + " ".join(parts))
    def fork(self):
        o = S(); o.vm = list(self.vm); o.lg = list(self.lg); o.nst = self.nst; return o
    def stamp(self, name):
        if CAL and CAL.split(":")[:2] == [self.stv, name]:
            self.e("s_memtime s[94:95]")
        if STAMP:
            names = STAMPS.setdefault(self.stv, [])
            if name not in names: names.append(name)
            k = 2 + names.index(name)
            import re as _re
            if not _re.fullmatch(os.environ.get("STSEL", ".*"), name): return
            if os.environ.get("STWAIT"):
                self.e(f"s_memtime s[98:99]\ns_waitcnt lgkmcnt(0)\nv_writelane_b32 {self.stv}, s98, {k}")
                self.lg = []
            else:
                self.e(f"s_mov_b32 s101, m0\ns_mov_b32 m0, s100\ns_nop 0\nv_writelane_b32 {self.stv}, s98, m0\ns_mov_b32 m0, s101\ns_memtime s[98:99]\ns_mov_b32 s100, {k}")
    def text(self): return "\n".join(self.L)

_lbl = [0]
def lbl(p):
    _lbl[0] += 1
    return f"L_{p}{_lbl[0]}"

def vr(a, n=4): return f"v[{a}:{a+n-1}]"
def ar(a, n=4): return f"a[{a}:{a+n-1}]"
def mfma(d, a, b, c): return f"v_mfma_f32_32x32x16_bf16 {d}, {a}, {b}, {c}"

def spin_tail(s, top, done, sleep):
    s.e(f"s_sub_u32 {sBUD}, {sBUD}, 1\ns_cbranch_scc1 {done}_x")
    if sleep: s.e(f"s_sleep {sleep}")
    s.e(f"s_branch {top}\n{done}_x:\ns_mov_b32 {sBUD}, 0\n{done}:")

PF = int(os.environ.get("PF", "1"))
def prologue():
    s = S()
    if PF:
        s.e("""
s_getpc_b64 s[90:91]
s_lshl_b32 s3, s2, 7
s_and_b32 s3, s3, 0x7c00
v_and_b32 v1, 0x1c0, v0
v_lshl_add_u32 v1, v1, 1, s3
v_and_b32 v2, 1, v0
v_lshl_add_u32 v1, v2, 15, v1
v_min_u32 v1, CODE_BYTES, v1
global_load_dword v127, v1, s[90:91]
""")
    s.e(f"""
s_load_dwordx2 s[8:9], s[0:1], 0
s_load_dwordx2 s[16:17], s[0:1], 8
s_load_dwordx4 s[4:7], s[0:1], 16
s_load_dwordx2 s[24:25], s[0:1], 96
s_load_dwordx2 s[28:29], s[0:1], 72
s_load_dwordx2 s[32:33], s[0:1], 56
s_cmp_ge_u32 s2, 0x100
s_cbranch_scc1 L_exit
""")
    if STAMP: s.e("s_memrealtime s[94:95]\ns_memtime s[96:97]\ns_mov_b32 s100, 62\ns_mov_b32 s98, 0")
    if CAL: s.e("s_memtime s[96:97]")
    s.e(f"""
v_lshrrev_b32 v1, 6, v0
s_mov_b32 s10, 0x200000
s_mov_b32 s11, 0x20000
v_readfirstlane_b32 {sW}, v1
v_lshrrev_b32 v6, 3, v0
v_and_b32 v2, 7, v0
v_bfe_u32 v3, v0, 4, 3
v_xor_b32 v3, v3, v2
v_lshlrev_b32 v4, 10, v6
v_lshl_add_u32 v3, v3, 4, v4
s_and_b32 {sT0}, s2, 7
s_bfe_u32 {sHG}, s2, 0x30003
s_lshr_b32 {sT1}, s2, 6
s_lshl2_add_u32 {sTB}, {sT0}, {sT1}
s_lshl_b32 {sT1}, {sT1}, 1
s_add_u32 {sR}, {sHG}, {sT1}
s_add_u32 {sR}, {sR}, {sT0}
s_and_b32 {sR}, {sR}, 7
s_sub_u32 {sT1}, {sHG}, {sT1}
s_and_b32 {sT1}, {sT1}, 7
s_add_u32 {sT1}, {sT1}, 1
s_cmp_lt_u32 {sT1}, 4
s_cselect_b32 {sROLE}, {sT1}, 0
s_lshl_b32 {sW1K}, {sW}, 10
s_lshl_b32 s76, {sTB}, 16
s_lshl_b32 s77, {sHG}, 7
""")
    for c in range(8):
        if c == 0: s.e(f"s_mov_b32 {KC[0]}, {sR}")
        else: s.e(f"s_add_u32 {KC[c]}, {sR}, {c}\ns_and_b32 {KC[c]}, {KC[c]}, 7")
    s.e(f"""
v_lshrrev_b32 v5, 2, v0
v_and_b32 v5, 4, v5
v_xor_b32 v5, v5, v2
v_lshl_add_u32 v4, v5, 4, v4
v_mul_u32_u24 v6, 3072, v6
v_lshl_add_u32 v5, v5, 4, v6
v_and_b32 v2, 63, v0
v_lshlrev_b32 v1, 4, v2
s_mov_b32 s18, 0x80000
s_mov_b32 s19, 0x20000
s_mov_b32 s22, 0x4000
s_mov_b32 s23, 0x20000
s_mov_b32 s26, {WS_SIZE}
s_mov_b32 s27, 0x20000
s_mov_b32 s30, 0x400
s_mov_b32 s31, 0x20000
s_mov_b32 s34, 0x4000
s_mov_b32 s35, 0x20000
s_lshl_b32 {sT0}, {KC[0]}, 7
s_add_u32 m0, {sW1K}, {L_R0}
s_add_u32 {sT0}, {sT0}, s76
s_waitcnt lgkmcnt(0)
buffer_load_dwordx4 v3, {SX}, {sT0} offen lds
s_load_dwordx2 s[12:13], s[0:1], 48
s_load_dwordx2 s[48:49], s[0:1], 88
s_load_dwordx2 s[36:37], s[0:1], 32
s_load_dwordx2 s[40:41], s[0:1], 64
s_load_dwordx2 s[44:45], s[0:1], 80
s_and_b32 {sT0}, {sW}, 6
s_cmp_eq_u32 {sT0}, 2
s_cbranch_scc0 L_nophi
s_lshl_b32 {sT0}, {sHG}, 11
s_add_u32 m0, {sW1K}, {L_WPHI - 2048}
s_add_u32 {sT0}, {sT0}, {sW1K}
s_sub_u32 {sT0}, {sT0}, 2048
buffer_load_dwordx4 v1, {SPH}, {sT0} offen lds
L_nophi:
s_cmp_eq_u32 {sROLE}, 2
s_cselect_b64 s[20:21], s[6:7], s[4:5]
s_sub_u32 {sT3}, {sROLE}, 1
s_cmp_lt_u32 {sT3}, 2
s_cbranch_scc0 L_noprod
s_add_u32 {sT0}, {sW}, {sR}
s_and_b32 {sT0}, {sT0}, 7
s_lshl_b32 m0, {sW}, 11
s_lshl_b32 {sT0}, {sT0}, 11
buffer_load_dwordx4 v1, {SJ}, {sT0} offen lds
buffer_load_dwordx4 v1, {SJ}, {sT0} offen offset:1024 lds
s_branch L_burst
L_noprod:
s_cmp_eq_u32 {sROLE}, 3
s_cbranch_scc0 L_nogate
s_cmp_eq_u32 {sW}, 0
s_cbranch_scc0 L_nogate
s_lshl_b32 {sT0}, {sR}, 7
v_add_u32 v6, {sT0}, v1
s_movk_i32 m0, {L_GATE}
v_and_b32 v6, 0x3ff, v6
buffer_load_dwordx4 v6, {SG}, 0 offen lds
L_nogate:
s_barrier
""")
    for c in range(2):
        s.e(f"s_lshl_b32 {sT0}, {KC[c]}, 16\ns_add_u32 m0, {sW1K}, {L_R1 + c*8192}\ns_add_u32 {sT0}, {sT0}, s77")
        s.e(f"buffer_load_dwordx4 v4, {SWQ}, {sT0} offen lds")
    if int(os.environ.get("TOUCH", "0")): s.e(f"""
s_cmp_eq_u32 {sW}, 1
s_cbranch_scc0 L_burst
s_lshr_b32 {sT0}, {sHG}, 1
s_sub_u32 {sT0}, {sTB}, {sT0}
s_and_b32 {sT0}, {sT0}, 3
s_mul_i32 {sT0}, {sT0}, {43 - 128}
s_lshl_b32 {sT1}, {sR}, 6
s_add_u32 {sT0}, {sT0}, {sT1}
s_sub_u32 {sT0}, {sT0}, 43
v_min_u32 v6, 42, v2
v_add_u32 v6, {sT0}, v6
v_and_b32 v6, 0x1ff, v6
v_lshlrev_b32 v6, 10, v6
buffer_load_dword v126, v6, {SWQ}, s77 offen
""")
    s.e(f"L_burst:\ns_lshl_b32 {sT0}, {KC[1]}, 7\ns_add_u32 m0, {sW1K}, {L_R0 + 8192}\ns_add_u32 {sT0}, {sT0}, s76")
    s.vmem(f"buffer_load_dwordx4 v3, {SX}, {sT0} offen lds", "X1")
    s.e(f"""
s_mov_b32 s14, 0x180000
s_mov_b32 s15, 0x20000
s_mov_b32 s50, 0x100
s_mov_b32 s51, 0x20000
s_mov_b32 s38, 0x80000
s_mov_b32 s39, 0x20000
s_mov_b32 s42, 0x80000
s_mov_b32 s43, 0x20000
s_mov_b32 s46, 0x200000
s_mov_b32 s47, 0x20000
s_mov_b32 {sBUD}, 0x80000
s_and_b32 {sTT}, {sW}, 1
s_bfe_u32 {sP}, {sW}, 0x10001
v_and_b32 v6, 31, v2
v_lshrrev_b32 v8, 5, v2
v_bfe_u32 v9, v2, 1, 3
v_xor_b32 v9, v9, v8
s_lshl_b32 {sT0}, {sTT}, 12
s_add_u32 {sT0}, {sT0}, {L_R0}
v_lshlrev_b32 v10, 7, v6
v_add_u32 v10, {sT0}, v10
v_lshl_add_u32 v48, v9, 4, v10
v_xor_b32 v49, 32, v48
v_xor_b32 v50, 64, v48
v_xor_b32 v51, 0x60, v48
v_bfe_u32 v9, v2, 2, 2
v_and_b32 v10, 3, v2
s_waitcnt lgkmcnt(0)
s_cmp_ge_u32 {sW}, 4
s_cbranch_scc1 L_H
""")
    return s
XA = 48

def softmax_max_exp(Ts, tmp):
    out = []
    M = [tmp + 2 * i for i in range(len(Ts))]
    for k in range(4):
        for i, b in enumerate(Ts):
            for sg in range(2):
                m = M[i] + sg; ng = "-" if sg else ""
                if k == 0: out.append(f"v_max3_f32 v{m}, {ng}v{b}, {ng}v{b+1}, {ng}v{b+2}")
                elif k < 3: out.append(f"v_max3_f32 v{m}, v{m}, {ng}v{b+1+2*k}, {ng}v{b+2+2*k}")
                else: out.append(f"v_max_f32 v{m}, v{m}, {ng}v{b+7}")
    out.append("s_nop 1")
    for m in M: out.append(f"v_permlane32_swap_b32 v{m}, v{m+1}")
    for m in M: out.append(f"v_max_f32 v{m}, v{m}, v{m+1}")
    for m in M: out.append(f"v_mul_f32 v{m}, -1.0, v{m}")
    for m in M: out.append(f"v_mov_b32 v{m+1}, v{m}")
    out.append("s_nop 1")
    for m in M: out.append(f"v_permlane32_swap_b32 v{m}, v{m+1}")
    for i, T in enumerate(Ts):
        for j in range(4):
            out.append(f"v_pk_fma_f32 {vr(T+8+2*j,2)}, {vr(T+2*j,2)}, {sLOG}, {vr(M[i],2)} op_sel:[0,1,1] op_sel_hi:[1,1,1]")
            out.append(f"v_pk_fma_f32 {vr(T+2*j,2)}, {vr(T+2*j,2)}, {sLOG}, {vr(M[i],2)} op_sel_hi:[1,0,0]")
    for T in Ts:
        for j in range(16): out.append(f"v_exp_f32 v{T+j}, v{T+j}")
    return out

def softmax_exp(Ts):
    out = []; R = [T + j for T in Ts for j in range(8)]
    out.append(f"v_max3_f32 v16, |v{R[0]}|, |v{R[1]}|, |v{R[2]}|")
    for q in range(6): out.append(f"v_max3_f32 v16, v16, |v{R[3+2*q]}|, |v{R[4+2*q]}|")
    out.append(f"v_max_f32 v16, v16, |v{R[15]}|")
    a, b = lbl("sx"), lbl("sxd")
    out.append(f"v_cmp_lt_f32 vcc, {hex(fbits(-1.0 if FORCE_FB else 30.0))}, v16")
    out += [f"s_cbranch_vccz {a}", "s_call_b64 s[92:93], L_smx", f"s_branch {b}", f"{a}:"]
    for T in Ts:
        for j in range(8): out += [f"v_exp_f32 v{T+8+j}, -v{T+j}", f"v_exp_f32 v{T+j}, v{T+j}"]
    out.append(f"{b}:")
    return out

def c_path(s):
    s.stv = "v7"
    if STAMP: s.e("v_mov_b32 v7, 0")
    s.stamp("entry")
    KOFF = [f"s{78+i}" for i in range(16)]
    def common_setup(s):
        s.e(f"""
v_and_b32 v16, 15, v6
v_lshl_add_u32 v17, v8, 4, v16
v_lshlrev_b32 v17, 4, v17
v_mov_b32 v18, 0x80000000
v_cmp_gt_u32 s[90:91], 16, v6
v_cmp_eq_u32 s[92:93], 16, v6
v_mov_b32 v4, 0x400
v_mov_b32 v5, 0x200
v_cndmask_b32 v17, v18, v17, s[90:91]
s_lshr_b32 {sT0}, s2, 3
s_lshl_b32 {sT0}, {sT0}, 1
s_lshl4_add_u32 {sT0}, {sW}, {sT0}
v_cndmask_b32 v4, v17, v4, s[92:93]
v_cndmask_b32 v5, v17, v5, s[92:93]
v_add_u32 v16, {sT0}, v16
v_and_b32 v16, 63, v16
v_mul_u32_u24 v16, {KVREC}, v16
v_lshrrev_b32 v17, 4, v6
v_lshl_add_u32 v0, v17, 10, v16
v_mov_b32 v60, 0
v_mov_b32 v61, 0
v_add_u32 v3, {L_Q}, v1
s_mul_i32 s73, {sW}, 2304
v_lshlrev_b32 v62, 2, v2
v_add_u32 v62, s73, v62
""")
        for t in range(16):
            s.e(f"s_add_u32 {sT1}, {sT0}, {t}\ns_and_b32 {sT1}, {sT1}, 63\ns_mul_i32 {KOFF[t]}, {sT1}, {KVREC}")
    s.e("s_setprio 1")
    common_setup(s)
    s.e(f"s_cmp_ge_u32 {sW}, 2\ns_cbranch_scc1 L_loader")
    base0 = s.fork(); base0.stv = s.stv
    s.e(f"""
v_lshrrev_b32 v17, 4, v2
v_lshl_add_u32 v20, v17, 3, v9
v_lshlrev_b32 v20, 5, v20
v_lshl_add_u32 v20, v10, 3, v20
v_lshlrev_b32 v21, 4, v17
v_bfe_u32 v18, v2, 1, 3
v_xor_b32 v18, v18, v17
v_and_b32 v19, 15, v2
v_lshlrev_b32 v19, 7, v19
v_lshl_add_u32 v18, v18, 4, v19
s_lshl_b32 {sT0}, {sTT}, 12
s_add_u32 {sT0}, {sT0}, {L_R0}
v_add_u32 v18, {sT0}, v18
v_xor_b32 v19, 64, v18
v_lshlrev_b32 v23, 2, v6
s_lshl_b32 {sT1}, {sTT}, 7
v_add_u32 v23, {sT1}, v23
s_lshl1_add_u32 s62, {sTB}, {sTT}
s_mul_i32 s63, s62, {KVREC}
s_cmp_eq_u32 {sROLE}, 1
s_cbranch_scc1 L_jobK
s_cmp_eq_u32 {sROLE}, 2
s_cbranch_scc1 L_jobV
s_cmp_eq_u32 {sROLE}, 3
s_cbranch_scc1 L_jobG
""")
    base = s.fork(); base.stv = s.stv
    s.wait(vm="all")
    for u in range(5): s.e("s_barrier")
    s.e("s_branch L_jobdone")
    ld = base0.fork(); ld.stv = s.stv
    ld.e(f"""
L_loader:
s_lshl_b32 s3, {sTT}, 12
v_lshrrev_b32 v16, 3, v2
v_and_b32 v17, 7, v2
v_lshrrev_b32 v18, 4, v2
v_xor_b32 v18, v18, v17
v_lshrrev_b32 v19, 2, v2
v_and_b32 v19, 4, v19
v_xor_b32 v19, v19, v17
s_lshl_b32 {sT0}, {sTT}, 5
v_add_u32 v16, {sT0}, v16
v_lshlrev_b32 v17, 10, v16
v_lshl_add_u32 v24, v18, 4, v17
v_lshl_add_u32 v28, v19, 4, v17
v_mul_u32_u24 v17, 3072, v16
v_lshl_add_u32 v32, v19, 4, v17
v_add_u32 v32, 0x400, v32
""")
    for jx in range(1, 4):
        ld.e(f"v_add_u32 v{24+jx}, {jx*7168}, v24\nv_add_u32 v{28+jx}, {jx*7168}, v28\nv_add_u32 v{32+jx}, {jx*(24576-1024)}, v32")
    ld.e("v_xor_b32 v25, 64, v25\nv_xor_b32 v27, 64, v27")
    def lchunk(ld, name):
        k, c = name[:-1], int(name[-1])
        if k == "X": ld.e(f"s_lshl_b32 {sT0}, {KC[c]}, 7\ns_add_u32 m0, s3, {L_R0 + c*8192}\ns_add_u32 {sT0}, {sT0}, s76"); vb, srd = 24, SX
        elif k == "KB": ld.e(f"s_mul_i32 {sT0}, {KC[c]}, 196608\ns_add_u32 m0, s3, {L_R0 + c*8192}\ns_add_u32 {sT0}, {sT0}, s77"); vb, srd = 32, SWB
        else: ld.e(f"s_lshl_b32 {sT0}, {KC[c]}, 16\ns_add_u32 m0, s3, {L_R1 + c*8192}\ns_add_u32 {sT0}, {sT0}, s77"); vb, srd = 28, SWQ
        for jx in range(4):
            ld.vmem(f"buffer_load_dwordx4 v{vb+jx}, {srd}, {sT0} offen offset:{jx*1024} lds", name)
    for c in ("X2", "X3", "X4"): lchunk(ld, c)
    ld.stamp("preB1")
    ld.wait(vm="X1"); ld.e("s_barrier")
    for c in ("X5", "X6"): lchunk(ld, c)
    ld.wait(vm="X3"); ld.stamp("preB2"); ld.e("s_barrier")
    lchunk(ld, "X7")
    ld.e(f"s_cmp_lt_u32 {sT3}, 2\ns_cbranch_scc1 L_loaderP")
    lp = ld.fork(); lp.stv = s.stv
    for (l_, sched) in ((ld, [(["WQ2"], "X5"), (["WQ3", "WQ4"], "X7"), (["WQ5"], None), (["WQ6", "WQ7"], None)]),
                        (lp, [(["WQ0"], "X5"), (["WQ1", "WQ2"], "X7"), (["WQ3", "WQ4"], "WQ1"), (["WQ5", "WQ6", "WQ7"], None)])):
        if l_ is lp: l_.e("L_loaderP:")
        for n_, (nxt, w_) in enumerate(sched):
            for c in nxt: lchunk(l_, c)
            if n_ == 3: break
            if w_: l_.wait(vm=w_)
            l_.stamp(f"preB{3+n_}")
            l_.e("s_barrier")
        if l_ is ld: l_.e("s_branch L_loader2")
    lp.e("L_loader2:")
    lp.wait(vm="WQ3"); lp.stamp("preB6"); lp.e("s_barrier")
    for c in ("KB0", "KB1"): lchunk(lp, c)
    lp.stamp("issB7"); lp.wait(vm="WQ5"); lp.stamp("preB7"); lp.e("s_barrier")
    for c in ("KB2", "KB3"): lchunk(lp, c)
    lp.wait(vm="WQ7"); lp.stamp("preB8"); lp.e("s_barrier")
    for c in ("KB4", "KB5", "KB6", "KB7"): lchunk(lp, c)
    lp.wait(vm="KB3"); lp.stamp("preB9")
    lp.e("s_branch L_B9")
    ACC = 24
    def job(kind):
        j = base.fork(); j.stv = s.stv
        j.e(f"L_job{kind}:")
        if kind != "G": j.e("s_setprio 3")
        if kind == "K":
            j.e(f"""
v_and_b32 v16, 3, v2
v_bfe_u32 v17, v2, 2, 1
v_lshl_add_u32 v16, v17, 3, v16
v_bfe_u32 v17, v2, 3, 1
v_lshl_add_u32 v16, v17, 2, v16
v_lshl_add_u32 v16, v8, 4, v16
v_bfe_u32 v17, v2, 4, 1
v_lshl_add_u32 v16, v17, 5, v16
v_lshlrev_b32 v16, 4, v16
""")
        def xr(t, hf): return ar(8 * (t % 8) + 4 * hf)
        def wr(t): return 64 + 4 * t
        def wreads(t):
            if kind == "G": j.lds(f"ds_read_b128 {ar(wr(t))}, v21 offset:{L_GATE + t*64}", f"f{t}")
            else:
                for rd in range(2): j.lds(f"ds_read_b64_tr_b16 {ar(wr(t)+2*rd,2)}, v20 offset:{L_OACC + t*1024 + rd*128}", f"f{t}")
        def xreads(t):
            for hf in range(2): j.lds(f"ds_read_b128 {xr(t, hf)}, v{18 + (t & 1)} offset:{(t >> 1)*8192 + hf*2048}", f"f{t}")
        def mm(t):
            j.wait(lg=f"f{t}")
            for hf in range(2):
                d = vr(ACC + 4 * hf); a, b = (xr(t, hf), ar(wr(t))) if kind == "V" else (ar(wr(t)), xr(t, hf))
                j.e(f"v_mfma_f32_16x16x32_bf16 {d}, {a}, {b}, {'0' if t == 0 else d}")
        for u in range(4):
            j.stamp(f"preB{u+1}")
            if u == 0: j.wait(vm="all")
            j.e("s_barrier")
            for t in range(4 * u, 4 * u + 4):
                if u == 0: wreads(t)
                xreads(t)
            for t in range(4 * u, 4 * u + 4):
                if u < 3: wreads(t + 4)
                mm(t)
        j.e("s_nop 7")
        if kind == "G":
            j.e(f"""
s_barrier
s_mov_b32 s64, 0xffff0000
s_mov_b32 s65, 0xffff0000
v_cndmask_b32 v40, v{ACC}, v{ACC+4}, s[64:65]
v_mul_f32 v40, {hex(LOG2E | 0x80000000)}, v40
v_exp_f32 v40, v40
s_nop 0
v_add_f32 v40, 1.0, v40
v_rcp_f32 v40, v40
""")
            return j
        if kind == "K":
            for q in range(8): j.e(f"v_mul_f32 v{ACC+q}, {hex(fbits(KSCALE))}, v{ACC+q}")
        for q in range(4): j.e(f"v_cvt_pk_bf16_f32 v{40+q}, v{ACC+2*q}, v{ACC+2*q+1}")
        j.e("s_nop 0\nv_permlane32_swap_b32 v40, v42\nv_permlane32_swap_b32 v41, v43")
        if kind == "K": j.e(f"buffer_store_dwordx4 v[40:43], v16, {SWS}, s63 offen sc1")
        else: j.e(f"buffer_store_dwordx4 v[40:43], v1, {SWS}, s63 offen offset:1024 sc1")
        j.stamp("kvstored")
        j.e("s_setprio 1\ns_barrier\ns_branch L_jobdone")
        return j
    jg = job("G"); jg.e("s_branch L_jobdone")
    s.L += ld.L + lp.L + [".p2align 12"] + job("K").L + job("V").L + jg.L + [".p2align 12"]
    s.e(f"""
L_jobdone:
v_add_u32 v16, {sW1K}, v1
ds_read_b128 v[8:11], v16 offset:{L_WPHI}
s_barrier
s_barrier
s_barrier
s_waitcnt lgkmcnt(0)
""")
    for q in range(4):
        s.e(f"v_lshlrev_b32 v12, 16, v{8+q}\nv_and_b32 v13, 0xffff0000, v{8+q}\nv_mul_f32 v12, {hex(LOG2E)}, v12\nv_mul_f32 v13, {hex(LOG2E)}, v13\nv_cvt_pk_bf16_f32 v{8+q}, v12, v13")
    s.e(f"""
L_B9:
s_barrier
""")
    s.vm = ["KB7"]; s.lg = []
    s.stamp("B9")
    S0, S1, O, Q = 8, 24, 40, 56
    def ld(t):
        s.vmem(f"buffer_load_dwordx4 {vr(64+4*t)}, v1, {SWS}, {KOFF[t]} offen sc1", f"K{t}")
        s.vmem(f"buffer_load_dwordx4 {ar(8*t)}, v4, {SWS}, {KOFF[t]} offen offset:1024 sc1", f"Vl{t}")
        s.vmem(f"buffer_load_dwordx4 {ar(8*t+4)}, v5, {SWS}, {KOFF[t]} offen offset:1536 sc1", f"Vh{t}")
    AH0, AHEAD = 2, int(os.environ.get("AHEAD", "4"))
    probe = f"buffer_load_dword v63, v0, {SWS}, 0 offen offset:1020 sc1"
    zero = f"v_mfma_f32_32x32x8_bf16 {vr(O,16)}, v[60:61], v[60:61], 0"
    def smf(a, b): return f"v_smfmac_f32_32x32x32_bf16 {vr(O,16)}, {ar(a)}, {vr(b,8)}, v6"
    for t in range(AH0): ld(t)
    s.e(f"v_mov_b32 v6, 0xdddddddd\ns_mov_b32 s3, 4\ns_cmp_lt_u32 {sW}, 2\ns_cbranch_scc1 L_B10")
    s.wait(vm="KB7")
    s.e("L_B10:\ns_barrier")
    s.stamp("B10")
    for t in range(AH0, AHEAD): ld(t)
    s.vmem(probe, "probe")
    s.e(f"""
s_cmp_lt_u32 {sW}, 2
s_cbranch_scc0 L_B11
ds_write_b128 v16, v[8:11] offset:{L_WPHI}
s_cmp_eq_u32 {sROLE}, 3
s_cbranch_scc0 L_nogs
ds_write_b32 v23, v40 offset:{L_GROW}
L_nogs:
s_waitcnt lgkmcnt(0)
L_B11:
s_barrier
""")
    s.lds(f"ds_read_b128 {vr(Q)}, v3", "q")
    s.e("L_kvok:")
    s.stamp("kvready")
    s.e(zero)
    s.wait(vm="K0", lg="all")
    s.e(mfma(vr(S0, 16), vr(64), vr(Q), 0))
    s.e(f"s_mov_b32 m0, s73\ns_nop 10")
    s.stamp("S0")
    CHK = (2, 4, 8, 13)
    NDBL = int(os.environ.get("NDBL", "3"))
    LDS_ = {t: [] for t in range(16)}
    nx = AHEAD
    for t in range(16):
        for _ in range(2 if (t % 2 == 1 and t // 2 < NDBL) else 1):
            if nx < 16: LDS_[t].append(nx); nx += 1
    def dump(s, k):
        for r in range(9): s.e(f"ds_write_addtid_b32 v{O+r} offset:{(k & 1)*9216 + r*256}")
    def step(s, k):
        first = k == 0
        for t in range(16):
            Sc, Sn = (S0, S1) if t % 2 == 0 else (S1, S0)
            tn = (t + 1) % 16; tp = (t - 1) % 16
            pos_lo = 13 if (t == 0 and not first) else 11
            for i in range(16):
                if i == 2 and not (first and t == 0):
                    s.e(smf(8 * tp + 4, Sn + 8))
                if i == 5:
                    if first and t < 15: s.wait(vm=f"K{tn}")
                    if t == 15: s.e("s_waitcnt lgkmcnt(0)")
                    if not (k == 7 and t == 15): s.e(mfma(vr(Sn, 16), vr(64 + 4 * tn), vr(Q), 0))
                    if first:
                        for tl in LDS_[t]: ld(tl)
                        if 15 in LDS_[t]: s.e(f"ds_inc_u32 v60, v6 offset:{L_CNT + 4}")
                    if t == 14:
                        if k < 7: s.e(f"ds_read_b128 {vr(Q)}, v3 offset:{(k+1)*1024}")
                        if k >= 2: s.e(f"ds_read_b32 v63, v62 offset:{(k & 1)*9216 + 2048}")
                    if t == 15 and k >= 2:
                        s.e(f"v_cmp_neq_f32 vcc, -1.0, v63")
                if i == 8 and t == 0 and not first:
                    if k >= 3: s.e(f"s_cbranch_vccnz L_aw{k-1}\nL_ag{k-1}:")
                    dump(s, k - 1); s.e(zero)
                if i == pos_lo:
                    if first and t in CHK: s.e(f"v_cmp_u_f32 vcc, v{O}, v{O+4}\ns_cbranch_vccnz L_rs{t}\nL_ct{t}:")
                    if first and t == AHEAD - 1: s.e("v_cmp_eq_u32 vcc, -1, v63\ns_cbranch_vccnz L_rsp\nL_ctp:")
                    if first and t == 15: s.wait(vm="all")
                    s.e(smf(8 * t, Sc))
                s.e(f"v_exp_f32 v{Sc+i}, v{Sc+i}")
    for k in range(8):
        step(s, k)
        if k < 7: s.stamp(f"step{k}")
    s.e(f"""
v_lshrrev_b32 v14, 2, v1
s_lshl_b32 s89, {sHG}, 12
{smf(8 * 15 + 4, S1 + 8)}
s_cbranch_vccnz L_aw7
L_ag7:
s_cmp_eq_u32 {sW}, 3
s_cbranch_scc1 L_c3
s_nop 8
""")
    dump(s, 7)
    s.stamp("T")
    s.e(f"""
s_waitcnt lgkmcnt(0)
s_barrier
s_branch L_cend
L_c3:
ds_read_b32 v11, v14 offset:{L_GROW}
v_and_b32 v15, 0x7c, v14
s_add_u32 s89, s89, s76
s_add_u32 s89, s89, {WS_OA + 32768 + 3072}
s_add_u32 s88, s89, {WS_OL - WS_OA}
s_mov_b32 s80, 7
s_mov_b32 {sT0}, {fbits(2.0**-60)}
s_mov_b32 {sT1}, {fbits(2.0**64)}
s_setprio 3
v_mov_b32 v12, 0x207
v_mov_b32 v13, v{O+8}
s_nop 1
v_permlane32_swap_b32 v{O+8}, v13
""")
    s.stamp("T")
    s.e(f"s_barrier\nds_read2st64_b32 v[8:9], v15 offset0:{36+8} offset1:{36+17}\nds_read_b32 v10, v15 offset:{9216 + 26*256}")
    for cw in range(3):
        for q in range(4): s.e(f"ds_read2st64_b32 {vr(16+8*cw+2*q,2)}, v14 offset0:{36+9*cw+2*q} offset1:{36+9*cw+2*q+1}")
    s.e(f"""
s_waitcnt lgkmcnt(12)
v_add_f32 v8, v8, v9
v_add_f32 v10, v10, v{O+8}
v_add_f32 v8, v8, v10
v_cmp_nge_f32 s[82:83], v8, {sT0}
v_cmp_nle_f32 s[90:91], v8, {sT1}
v_rcp_f32 v8, v8
""")
    for cw in range(3):
        s.e(f"s_waitcnt lgkmcnt({8 - 4*cw})")
        for q in range(8): s.e(f"v_add_f32 v{O+q}, v{O+q}, v{16+8*cw+q}")
        if cw == 0: s.e("v_mul_f32 v9, v8, v11\ns_or_b64 s[82:83], s[82:83], s[90:91]")
    for q in range(8): s.e(f"v_mul_f32 v{O+q}, v{O+q}, v9")
    s.e(f"""
v_fma_f32 v10, v{O}, v{O+1}, v{O+2}
v_cvt_pk_bf16_f32 v16, v{O}, v{O+1}
v_fma_f32 v10, v{O+3}, v{O+4}, v10
v_cvt_pk_bf16_f32 v17, v{O+2}, v{O+3}
v_fma_f32 v10, v{O+5}, v{O+6}, v10
v_cvt_pk_bf16_f32 v18, v{O+4}, v{O+5}
v_add_f32 v10, v10, v{O+7}
v_cvt_pk_bf16_f32 v19, v{O+6}, v{O+7}
v_cmp_class_f32 vcc, v10, v12
s_or_b64 vcc, vcc, s[82:83]
{"s_branch" if FORCE_FB else "s_cbranch_vccnz"} L_c3fb
buffer_store_dwordx4 v[16:19], v1, {SWS}, s88 offen
buffer_store_dwordx4 v[16:19], v1, {SWS}, s89 offen sc1
L_cend:
""")
    s.stamp("fin7")
    s.e("s_barrier")
    if STAMP: write_stamps(s)
    if CAL: cal_end(s)
    s.e("s_endpgm")
    s.e("L_c3fb:\nv_mov_b32 v25, v6\nv_mov_b32 v26, 0\nv_mov_b32 v27, 0\nv_mov_b32 v21, 1\ns_call_b64 s[92:93], L_fb\ns_branch L_cend")
    for k in range(2, 8):
        top, done = f"L_aw{k}", lbl("awd")
        s.e(f"{top}:\nds_read_b32 v63, v62 offset:{(k & 1)*9216 + 2048}\ns_waitcnt lgkmcnt(0)\nv_cmp_neq_f32 vcc, -1.0, v63\ns_cbranch_vccz {done}")
        spin_tail(s, top, done, 1)
        s.e(f"s_branch L_ag{k}")
    for t in CHK + ("p",):
        s.e(f"L_rs{t}:\ns_cmp_eq_u32 s3, 0\ns_cbranch_scc1 L_ct{t}\ns_branch L_rs")
    s.e("L_rs:\ns_sub_u32 s3, s3, 1")
    if STAMP: s.e(f"v_mov_b32 v9, 1\ns_mov_b64 exec, 1\nbuffer_atomic_add v9, v60, {SDBG}, 0 offen offset:12 sc1\ns_mov_b64 exec, -1")
    top, done = "L_kvretry", lbl("kvr")
    s.e(f"{top}:\n{probe}\ns_waitcnt vmcnt(0)\nv_cmp_eq_u32 vcc, -1, v63\ns_cbranch_vccz {done}")
    spin_tail(s, top, done, 0)
    s.vm = []
    for t in range(AHEAD): ld(t)
    s.e(probe + "\ns_branch L_kvok")
    return s

def cal_end(s):
    role, name, wg = CAL.split(":")
    if role != s.stv: return
    s.e(f"""
s_waitcnt vmcnt(0) lgkmcnt(0)
s_cmp_eq_u32 s2, {wg}
s_cbranch_scc0 L_calx
s_and_b32 s69, {sW}, 3
s_cmp_eq_u32 s69, 3
s_cbranch_scc0 L_calx
s_sub_u32 s94, s94, s96
s_lshl_b32 s94, s94, 3
s_memtime s[96:97]
s_waitcnt lgkmcnt(0)
L_calw:
s_sleep 4
s_memtime s[98:99]
s_waitcnt lgkmcnt(0)
s_sub_u32 s98, s98, s96
s_cmp_lt_u32 s98, s94
s_cbranch_scc1 L_calw
L_calx:
""")

def write_stamps(s):
    s.e(f"""
s_waitcnt lgkmcnt(0)
s_mov_b32 m0, s100
s_nop 0
v_writelane_b32 {s.stv}, s98, m0
v_writelane_b32 {s.stv}, s96, 0
v_writelane_b32 {s.stv}, s94, 1
s_memrealtime s[94:95]
s_waitcnt lgkmcnt(0)
v_writelane_b32 {s.stv}, s94, 63
s_lshl3_add_u32 {sT0}, s2, {sW}
s_lshl_b32 {sT0}, {sT0}, 8
s_add_u32 {sT0}, {sT0}, {WS_ST}
v_lshrrev_b32 v0, 2, v1
buffer_store_dword {s.stv}, v0, {SWS}, {sT0} offen
""")

def h_path(s):
    s.stv = "v31"
    s.e(".p2align 12\nL_H:\ns_setprio 2")
    if STAMP: s.e("v_mov_b32 v31, 0")
    s.stamp("entry")
    s.e(f"""
s_cmp_eq_u32 {sW}, 4
s_cselect_b32 s89, {sT3}, 2
s_cmp_lt_u32 s89, 2
s_cselect_b32 s89, 1, 0
s_cbranch_scc0 L_noclr
v_mov_b32 v64, -1
v_mov_b32 v65, -1
v_mov_b32 v66, -1
v_mov_b32 v67, -1
s_mul_i32 {sT0}, {sTB}, {2*KVREC}
s_lshl_b32 {sT1}, {sT3}, 10
s_add_u32 {sT1}, {sT1}, {sT0}
buffer_store_dwordx4 v[64:67], v1, {SWS}, {sT1} offen sc1
buffer_store_dwordx4 v[64:67], v1, {SWS}, {sT1} offen offset:{KVREC} sc1
v_mov_b32 v68, 0
v_mov_b32 v69, 0
v_mov_b32 v70, 0
v_mov_b32 v71, 0
s_lshl1_add_u32 {sT1}, {sTB}, {sT3}
s_lshl_b32 {sT1}, {sT1}, 12
s_add_u32 {sT1}, {sT1}, {WS_FL}
buffer_store_dwordx4 v[68:71], v1, {SWS}, {sT1} offen sc1
buffer_store_dwordx4 v[68:71], v1, {SWS}, {sT1} offen offset:1024 sc1
buffer_store_dwordx4 v[68:71], v1, {SWS}, {sT1} offen offset:2048 sc1
buffer_store_dwordx4 v[68:71], v1, {SWS}, {sT1} offen offset:3072 sc1
s_mov_b64 exec, 0xffff
s_cmp_eq_u32 {sT3}, 0
s_cbranch_scc0 L_clrV
s_lshl_b32 {sT1}, {sTB}, 8
s_add_u32 {sT1}, {sT1}, {WS_G}
buffer_store_dwordx4 v[64:67], v1, {SWS}, {sT1} offen sc1
s_branch L_clrd
L_clrV:
v_mov_b32 v72, 0x3f803f80
v_mov_b32 v73, v72
v_mov_b32 v74, v72
v_mov_b32 v75, v72
v_lshrrev_b32 v76, 3, v2
v_mul_u32_u24 v76, {KVREC - 128}, v76
v_add_u32 v76, v76, v1
buffer_store_dwordx4 v[72:75], v76, {SWS}, {sT0} offen offset:2048 sc1
L_clrd:
s_mov_b64 exec, -1
L_noclr:
""")
    sHW, sFL, sJ, sOT = "s78", "s79", "s80", "s81"
    vW0, vW1, vPB, vONE, vNEG, vIDX, vZ = 18, 19, 20, 21, 22, 25, 26
    vOD, vOL = 14, 15
    vWPH, vPHW, vPHR, vU, vVXR, vSCW, vKVPS, vFLG, vGF, vKFS, vKFL = 0, 3, 7, 23, 24, 28, 29, 6, 8, 9, 10
    O_PHI, O_VX, O_SC = 0, 20480, 36864
    vSCR, vFC, vG = 30, 2, 11
    vQW, vTO = 52, 112
    s.e(f"""
s_and_b32 {sHW}, {sW}, 3
s_mov_b32 s74, 1.0
s_mov_b32 s75, -1.0
v_bfe_u32 v11, v2, 4, 1
v_subrev_u32 v12, {32*1024}, v4
v_subrev_u32 v13, {32*3072}, v5
v_lshrrev_b32 v17, 1, v9
v_xor_b32 v17, {sP}, v17
v_lshlrev_b32 v32, 6, v17
v_lshl_add_u32 v16, v8, 3, v9
v_lshl_add_u32 v16, v16, 7, v32
v_lshl_add_u32 v16, v11, 5, v16
v_lshl_add_u32 v16, v10, 3, v16
v_add_u32 v{vW0}, {L_R0}, v16
v_add_u32 v{vW1}, {L_R1}, v16
v_lshl_add_u32 v33, v8, 2, v9
v_lshl_add_u32 v16, v33, 7, v32
v_and_b32 v17, 1, v10
v_lshl_add_u32 v16, v17, 5, v16
v_lshl_add_u32 v16, v11, 4, v16
v_lshrrev_b32 v17, 1, v10
v_lshl_add_u32 v{vPB}, v17, 3, v16
v_mov_b32 v{vONE}, 1
v_mov_b32 v{vNEG}, -1.0
v_mov_b32 v{vIDX}, 0xdddddddd
v_mov_b32 v26, 0
v_mov_b32 v27, 0
s_mul_i32 {sT0}, {sTT}, 9216
v_lshl_add_u32 v{vOD}, v2, 2, {sT0}
v_lshl_add_u32 v{vOL}, v6, 2, {sT0}
v_lshlrev_b32 v16, 5, v33
v_lshl_add_u32 v16, v10, 3, v16
s_lshl_b32 {sT0}, {sP}, 10
v_add_u32 v{vWPH}, {sT0}, v16
v_and_b32 v16, 15, v2
v_lshl_add_u32 v16, v8, 4, v16
v_lshlrev_b32 v16, 4, v16
s_lshl_b32 {sT0}, {sHW}, 10
s_add_u32 {sT0}, {sT0}, {L_VX}
s_cmp_eq_u32 {sHW}, 3
s_cselect_b32 {sT0}, {L_Q}, {sT0}
v_add_u32 v{vU}, {sT0}, v16
s_xor_b32 {sT1}, {sHW}, 1
s_lshl_b32 {sT0}, {sT1}, 10
s_add_u32 {sT0}, {sT0}, {L_VX}
s_cmp_eq_u32 {sT1}, 3
s_cselect_b32 {sT0}, {L_Q}, {sT0}
v_add_u32 v{vVXR}, {sT0}, v16
s_mul_i32 {sT1}, {sHW}, 4608
s_add_u32 {sT1}, {sT1}, {L_R1}
v_mul_u32_u24 v16, 72, v6
v_lshl_add_u32 v17, v8, 3, v16
v_add_u32 v{vPHW}, {sT1}, v17
s_lshl_b32 {sT0}, {sTT}, 4
v_xor_b32 v16, {sT0}, v6
v_mul_u32_u24 v16, 144, v16
v_lshl_add_u32 v16, v8, 6, v16
v_add_u32 v{vSCW}, {sT1}, v16
v_lshrrev_b32 v16, 3, v2
v_and_b32 v17, 7, v2
v_mul_u32_u24 v34, 144, v16
v_lshl_add_u32 v34, v17, 4, v34
v_add_u32 v{vSCR}, {sT1}, v34
v_lshlrev_b32 v16, 12, v16
v_lshl_add_u32 v{vKVPS}, v17, 4, v16
s_mul_i32 {sT1}, {sP}, 9216
s_mul_i32 {sT0}, {sTT}, {2304 + 4608}
s_add_u32 {sT0}, {sT0}, {sT1}
s_add_u32 {sT0}, {sT0}, {L_R1}
v_mul_u32_u24 v16, 72, v33
v_lshl_add_u32 v16, v11, 5, v16
v_lshl_add_u32 v16, v10, 3, v16
v_add_u32 v{vPHR}, {sT0}, v16
s_lshl2_add_u32 {sT0}, {sP}, {sTT}
s_lshl_b32 {sT0}, {sT0}, 10
s_add_u32 {sT0}, {sT0}, {L_Q}
v_add_u32 v{vQW}, {sT0}, v1
v_lshl_add_u32 v16, v11, 1, v8
v_lshl_add_u32 v16, v10, 3, v16
v_bfe_u32 v17, v2, 2, 1
v_lshl_add_u32 v16, v17, 2, v16
v_lshlrev_b32 v{vKFS}, 1, v16
v_min_u32 v16, 16, v6
v_lshlrev_b32 v16, 7, v16
v_lshl_add_u32 v{vKFL}, v8, 4, v16
v_lshlrev_b32 v16, 12, v6
v_lshl_add_u32 v{vFLG}, v8, 7, v16
v_and_b32 v16, 15, v2
v_lshlrev_b32 v{vGF}, 8, v16
s_lshl_b32 {sT0}, {sTT}, 2
v_mov_b32 v{vFC}, {sT0}
v_mov_b32 v17, 0x3f803f80
s_lshl3_add_u32 {sFL}, {sTB}, {sHG}
s_lshl2_add_u32 {sFL}, {sFL}, {sHW}
s_lshl_b32 {sFL}, {sFL}, 7
s_add_u32 {sFL}, {sFL}, {WS_FL}
s_lshl_b32 s88, {sTT}, 15
s_add_u32 s88, s88, s76
s_add_u32 s88, s88, {WS_OA}
s_lshl_b32 {sOT}, {sHG}, 12
s_add_u32 {sOT}, {sOT}, s88
s_lshl2_add_u32 s84, {sHG}, {sHW}
s_mul_i32 s85, s84, {17*4096}
s_add_u32 s85, s85, {WS_KVP}
s_lshl1_add_u32 s86, {sHG}, {sP}
s_lshl_b32 s87, {sTB}, 12
s_lshl_b32 {sT0}, {sTT}, 7
s_add_u32 s87, s87, {sT0}
s_add_u32 s87, s87, {WS_FL}
ds_write_b64 v{vZ}, v[26:27] offset:{L_CNT}
ds_write_b64 v{vZ}, v[26:27] offset:{L_CNT+8}
ds_write_b32 v{vZ}, v17 offset:{L_ONES}
ds_write_b32 v{vZ}, v17 offset:{L_ONES+4}
ds_write_b32 v{vZ}, v17 offset:{L_ONES+8}
ds_write_b32 v{vZ}, v17 offset:{L_ONES+12}
""")
    s.stamp("setup")
    s.e(f"s_waitcnt vmcnt(7)\ns_cmp_eq_u32 s89, 1\ns_cbranch_scc1 L_own\ns_waitcnt vmcnt(0)\nL_own:")
    s.stamp("own")
    s.vm = []
    for u in range(4):
        if u == 2:
            s.e(f"""
s_cmp_eq_u32 s89, 1
s_cbranch_scc0 L_nosig
s_lshl_b32 {sT0}, {sT3}, 7
s_mov_b64 exec, 1
s_waitcnt vmcnt(0)
buffer_atomic_add v{vONE}, v{vZ}, {SDBG}, {sT0} offen sc1
s_mov_b64 exec, -1
L_nosig:
""")
        s.e("s_barrier")
        s.stamp(f"B{u+1}")
        for t in range(8 * u, 8 * u + 8):
            s.lds(f"ds_read_b128 {ar(4*t)}, v{XA + (t & 3)} offset:{(t >> 2)*8192}", "x")
    A0, A1 = 64, 80
    LAG = 4
    def ring(t): return 32 + 4 * (t % 5)
    def gemm(steps, pre=None):
        n = len(steps)
        def mm(t):
            s.wait(lg=f"w{t}")
            s.e(steps[t][3].replace("WF", vr(ring(t))))
        for t in range(n):
            if pre: pre(t)
            a, off, rs, _ = steps[t]
            for rd in range(2):
                s.lds(f"ds_read_b64_tr_b16 {vr(ring(t)+2*rd,2)}, v{a} offset:{off + rd*rs}", f"w{t}")
            if t >= LAG: mm(t - LAG)
        for t in range(n - LAG, n): mm(t)
    def p1steps(va, acc, swap):
        return [(va, t * 2048, 512, mfma(vr(acc, 16), *((ar(4 * t), "WF") if swap else ("WF", ar(4 * t))), "0" if t == 0 else vr(acc, 16))) for t in range(32)]
    def pre(t):
        if t % 8 == 0:
            s.e("s_barrier")
            s.stamp(f"B{5 + t // 8}")
        if t == 24:
            skip = lbl("cs")
            s.e(f"v_and_b32 v17, 0x80, v{vFLG}\ns_cmp_eq_u32 {sHW}, 3\ns_cbranch_scc0 {skip}\nbuffer_load_dword v16, v17, {SDBG}, 0 offen sc1\n{skip}:")
    gemm(p1steps(vW1, A1, False), pre)
    s.e("s_nop 11")
    for q in range(8): s.e(f"v_cvt_pk_bf16_f32 v{104+q}, v{A1+2*q}, v{A1+2*q+1}")
    top, done = lbl("cl"), lbl("cld")
    s.e(f"s_cmp_eq_u32 {sHW}, 3\ns_cbranch_scc0 {done}\ns_branch {top}c\n{top}:\nbuffer_load_dword v16, v17, {SDBG}, 0 offen sc1")
    s.e(f"{top}c:\ns_waitcnt vmcnt(0)\nv_cmp_gt_u32 vcc, 32, v16\ns_cbranch_vccz {done}")
    spin_tail(s, top, done, 2)
    s.stamp("qdone")
    s.e("s_barrier")
    s.stamp("B9")
    PACE = int(os.environ.get("PACE", "4"))
    def dma_chunk(c, srd, voff, rowbytes, colimm, region, tag, natural):
        s.e(f"s_mul_i32 {sT0}, {KC[c]}, {64*rowbytes}\ns_add_u32 {sT0}, {sT0}, s77")
        if colimm: s.e(f"s_add_u32 {sT0}, {sT0}, {colimm}")
        if natural: s.e(f"s_lshl_b32 {sT1}, {KC[c]}, 13\ns_add_u32 {sT1}, {sT1}, {sW1K}\ns_add_u32 m0, {sT1}, {region}")
        else: s.e(f"s_add_u32 m0, {sW1K}, {region + c*8192}")
        s.e("s_nop 0")
        s.vmem(f"buffer_load_dwordx4 v{voff}, {srd}, {sT0} offen lds", tag)
        s.e(f"s_sub_u32 m0, m0, 4096\ns_nop 0")
        s.vmem(f"buffer_load_dwordx4 v{voff+8}, {srd}, {sT0} offen lds", tag)
    def dma_group(*a):
        for c in range(8):
            if c >= 2: s.e(f"s_waitcnt vmcnt({PACE})")
            dma_chunk(c, *a)
    def ldswait(off, target, sleep):
        top, done = lbl("sb"), lbl("sbd")
        s.e(f"{top}:\nds_read_b32 v16, v{vZ} offset:{off}\ns_waitcnt lgkmcnt(0)\nv_readfirstlane_b32 {sT0}, v16\ns_cmp_ge_u32 {sT0}, {target}\ns_cbranch_scc1 {done}")
        spin_tail(s, top, done, sleep)
        s.lg = []
    nsb = [0]
    def sb_arrive():
        nsb[0] += 1
        s.e(f"s_mov_b64 exec, 1\nds_add_u32 v{vZ}, v{vONE} offset:{L_CNT}\ns_mov_b64 exec, -1")
    def sb_wait(sleep=1):
        ldswait(L_CNT, 4 * nsb[0], sleep)
        s.stamp(f"S{nsb[0]}")
    def softbar(sleep=1):
        sb_arrive(); sb_wait(sleep)
    def poll(vaddr, soff, imm, sleep=2):
        top, done = lbl("pl"), lbl("pld")
        o = f" offset:{imm}" if imm else ""
        s.e(f"{top}:\nbuffer_load_dword v16, v{vaddr}, {SWS}, {soff} offen{o} sc1\ns_waitcnt vmcnt(0)\nv_cmp_ne_u32 vcc, 1, v16\ns_cbranch_vccz {done}")
        spin_tail(s, top, done, sleep)
        s.vm = []
    def setflag(k):
        s.e(f"s_mov_b64 exec, 1")
        s.vmem(f"buffer_store_dword v{vONE}, v{vZ}, {SWS}, {sFL} offen offset:{4*k} sc1")
        s.e("s_mov_b64 exec, -1")
    def fin(hw, j, flag=False):
        skip = lbl("nf")
        s.e(f"s_cmp_eq_u32 {sHW}, {hw}\ns_cbranch_scc0 {skip}\ns_mov_b32 {sJ}, {j}\ns_call_b64 s[92:93], L_fin")
        s.e(f"{skip}:")
        s.stamp(f"fin{j}")
    def kvp_stores(r0, r1, r2):
        s.e(f"s_lshl_b32 {sT1}, {sTB}, 7\ns_add_u32 {sT1}, {sT1}, s85")
        s.vmem(f"buffer_store_dwordx4 {vr(r0)}, v{vKVPS}, {SWS}, {sT1} offen sc1")
        s.e(f"s_add_u32 {sT1}, {sT1}, 32768")
        s.vmem(f"buffer_store_dwordx4 {vr(r1)}, v{vKVPS}, {SWS}, {sT1} offen sc1")
        s.e(f"s_add_u32 {sT1}, {sT1}, 32768\ns_mov_b64 exec, 0xff")
        s.vmem(f"buffer_store_dwordx4 {vr(r2)}, v{vKVPS}, {SWS}, {sT1} offen sc1")
        s.e("s_mov_b64 exec, -1")
    T0, T1 = 96, 112
    def phi_logits():
        for a in range(2):
            for rd in range(2):
                s.lds(f"ds_read_b64_tr_b16 {vr(40+4*a+2*rd,2)}, v{vWPH} offset:{L_WPHI + a*512 + rd*256}")
        s.e("s_nop 4")
        for q in range(8): s.e(f"v_cvt_pk_bf16_f32 v{56+q}, v{A0+2*q}, v{A0+2*q+1}")
        s.wait(lg="all")
        s.e("s_nop 0")
        s.e(mfma(vr(T0, 16), "v[40:43]", "v[56:59]", 0))
        s.e(mfma(vr(T1, 16), "v[44:47]", "v[60:63]", 0))
        s.e("s_nop 11")
    def pre(t):
        if t == 16:
            s.e("s_barrier"); s.stamp("B10")
            for a in range(2): s.lds(f"ds_write_b128 v{vQW}, {vr(104+4*a)} offset:{a*2048}")
            s.lds(f"ds_write2st64_b32 v{vOD}, v{vNEG}, v{vNEG} offset0:8 offset1:17")
            s.lds(f"ds_write2st64_b32 v{vOD}, v{vNEG}, v{vNEG} offset0:26 offset1:35")
        if t == 17 + LAG: s.e("s_barrier"); s.stamp("B11")
    gemm(p1steps(vW0, A0, False), pre)
    s.e(f"""
s_cmp_eq_u32 {sROLE}, 3
s_cbranch_scc0 L_nogp
s_cmp_eq_u32 {sHW}, 0
s_cbranch_scc0 L_nogp
ds_read_b32 v16, v{vOD} offset:{L_GROW}
s_lshl_b32 {sT1}, {sTB}, 8
s_add_u32 {sT1}, {sT1}, {WS_G}
s_waitcnt lgkmcnt(0)
buffer_store_dword v16, v{vOD}, {SWS}, {sT1} offen sc1
L_nogp:
s_nop 0
""")
    phi_logits()
    s.stamp("kgemm")
    sm = softmax_exp([T0, T1])
    for k in range(3):
        for i, T in enumerate((T0, T1)):
            for sg in range(2):
                b = T + 8 * sg; d = 56 + 4 * i + 2 * sg
                if k == 0: sm.append(f"v_pk_add_f32 {vr(d,2)}, {vr(b,2)}, {vr(b+2,2)}")
                else: sm.append(f"v_pk_add_f32 {vr(d,2)}, {vr(d,2)}, {vr(b+2+2*k,2)}")
    for i in range(2):
        for sg in range(2):
            d = 56 + 4 * i + 2 * sg
            sm.append(f"v_add_f32 v{48+2*i+sg}, v{d}, v{d+1}")
    sm.append("s_nop 1")
    for m in (48, 50): sm.append(f"v_permlane32_swap_b32 v{m}, v{m+1}")
    for m in (48, 50): sm.append(f"v_add_f32 v{m}, v{m}, v{m+1}")
    for m in (48, 50): sm.append(f"v_rcp_f32 v{m}, v{m}")
    sm.append("s_nop 0")
    for m in (48, 50): sm.append(f"v_mov_b32 v{m+1}, v{m}")
    sm.append("s_nop 1")
    for m in (48, 50): sm.append(f"v_permlane32_swap_b32 v{m}, v{m+1}")
    for i, T in enumerate((T0, T1)):
        for j in range(8):
            sel = "op_sel_hi:[1,0]" if j < 4 else "op_sel:[0,1] op_sel_hi:[1,1]"
            sm.append(f"v_pk_mul_f32 {vr(T+2*j,2)}, {vr(T+2*j,2)}, {vr(48+2*i,2)} {sel}")
        for j in range(8):
            sm.append(f"v_cvt_pk_bf16_f32 v{T+j}, v{T+2*j}, v{T+2*j+1}")
    s.e("\n".join(sm))
    for a, T in enumerate((T0, T1)):
        for q in range(4): s.lds(f"ds_write_b64 v{vPHW}, {vr(T+2*q,2)} offset:{O_PHI + a*2304 + q*16}")
    s.stamp("ksm")
    sb_arrive()
    s.e(f"s_mul_i32 {sT1}, {sTT}, -9216\ns_add_u32 {sT1}, {sT1}, 4608\nv_add_u32 v17, {sT1}, v{vPHR}\nv_lshlrev_b32 v{vTO}, 6, v1")
    for q in range(4): s.e(f"v_mov_b32 v{56+q}, -1")
    sb_wait()
    for o, va in enumerate((vPHR, 17)):
        for th in range(2):
            for rd in range(2):
                s.lds(f"ds_read_b64_tr_b16 {vr(96+8*o+4*th+2*rd,2)}, v{va} offset:{O_PHI + th*16*72 + rd*8*72}")
    sb_arrive()
    s.e(";WARMUP")
    sb_wait()
    ldswait(L_CNT + 4, 256, 3)
    s.stamp("go")
    s.e(f"""
s_lshl1_add_u32 s5, {sTB}, {sTT}
s_lshl_b32 s5, s5, 7
s_add_u32 s5, s5, {WS_G}
s_mul_i32 {sT0}, {sTT}, 9216
s_sub_u32 s5, s5, {sT0}
""")
    s.vmem(f"buffer_load_dword v{vG}, v{vOL}, {SWS}, s5 offen sc1", "g")
    dma_group(SWB, 5, 3072, 2048, L_R1, "VB", False)
    s.e(f"""
s_mul_i32 s3, s84, 17
s_add_u32 s3, s3, {sTB}
s_lshl_b32 s3, s3, 7
s_add_u32 s3, s3, {WS_KVF}
s_cmp_gt_u32 {sTB}, 16
s_cbranch_scc1 L_nokf
s_mov_b64 exec, 0xff
buffer_store_dwordx4 v[56:59], v1, {SWS}, s3 offen sc1
s_mov_b64 exec, -1
L_nokf:
s_cmp_ge_u32 {sHW}, 2
s_cbranch_scc0 L_nooa
s_add_u32 {sT0}, {sOT}, {WS_OL - WS_OA}
buffer_store_dwordx4 v[56:59], v1, {SWS}, {sT0} offen offset:3072 sc1
L_nooa:
s_lshl_b32 {sT0}, {sP}, 10
s_add_u32 {sT0}, {sT0}, {sOT}
""")
    s.vmem(f"buffer_store_dwordx4 v[56:59], v1, {SWS}, {sT0} offen offset:2048 sc1")
    s.e(f"""
""")
    kvp_stores(56, 56, 56)
    s.vm[-1] = "clr"
    dma_chunk(0, SWB, 5, 3072, 0, L_R0, "QB", False)
    dma_chunk(1, SWB, 5, 3072, 0, L_R0, "QB", False)
    s.stamp("vbiss")
    s.wait(vm="g")
    top, done = lbl("gw"), lbl("gwd")
    s.e(f"s_branch {top}c\n{top}:\nbuffer_load_dword v{vG}, v{vOL}, {SWS}, s5 offen sc1\ns_waitcnt vmcnt(0)\n{top}c:\nv_cmp_eq_u32 vcc, -1, v{vG}\ns_cbranch_vccz {done}")
    spin_tail(s, top, done, 2)
    s.e(f"s_cmp_eq_u32 {sHW}, 1\ns_cbranch_scc0 L_nog\nds_write_b32 v{vOD}, v{vG} offset:{L_GROW - 9216}\nL_nog:")
    fin(0, 0)
    s.e(";WARMUP2")
    s.wait(vm="VB")
    softbar()
    s.e("s_setprio 0")
    def pre(t):
        if t % 4 == 0 and t // 4 < 6: dma_chunk(2 + t // 4, SWB, 5, 3072, 0, L_R0, "QB", False)
        if t == 24:
            s.e(f"""
s_cmp_eq_u32 {sTT}, 0
s_cselect_b32 {sT1}, {KC[0]}, {KC[1]}
s_lshl_b32 {sT0}, {sT1}, 16
s_add_u32 {sT0}, {sT0}, s77
s_cmp_eq_u32 {sP}, 0
s_cbranch_scc0 L_tch1
buffer_load_dword v5, v{vTO}, {SOB}, {sT0} offen
s_branch L_tch2
L_tch1:
buffer_load_dword v5, v{vTO}, {SOA}, {sT0} offen
L_tch2:
""")
            s.vm.append("t")
            s.wait(vm="clr")
            setflag(0)
    gemm(p1steps(vW1, A0, True), pre)
    s.e("s_setprio 2")
    for f in range(2): s.lds(f"ds_read_b128 {vr(120+4*f)}, v{vZ} offset:{L_ONES}")
    s.e(f"s_lshl_b32 {sT0}, {sTT}, 4\ns_lshl_b32 s82, 0xffff, {sT0}\ns_mov_b32 s83, s82\ns_nop 5")
    for q in range(8): s.e(f"v_cvt_pk_bf16_f32 v{112+q}, v{A0+2*q}, v{A0+2*q+1}")
    s.e("s_not_b64 exec, s[82:83]")
    for th in range(2): s.lds(f"ds_write_b128 v{vU}, {vr(112+4*th)} offset:{th*512}")
    for th in range(2): s.lds(f"ds_read_b128 {vr(112+4*th)}, v{vZ} offset:{L_ONES}")
    s.e("s_mov_b64 exec, -1")
    s.wait(vm="QB")
    s.stamp("vgemm")
    softbar(0)
    s.e("s_mov_b64 exec, s[82:83]")
    for th in range(2): s.lds(f"ds_read_b128 {vr(120+4*th)}, v{vVXR} offset:{th*512}")
    s.e("s_mov_b64 exec, -1")
    for f in range(4):
        if f == 2: s.wait(lg="all")
        s.e(mfma(vr(A0, 16), vr(96 + 4 * f), vr(112 + 4 * f), "0" if f == 0 else vr(A0, 16)))
    s.e("s_nop 11")
    for q in range(4): s.lds(f"ds_write_b128 v{vSCW}, {vr(A0+4*q)} offset:{O_SC + 16*q}")
    for t in range(3): s.lds(f"ds_read_b128 {vr(96+4*t)}, v{vSCR} offset:{O_SC + 1152*t}")
    s.wait(lg="all")
    kvp_stores(96, 100, 104)
    sb_arrive()
    s.e(f"s_lshl_b32 s73, s86, 8\ns_add_u32 s73, s73, {WS_FL}\nbuffer_load_dword v5, v{vFLG}, {SWS}, s73 offen sc1\nbuffer_load_dword v13, v{vZ}, {SWS}, s73 offen sc1")
    s.stamp("kvp")
    fin(1, 1)
    s.vm = []
    def a_loads():
        for t in range(4): s.e(f"buffer_load_dwordx4 {vr(80+4*t)}, v1, {SWS}, s4 offen offset:{1024*t} sc1")
    s.e(f"""
s_lshl_b32 s4, {sTB}, 12
s_add_u32 s4, s4, s85
s_setprio 0
""")
    TA_LD, TA_RED = int(os.environ.get("TALD", "10")), int(os.environ.get("TARED", "18"))
    def pre(t):
        if t == TA_LD:
            okl = lbl("fl")
            s.e(f"s_setprio 2\ns_waitcnt vmcnt(1)\nv_cmp_ne_u32 vcc, 1, v5\ns_cbranch_vccz {okl}")
            poll(vFLG, "s73", 0)
            s.e(f"{okl}:\ns_setprio 0\ns_cmp_gt_u32 {sTB}, 16\ns_cbranch_scc1 L_noal")
            a_loads()
            s.e("L_noal:")
        if t == TA_RED:
            top, done = lbl("sa"), lbl("sad")
            s.e(f"s_setprio 2\ns_cmp_gt_u32 {sTB}, 16\ns_cbranch_scc1 L_noA\ns_branch {top}c\n{top}:")
            a_loads()
            s.e(f"{top}c:\ns_waitcnt vmcnt(0)\nv_max3_u32 v16, v80, v81, v82")
            for q in range(6): s.e(f"v_max3_u32 v16, v16, v{83+2*q}, v{84+2*q}")
            s.e(f"v_max_u32 v16, v16, v95\nv_cmp_eq_u32 vcc, -1, v16\ns_cbranch_vccz {done}")
            spin_tail(s, top, done, 3)
            s.stamp("kvpok")
            s.e(f"""
v_pk_add_f32 v[80:81], v[80:81], v[84:85]
v_pk_add_f32 v[82:83], v[82:83], v[86:87]
v_pk_add_f32 v[88:89], v[88:89], v[92:93]
v_pk_add_f32 v[90:91], v[90:91], v[94:95]
v_pk_add_f32 v[80:81], v[80:81], v[88:89]
v_pk_add_f32 v[82:83], v[82:83], v[90:91]
s_nop 1
v_permlane32_swap_b32 v80, v81
v_permlane32_swap_b32 v82, v83
v_add_f32 v80, v80, v81
v_add_f32 v82, v82, v83
s_nop 1
v_permlane16_swap_b32 v80, v82
v_add_f32 v80, v80, v82
s_nop 1
v_add_f32_dpp v80, v80, v80 row_ror:8 row_mask:0xf bank_mask:0xf
v_cvt_pk_bf16_f32 v17, v80, v80
buffer_store_short v17, v{vKFS}, {SWS}, s3 offen sc1
L_noA:
""")
            s.stamp("stageA")
            sb_wait(); s.e("s_setprio 0")
        if t >= TA_RED and (t - TA_RED) % 2 == 0 and t < 31: dma_chunk((t - TA_RED) // 2, SOB, 4, 1024, 0, L_R1, "WOB", True)
        if t == 31:
            for c in range((32 - TA_RED) // 2, 8): dma_chunk(c, SOB, 4, 1024, 0, L_R1, "WOB", True)
    gemm(p1steps(vW0, A0, False), pre)
    s.e("s_setprio 2\ns_nop 2")
    s.stamp("qgemm")
    phi_logits()
    for f in range(4): s.lds(f"ds_read_b128 {vr(32+4*f)}, v{vZ} offset:{L_ONES}")
    s.e(f"""
s_mul_i32 s73, s86, {2*17*128}
s_add_u32 s73, s73, {WS_KVF}
s_mov_b32 s82, 0x5555ffff
s_mov_b32 s83, 0x5555ffff
""")
    s.wait(lg="all")
    def kvf_loads():
        s.e("s_mov_b64 exec, s[82:83]")
        for a in range(2):
            for sg in range(2):
                s.e(f"buffer_load_dwordx4 {vr(32+8*a+4*sg)}, v{vKFL}, {SWS}, s73 offen offset:{a*17*128 + sg*32} sc1")
        s.e("s_mov_b64 exec, -1")
    kvf_loads()
    s.e("\n".join(softmax_exp([T0, T1])))
    s.stamp("qsm")
    top, done = lbl("sbk"), lbl("sbkd")
    s.e(f"s_branch {top}c\n{top}:")
    kvf_loads()
    s.e(f"{top}c:\ns_waitcnt vmcnt(0)\nv_pk_max_u16 v16, v32, v33")
    for q in range(14): s.e(f"v_pk_max_u16 v16, v16, v{34+q}")
    s.e(f"v_pk_max_u16 v16, v16, v16 op_sel:[0,1] op_sel_hi:[1,0]\nv_cmp_eq_u32 vcc, -1, v16\ns_cbranch_vccz {done}")
    spin_tail(s, top, done, 2)
    s.vm = []
    sb_arrive()
    s.stamp("kvfok")
    s.e(f"""
s_lshl_b32 {sT2}, {sP}, 11
s_add_u32 {sT1}, {sOT}, {sT2}
s_add_u32 {sT1}, {sT1}, {WS_OB - WS_OA}
s_mov_b32 {sT2}, {fbits(1e-6)}
v_sub_f32 v60, 1.0, v{vG}
s_add_u32 s6, s87, {WS_FLL - WS_FL}
""")
    for a in range(2):
        T = (T0, T1)[a]
        for D in (A0, A1): s.e(f"v_mfma_f32_32x32x8_bf16 {vr(D,16)}, v[26:27], v[26:27], 0")
        s.e("s_nop 9")
        s.e(f"v_smfmac_f32_32x32x32_bf16 {vr(A0,16)}, {vr(32+8*a)}, {vr(T,8)}, v{vIDX}")
        s.e(f"v_smfmac_f32_32x32x32_bf16 {vr(A1,16)}, {vr(36+8*a)}, {vr(T+8,8)}, v{vIDX}")
        s.e(f"""
s_nop 11
v_rcp_f32 v56, v{A0+9}
v_rcp_f32 v57, v{A1+9}
v_fma_f32 v58, v{A0+8}, v56, {sT2}
v_fmac_f32 v58, v{A1+8}, v57
v_rcp_f32 v58, v58
s_nop 0
v_mul_f32 v58, v58, v60
v_pk_mul_f32 v[56:57], v[56:57], v[58:59] op_sel_hi:[1,0]
""")
        for q in range(4): s.e(f"v_pk_mul_f32 {vr(A0+2*q,2)}, {vr(A0+2*q,2)}, v[56:57] op_sel_hi:[1,0]")
        for q in range(4): s.e(f"v_pk_fma_f32 {vr(A0+2*q,2)}, {vr(A1+2*q,2)}, v[56:57], {vr(A0+2*q,2)} op_sel:[0,1,0] op_sel_hi:[1,1,1]")
        for q in range(4): s.e(f"v_cvt_pk_bf16_f32 v{48+4*a+q}, v{A0+2*q}, v{A0+2*q+1}")
        s.vmem(f"buffer_store_dwordx4 {vr(48+4*a)}, v1, {SWS}, {sT1} offen offset:{a*1024} sc1", "ob")
    s.stamp("obst")
    s.e(f"buffer_load_dword v13, v{vGF}, {SWS}, s6 offen offset:12 sc1")
    fin(2, 2); fin(3, 3)
    s.e(f"s_add_u32 {sT0}, {sFL}, {WS_FLL - WS_FL}\ns_waitcnt vmcnt(1)\ns_mov_b64 exec, 1\nbuffer_store_dword v{vONE}, v{vZ}, {SWS}, {sT0} offen offset:12\ns_mov_b64 exec, -1")
    s.stamp("ob")
    vBo, vBx, vAo, vAx, vAl, vXW, vXR, vOUT = vW0, vW1, vPHW, vPHR, vPB, vU, vVXR, vSCW
    s.e(f"""
s_lshl_b32 {sT0}, {sP}, 15
s_add_u32 {sT1}, {sT0}, {L_R1}
v_add_u32 v{vBo}, {sT1}, v{vPB}
v_xor_b32 v{vBx}, 64, v{vBo}
s_lshl_b32 s4, {sP}, 14
s_add_u32 s4, s4, s88
""")
    sb_wait()
    s.e(f"s_or_b32 {sBUD}, {sBUD}, 7")
    top, done = lbl("po"), lbl("pod")
    s.e(f"s_mov_b32 s7, s6\n{top}:\nbuffer_load_dword v16, v{vGF}, {SWS}, s7 offen offset:12 sc1\ns_waitcnt vmcnt(0)\nv_cmp_ne_u32 vcc, 1, v16\ns_cbranch_vccz {done}")
    s.e(f"s_and_b32 {sT0}, {sBUD}, 7\ns_cselect_b32 s7, s6, s87\ns_cbranch_scc1 {top}n")
    setflag(3)
    s.e(f"{top}n:")
    spin_tail(s, top, done, 1)
    s.vm = []
    setflag(3)
    s.stamp("obok")
    AO, AX = 96, 112
    s.e(f"s_add_u32 {sT1}, s4, {WS_OB - WS_OA}")
    for t in range(16):
        if t and t % 4 == 0: s.e(f"s_add_u32 {sT1}, {sT1}, 4096")
        s.vmem(f"buffer_load_dwordx4 {ar(4*t)}, v1, {SWS}, {sT1} offen offset:{(t & 3)*1024} sc1", "obf")
    def afrag(g, a): return ar(64 + 16*a + 4*g) if a < 2 else vr(80 + 4*g)
    def a_early(heads):
        s.e(f"s_mov_b32 {sT1}, s4")
        for g in range(4):
            if g: s.e(f"s_add_u32 {sT1}, {sT1}, 4096")
            for a in heads: s.vmem(f"buffer_load_dwordx4 {afrag(g, a)}, v1, {SWS}, {sT1} offen offset:{a*1024} sc1")
    s.stamp("obiss")
    fin(0, 4)
    NIN = 32
    bx = [(vBx, t * 2048, 1024, mfma(vr(AX, 16), "WF", ar(4 * t), "0" if t == 0 else vr(AX, 16))) for t in range(16)]
    bo = [(vBo, t * 2048, 1024, mfma(vr(AO, 16), "WF", ar(4 * t), "0" if t == 0 else vr(AO, 16))) for t in range(16)]
    s.e("s_waitcnt vmcnt(1)\ns_setprio 0")
    def pre(t):
        if t % 4 == 0: dma_chunk(t // 4, SOA, 4, 1024, 0, L_R0, "WOA", True)
        if t == 15: s.wait(vm="obf")
    gemm(bx + bo, pre)
    s.e(f"s_setprio 2")
    s.stamp("p3b")
    fin(1, 5)
    poll(vGF, "s87", 12)
    sb_arrive()
    a_early((0, 1))
    s.e(f"s_add_u32 s7, s88, {WS_OL - WS_OA}\ns_cmp_eq_u32 {sHW}, 3\ns_cbranch_scc0 L_nopt")
    for i in range(8): s.e(f"s_add_u32 s6, s7, {4096*i}\nbuffer_load_dwordx4 a[0:3], v1, {SWS}, s6 offen offset:3072 sc1")
    s.e("L_nopt:")
    top, done = lbl("a2"), lbl("a2d")
    s.e(f"{top}:")
    a_early((2,))
    s.e(f"s_waitcnt vmcnt(0)\nv_max3_u32 v16, v80, v81, v82")
    for q in range(6): s.e(f"v_max3_u32 v16, v16, v{83+2*q}, v{84+2*q}")
    s.e(f"v_max_u32 v16, v16, v95\nv_cmp_eq_u32 vcc, -1, v16\ns_cbranch_vccz {done}")
    spin_tail(s, top, done, 6)
    s.vm = []
    s.stamp("aeok")
    skip = lbl("f6")
    s.e(f"s_cmp_eq_u32 {sHW}, 2\ns_cbranch_scc0 {skip}\ns_mov_b32 {sJ}, 6\ns_call_b64 s[92:93], L_fin\ns_add_u32 s89, s89, {WS_OL - WS_OA}\nbuffer_store_dwordx4 v[68:71], v1, {SWS}, s89 offen\n{skip}:")
    s.stamp("fin6")
    s.e(f"""
s_lshl_b32 {sT0}, {sP}, 15
s_add_u32 {sT1}, {sT0}, {L_R0}
v_add_u32 v{vAo}, {sT1}, v{vPB}
v_xor_b32 v{vAx}, 64, v{vAo}
s_sub_u32 s5, s88, {WS_OA}
s_add_u32 s5, s5, s77
s_lshl_b32 {sT3}, {sP}, 6
s_add_u32 s5, s5, {sT3}
s_lshl_b32 {sT0}, {sTT}, 12
s_mul_i32 {sT1}, {sTT}, {L_WPHI - L_Q}
s_add_u32 {sT1}, {sT1}, {L_Q}
s_cmp_eq_u32 {sP}, 0
s_cselect_b32 {sT2}, {sT0}, {sT1}
s_cselect_b32 {sT3}, {sT1}, {sT0}
""")
    s.stamp("aeld")
    ea = [(g, a) for a in (2, 0, 1) for g in range(4)]
    ax = [(vAx, (4*g + a) * 2048, 1024, mfma(vr(AX, 16), "WF", afrag(g, a), vr(AX, 16))) for g, a in ea]
    ao = [(vAo, (4*g + a) * 2048, 1024, mfma(vr(AO, 16), "WF", afrag(g, a), vr(AO, 16))) for g, a in ea]
    sb_wait()
    s.e(f"v_add_u32 v{vAl}, {L_R0}, v{vPB}")
    for i in range(8):
        for rd in range(2):
            s.lds(f"ds_read_b64_tr_b16 {ar(96+4*i+2*rd,2)}, v{vAl} offset:{(4*i+3)*2048 + rd*1024}")
    steps = list(ax); NX = len(steps); steps += ao
    NS = len(steps)
    def late_load(i):
        s.e(f"s_add_u32 s6, s7, {4096*i}\nbuffer_load_dwordx4 {vr(64+4*i)}, v1, {SWS}, s6 offen offset:3072 sc1")
    def late_loads():
        for i in range(8): late_load(i)
    TLATE = NS - int(os.environ.get("TLATE", "4"))
    assert TLATE + 2 >= NX + 4 + LAG
    def pre(t):
        if t == LAG:
            s.e("s_barrier")
            s.stamp("BT")
        if t == 5: s.e(f"v_add_u32 v{vXW}, {sT2}, v1\nv_add_u32 v{vXR}, {sT3}, v1")
        if t == 6: s.e(f"v_and_b32 v17, 0x1f0, v1\nv_lshlrev_b32 v17, 6, v17")
        if t == 7: s.e(f"v_lshrrev_b32 v16, 9, v1\nv_lshl_add_u32 v{vOUT}, v16, 5, v17")
        if NX + 7 <= t < NX + 11: s.lds(f"ds_write_b128 v{vXW}, {vr(AX + 4*(t-NX-7))} offset:{(t-NX-7)*1024}")
        if TLATE <= t < TLATE + 4: late_load(2 * (t - TLATE)); late_load(2 * (t - TLATE) + 1)
    gemm(steps, pre)
    s.e("s_barrier")
    for q in range(4): s.lds(f"ds_read_b128 {vr(AX + 4*q)}, v{vXR} offset:{q*1024}")
    s.stamp("p3a")
    top, done = lbl("lt"), lbl("ltd")
    def late_check():
        for i in range(8):
            s.e(f"s_waitcnt vmcnt({7-i})")
            if i == 0: s.e("v_max3_u32 v16, v64, v65, v66\nv_max_u32 v16, v16, v67")
            else: s.e(f"v_max3_u32 v16, v16, v{64+4*i}, v{65+4*i}\nv_max3_u32 v16, v16, v{66+4*i}, v{67+4*i}")
        s.e(f"v_cmp_eq_u32 vcc, -1, v16")
    late_check()
    s.wait(lg="all")
    for q in range(8): s.e(f"v_pk_add_f32 {vr(AO+2*q,2)}, {vr(AO+2*q,2)}, {vr(AX+2*q,2)}")
    s.e(f"s_mov_b32 s4, s7\ns_or_b32 {sBUD}, {sBUD}, 3\ns_cbranch_vccz {done}\n{top}:\ns_and_b32 {sT0}, {sBUD}, 3\ns_cselect_b32 s7, s4, s88")
    late_loads()
    late_check()
    s.e(f"s_cbranch_vccz {done}")
    spin_tail(s, top, done, 0)
    s.stamp("late")
    for i in range(8): s.e(mfma(vr(AO, 16), ar(96 + 4 * i), vr(64 + 4 * i), vr(AO, 16)))
    s.e("s_nop 11")
    for q in range(8): s.e(f"v_cvt_pk_bf16_f32 v{36+q}, v{AO+2*q}, v{AO+2*q+1}")
    s.e(f"buffer_store_dwordx4 v[36:39], v{vOUT}, {SOUT}, s5 offen\nbuffer_store_dwordx4 v[40:43], v{vOUT}, {SOUT}, s5 offen offset:16")
    if STAMP or CAL:
        s.e("s_waitcnt vmcnt(0)"); s.stamp("end")
    if STAMP: write_stamps(s)
    if CAL: cal_end(s)
    s.e("L_exit:\ns_endpgm")
    top, done = "L_fin", lbl("fpd")
    s.e(f"""
{top}:
ds_read_b32 v17, v{vFC} offset:{L_CNT + 8}
ds_read2st64_b32 v[64:65], v{vOL} offset0:8 offset1:17
ds_read2st64_b32 v[66:67], v{vOL} offset0:26 offset1:35
""")
    for cw in range(4):
        for q in range(4):
            s.e(f"ds_read2st64_b32 {vr(32+8*cw+2*q,2)}, v{vOD} offset0:{9*cw+2*q} offset1:{9*cw+2*q+1}")
    s.e(f"""
s_lshr_b32 {sT1}, {sJ}, 1
s_waitcnt lgkmcnt(15)
v_min3_f32 v16, v64, v65, v66
v_cmp_ne_u32 s[82:83], {sT1}, v17
v_min_f32 v16, v16, v67
v_cmp_eq_f32 vcc, -1.0, v16
s_or_b64 vcc, vcc, s[82:83]
s_cbranch_vccz {done}
""")
    spin_tail(s, top, done, 2)
    s.e(f"""
v_pk_add_f32 v[64:65], v[64:65], v[66:67]
v_add_u32 v17, 1, v17
s_lshl_b32 {sT1}, {sT1}, 10
s_add_u32 s89, {sT1}, {sOT}
v_add_f32 v64, v64, v65
s_mov_b32 {sT0}, {fbits(2.0**-60)}
s_mov_b32 {sT1}, {fbits(2.0**64)}
v_cmp_nge_f32 s[82:83], v64, {sT0}
v_cmp_nle_f32 s[90:91], v64, {sT1}
v_rcp_f32 v64, v64
s_waitcnt lgkmcnt(0)
ds_write2st64_b32 v{vOD}, v{vNEG}, v{vNEG} offset0:8 offset1:17
ds_write2st64_b32 v{vOD}, v{vNEG}, v{vNEG} offset0:26 offset1:35
ds_write_b32 v{vFC}, v17 offset:{L_CNT + 8}
""")
    for q in range(4): s.e(f"v_pk_add_f32 {vr(32+2*q,2)}, {vr(32+2*q,2)}, {vr(40+2*q,2)}")
    for q in range(4): s.e(f"v_pk_add_f32 {vr(48+2*q,2)}, {vr(48+2*q,2)}, {vr(56+2*q,2)}")
    for q in range(4): s.e(f"v_pk_add_f32 {vr(32+2*q,2)}, {vr(32+2*q,2)}, {vr(48+2*q,2)}")
    s.e(f"""
s_or_b64 s[82:83], s[82:83], s[90:91]
s_movk_i32 {sT0}, 0x207
L_fnorm:
v_mul_f32 v64, v64, v{vG}
""")
    for q in range(4): s.e(f"v_pk_mul_f32 {vr(32+2*q,2)}, {vr(32+2*q,2)}, v[64:65] op_sel_hi:[1,0]")
    s.e("v_fma_f32 v16, v32, v33, v34\nv_fma_f32 v16, v35, v36, v16\nv_fma_f32 v16, v37, v38, v16\nv_add_f32 v16, v16, v39")
    for q in range(4): s.e(f"v_cvt_pk_bf16_f32 v{68+q}, v{32+2*q}, v{33+2*q}")
    s.e(f"v_cmp_class_f32 vcc, v16, {sT0}")
    if FORCE_FB: s.e(f"s_cmp_lg_u32 {sT0}, 0\ns_cbranch_scc1 L_fb")
    s.e("s_or_b64 vcc, vcc, s[82:83]\ns_cbranch_vccnz L_fb")
    s.e(f"buffer_store_dwordx4 v[68:71], v1, {SWS}, s89 offen sc1\ns_nop 0\ns_setpc_b64 s[92:93]")
    s.e("L_smx:\n" + "\n".join(softmax_max_exp([T0, T1], 48)) + "\ns_setpc_b64 s[92:93]")
    O, Sx = 32, 48
    if STAMP: s.e(f"L_fb:\ns_mov_b64 exec, 1\nbuffer_atomic_add v{vONE}, v{vZ}, {SDBG}, 0 offen offset:8 sc1\ns_mov_b64 exec, -1")
    else: s.e("L_fb:")
    t1, d1, t2, d2 = lbl("fa"), lbl("fad"), lbl("fc"), lbl("fcd")
    s.e(f"""
s_lshl_b32 {sT0}, {sJ}, 10
s_add_u32 {sT0}, {sT0}, {L_Q}
v_add_u32 v16, {sT0}, v1
ds_read_b128 v[68:71], v16
v_bfe_u32 v65, v1, 4, 5
v_lshrrev_b32 v17, 9, v1
v_bfe_u32 v16, v1, 4, 4
v_lshl_add_u32 v16, v17, 4, v16
v_lshlrev_b32 v16, 4, v16
v_mov_b32 v17, 0x80000000
v_cmp_gt_u32 vcc, 16, v65
v_mov_b32 v66, 0x400
v_mov_b32 v67, 0x200
v_cndmask_b32 v16, v17, v16, vcc
v_cmp_eq_u32 vcc, 16, v65
v_mov_b32 v64, 0xff800000
s_mov_b32 {sT0}, 0
v_cndmask_b32 v66, v16, v66, vcc
v_cndmask_b32 v67, v16, v67, vcc
{t1}:
buffer_load_dwordx4 v[72:75], v1, {SWS}, {sT0} offen sc1
s_waitcnt vmcnt(0) lgkmcnt(0)
v_max3_u32 v16, v72, v73, v74
v_max_u32 v16, v16, v75
v_cmp_eq_u32 vcc, -1, v16
s_cbranch_vccz {d1}
""")
    spin_tail(s, t1, d1, 2)
    s.e(mfma(vr(Sx,16), "v[72:75]", "v[68:71]", 0) + "\ns_nop 11")
    for q in range(8): s.e(f"v_max3_f32 v64, v64, v{Sx+2*q}, v{Sx+2*q+1}")
    s.e(f"""
s_add_u32 {sT0}, {sT0}, {KVREC}
s_cmp_lt_u32 {sT0}, {64*KVREC}
s_cbranch_scc1 {t1}
v_mov_b32 v65, v64
s_nop 1
v_permlane32_swap_b32 v64, v65
v_max_f32 v64, v64, v65
v_mfma_f32_32x32x8_bf16 {vr(O,16)}, v[26:27], v[26:27], 0
s_mov_b32 {sT0}, 0
{t2}k:
buffer_load_dwordx4 v[72:75], v1, {SWS}, {sT0} offen sc1
s_waitcnt vmcnt(0)
{mfma(vr(Sx,16), "v[72:75]", "v[68:71]", 0)}
{t2}:
buffer_load_dwordx4 v[72:75], v66, {SWS}, {sT0} offen offset:1024 sc1
buffer_load_dwordx4 v[76:79], v67, {SWS}, {sT0} offen offset:1536 sc1
s_waitcnt vmcnt(0)
v_max3_u32 v16, v72, v73, v74
v_max3_u32 v16, v16, v75, v76
v_max3_u32 v16, v16, v77, v78
v_max_u32 v16, v16, v79
v_cmp_eq_u32 vcc, -1, v16
s_cbranch_vccz {d2}
""")
    spin_tail(s, t2, d2, 2)
    s.e("s_nop 3")
    for q in range(16): s.e(f"v_sub_f32 v{Sx+q}, v{Sx+q}, v64")
    for q in range(16): s.e(f"v_exp_f32 v{Sx+q}, v{Sx+q}")
    s.e(f"""
s_nop 1
v_smfmac_f32_32x32x32_bf16 {vr(O,16)}, v[72:75], {vr(Sx,8)}, v{vIDX}
v_smfmac_f32_32x32x32_bf16 {vr(O,16)}, v[76:79], {vr(Sx+8,8)}, v{vIDX}
s_add_u32 {sT0}, {sT0}, {KVREC}
s_cmp_lt_u32 {sT0}, {64*KVREC}
s_cbranch_scc1 {t2}k
s_nop 11
v_rcp_f32 v64, v{O+8}
s_nop 0
v_mov_b32 v65, v64
s_nop 1
v_permlane32_swap_b32 v64, v65
s_mov_b64 s[82:83], 0
s_mov_b32 {sT0}, 0
s_branch L_fnorm
""")
    return s

def build():
    p = prologue()
    c = p.fork(); h = p.fork()
    c_path(c); h_path(h)
    hdr = open(os.path.join(os.path.dirname(__file__), "..", "cdna_kernels", NAME + ".s.ref")).read().split("\n")
    top = [l for l in hdr if l.startswith(";") and "@launch" not in l and "Override" not in l and "grid=ceil" not in l]
    out = top + [f"; @launch grid=(256,1,1) block=(512,1,1) lds={LDS_BYTES}",
        '.amdgcn_target "amdgcn-amd-amdhsa--gfx950"', ".text", f".globl {NAME}_kernel", ".p2align 12", ".p2align 8",
        f".type {NAME}_kernel,@function", f"{NAME}_kernel:", p.text(), c.text(), h.text(),
        "L_codeend:", ".fill 8, 4, 0xbf810000", f".set CODE_BYTES, L_codeend - {NAME}_kernel",
        '.section .rodata,"a"', ".p2align 6", f".amdhsa_kernel {NAME}_kernel",
        "  .amdhsa_next_free_vgpr 256", "  .amdhsa_next_free_sgpr 102", "  .amdhsa_accum_offset 128",
        "  .amdhsa_group_segment_fixed_size 0", "  .amdhsa_kernarg_size 104", "  .amdhsa_user_sgpr_count 2",
        "  .amdhsa_user_sgpr_kernarg_segment_ptr 1", "  .amdhsa_system_sgpr_workgroup_id_x 1",
        "  .amdhsa_float_denorm_mode_32 3",
        ".end_amdhsa_kernel", ""]
    return "\n".join(out)

def addresses(txt):
    import subprocess, re
    sys.path.insert(0, os.path.join(os.path.dirname(os.path.abspath(__file__)), "..", "cdna_kernels"))
    import cdna_launch as cl
    L = txt.split("\n"); o = []
    for n, l in enumerate(L):
        if l.startswith("    ") and not l.strip().startswith((".", ";")): o.append(f"Lq{n}:")
        o.append(l)
    os.makedirs("t", exist_ok=True)
    open("q.s", "w").write(cl.with_harness_metadata("\n".join(o), NAME + "_kernel", 13, launch_lists=True))
    subprocess.run(["clang", "-x", "assembler", "-target", "amdgcn-amd-amdhsa", "-mcpu=gfx950", "q.s", "-o", "q.co"], check=True)
    r = subprocess.run(["llvm-readelf", "-s", "q.co"], capture_output=True, text=True).stdout
    return {int(m.group(2)): int(m.group(1), 16) for m in re.finditer(r": ([0-9a-f]+) .* Lq(\d+)$", r, re.M)}

def add_page_stubs(txt):
    NMAX = 12
    def warm(n):
        E = (0, 1, NEXT[0])
        o = ["    s_mov_b64 exec, 0"]
        for q, k in enumerate(E):
            if k < n: o += [f"    s_cmp_eq_u32 s78, {q + 1}", f"    s_cbranch_scc0 L_wk{k}", f"    s_call_b64 s[92:93], L_pg{k}", f"L_wk{k}:"]
            else: o += ["    s_nop 0"] * 3 + [f"L_wx{q}:"]
        o += ["    s_branch L_wdone", "L_wret:", "    s_setpc_b64 s[92:93]", "L_wdone:", "    s_mov_b64 exec, -1"]
        p = ["    s_mov_b64 exec, 0"]; q = 0
        for k in range(NMAX):
            if k in E: continue
            if k < n and k not in SKIP: p += [f"    s_cmp_eq_u32 s78, {q % 3 + 1}", f"    s_cbranch_scc0 L_wk{k}", f"    s_call_b64 s[92:93], L_pg{k}", f"L_wk{k}:"]; q += 1
        p += ["    s_branch L_wdone2"] + ["    s_nop 0 ; L_wk"] * (3 * (NMAX - 3 - q)) + [f";{z}" for z in range(NMAX - 3 - q)] + ["L_wdone2:", "    s_mov_b64 exec, -1"]
        return "\n".join(o), "\n".join(p)
    NEXT = [99]; SKIP = set()
    n = 0
    for lab in ("L_fin:",):
        txt = txt.replace("\n" + lab + "\n", f"\nL_pg{n}:\n    s_cbranch_execz L_wret\n{lab}\n", 1); n += 1
    while True:
        w1, w2 = warm(n)
        cur = txt.replace("    ;WARMUP2", w2).replace("    ;WARMUP", w1)
        A = addresses(cur); L = cur.split("\n")
        idx = sorted(A); todo = None
        for a, b in zip(idx, idx[1:]):
            if A[a] >> 12 != A[b] >> 12 and A[b] - A[a] <= 8 and not L[a].strip().startswith(("s_branch", "s_endpgm", "s_setpc")) and "L_wret" not in L[b] and "L_wk" not in L[a] + L[b]:
                todo = b; break
        if todo is None: return cur, A
        T = txt.split("\n"); h = T.index("L_H:"); w = T.index("    ;WARMUP"); wb = T.index("    ;WARMUP2")
        e1, e2 = len(w1.split("\n")) - 1, len(w2.split("\n")) - 1
        pos = todo if todo <= w else (max(todo - e1, w + 1) if todo - e1 <= wb else max(todo - e1 - e2, wb + 1))
        if h < pos <= w: SKIP.add(n)
        if pos > w and NEXT[0] == 99: NEXT[0] = n
        while T[pos - 1].endswith(":"): pos -= 1
        T[pos:pos] = [f"L_pg{n}:", "    s_cbranch_execz L_wret"]
        txt = "\n".join(T); n += 1
        assert n <= NMAX

if __name__ == "__main__":
    txt = build()
    raw = txt
    if int(os.environ.get("WARM", "1")): txt, A = add_page_stubs(txt)
    dst = sys.argv[1] if len(sys.argv) > 1 else os.path.join(os.path.dirname(__file__), "..", "cdna_kernels", NAME + ".s")
    open(dst, "w").write(txt)
    if STAMP:
        import json; json.dump(STAMPS, open(dst + ".json", "w"))
    sys.path.insert(0, os.path.dirname(__file__))
    import hazcheck
    print("hazards:", hazcheck.check(raw), " lines:", txt.count("\n"))
```

```python
import sys, re
src, out, pats = sys.argv[1], sys.argv[2], sys.argv[3:]
s = open(src).read()
s = s.replace("L_own:\n", "L_own:\n    s_mov_b32 s95, 0\n", 1)
for p in pats:
    m = re.findall(r"\n(L_%s\d+):\n" % p, s); assert len(m) == 1, m
    s = s.replace("\n" + m[0] + ":\n", "\n" + m[0] + ":\n    s_add_u32 s95, s95, 1\n", 1)
END = """L_cnt:
    s_waitcnt vmcnt(0)
    s_cmp_eq_u32 s95, 0
    s_cbranch_scc1 L_nocnt
""" + "    s_sleep 64\n" * 2 + """    v_mov_b32 v16, s95
    s_mov_b64 exec, 1
    buffer_atomic_add v16, v26, s[48:51], 0 offen offset:64 sc1
    s_mov_b64 exec, -1
L_nocnt:
    s_cmp_eq_u32 s2, 24
    s_cbranch_scc0 L_exit
    s_cmp_eq_u32 s52, 4
    s_cbranch_scc0 L_exit
""" + "    s_sleep 64\n" * 12 + """    buffer_load_dword v16, v26, s[48:51], 0 offen offset:64 sc1
    s_waitcnt vmcnt(0)
    v_readfirstlane_b32 s94, v16
    s_mul_i32 s94, s94, 5
    s_min_u32 s94, s94, 100000
    s_memrealtime s[96:97]
    s_waitcnt lgkmcnt(0)
L_calw:
    s_sleep 4
    s_memrealtime s[98:99]
    s_waitcnt lgkmcnt(0)
    s_sub_u32 s98, s98, s96
    s_cmp_lt_u32 s98, s94
    s_cbranch_scc1 L_calw
    s_endpgm
"""
s = s.replace("L_exit:\n", "    s_branch L_cnt\nL_exit:\n", 1).replace("L_codeend:\n", END + "L_codeend:\n", 1)
open(out, 'w').write(s)
```

```python
import sys
for src in sys.argv[1:]:
    s = open(src).read()
    s = s.replace("    s_cbranch_scc1 L_exit\n", "    s_cbranch_scc1 L_exit\n    s_memrealtime s[94:95]\n", 1)
    END = """    s_waitcnt vmcnt(0)
    s_memrealtime s[96:97]
    s_bitcmp1_b32 s52, 0
    s_cbranch_scc0 L_exit
    s_bfe_u32 s69, s52, 0x10001
    s_lshl1_add_u32 s69, s2, s69
    s_lshl_b32 s69, s69, 7
    s_add_u32 s69, s69, 0x80000
    s_waitcnt lgkmcnt(0)
    v_mov_b32 v16, s94
    v_mov_b32 v17, s96
    s_mov_b64 exec, 1
    buffer_store_dwordx2 v[16:17], v26, s[24:27], s69 offen sc1
    s_mov_b64 exec, -1
    s_cmp_eq_u32 s52, 7
    s_cbranch_scc0 L_exit
    s_cmp_eq_u32 s2, 24
    s_cbranch_scc0 L_exit
""" + "    s_sleep 64\n" * 3 + "    v_lshlrev_b32 v18, 3, v1\n    s_mov_b32 s69, 0x80000\n"
    for i in range(8): END += f"    buffer_load_dwordx2 v[{32+2*i}:{33+2*i}], v18, s[24:27], s69 offen sc1\n    s_add_u32 s69, s69, 8192\n"
    END += "    s_waitcnt vmcnt(0)\n"
    for i in range(8): END += f"    v_subrev_u32 v{32+2*i}, s94, v{32+2*i}\n    v_subrev_u32 v{33+2*i}, s94, v{33+2*i}\n"
    for i in range(1, 8): END += f"    v_min_i32 v32, v32, v{32+2*i}\n    v_max_i32 v33, v33, v{33+2*i}\n"
    END += """    s_mov_b32 s69, 0
    s_mov_b32 s70, 0
    s_mov_b32 s71, 0
L_red:
    s_nop 3
    v_readlane_b32 s72, v32, s69
    v_readlane_b32 s73, v33, s69
    s_nop 3
    s_min_i32 s70, s70, s72
    s_max_i32 s71, s71, s73
    s_add_u32 s69, s69, 1
    s_cmp_lt_u32 s69, 64
    s_cbranch_scc1 L_red
    s_sub_u32 s94, s71, s70
    s_lshl_b32 s94, s94, 4
    s_min_u32 s94, s94, 100000
    s_memrealtime s[96:97]
    s_waitcnt lgkmcnt(0)
L_calw:
    s_sleep 4
    s_memrealtime s[98:99]
    s_waitcnt lgkmcnt(0)
    s_sub_u32 s98, s98, s96
    s_cmp_lt_u32 s98, s94
    s_cbranch_scc1 L_calw
L_exit:
"""
    s = s.replace("L_exit:\n", "    s_branch L_span\nL_exit:\n", 1).replace("L_codeend:\n", "L_span:\n" + END.replace("L_exit:\n", "    s_endpgm\n") + "L_codeend:\n", 1)
    open("sp_" + src, 'w').write(s)
```
